```python
import torch

def _softmax(x, axis=-1):
    return torch.softmax(x, dim=axis)
def _gelu(x):
    return torch.nn.functional.gelu(x, approximate="tanh")
def _silu(x):
    return torch.nn.functional.silu(x)
def _sigmoid(x):
    return torch.sigmoid(x)
def _layernorm(x, axis=-1, eps=1e-5):
    m = x.mean(dim=axis, keepdim=True)
    v = x.var(dim=axis, keepdim=True, unbiased=False)
    return (x - m) / torch.sqrt(v + eps)
def _scatter_add(tgt, idx, src, axis=0):
    return tgt.clone().index_add_(axis, idx, src)
def _segment_sum(src, seg, n):
    out = torch.zeros((n,) + src.shape[1:], dtype=src.dtype)
    return out.index_add_(0, seg, src)
def _pad(x, pw):
    flat = tuple(v for pair in reversed(pw) for v in pair)
    return torch.nn.functional.pad(x, flat)

kernel_name = 'gated_mix__grouped_kv_mqa__mha_block__prompt'

def setup_inputs():

    _w = (lambda a: (lambda t: t.to(torch.bfloat16) if t.is_floating_point() else t)(torch.as_tensor(a)))
    def _A_setup():
        B, S, D, H = 1, 2048, 512, 32
        Dh = D // H
        return {
            "x": _w((lambda *s: torch.randn(*s, dtype=torch.bfloat16) * 0.05)(B, S, D)),
            "wq": _w((lambda *s: torch.randn(*s, dtype=torch.bfloat16) * 1.6)(D, H * Dh)),
            "wk": _w((lambda *s: torch.randn(*s, dtype=torch.bfloat16) * 1.6)(D, Dh)),
            "wv": _w((lambda *s: torch.randn(*s, dtype=torch.bfloat16) * 0.8)(D, Dh)),
            "wo": _w((lambda *s: torch.randn(*s, dtype=torch.bfloat16) * 0.8)(H * Dh, D)),
        }
    _A_in = _A_setup()

    def _B_setup():
        B, S, D, H = 1, 2048, 512, 32
        return {
            "x": _w((lambda *s: torch.randn(*s, dtype=torch.bfloat16) * 0.05)(B, S, D)),
            "wqkv": _w((lambda *s: torch.randn(*s, dtype=torch.bfloat16) * 3.2)(D, 3 * D)),
            "wo": _w((lambda *s: torch.randn(*s, dtype=torch.bfloat16) * 0.05)(D, D)),
        }
    _B_in = _B_setup()

    return {
        "A_x": _A_in["x"],
        "A_wq": _A_in["wq"],
        "A_wk": _A_in["wk"],
        "A_wv": _A_in["wv"],
        "A_wo": _A_in["wo"],
        "B_x": _B_in["x"],
        "B_wqkv": _B_in["wqkv"],
        "B_wo": _B_in["wo"],
        "gate_w": _w((lambda *s: torch.randn(*s, dtype=torch.bfloat16) * 0.1)(512) * 16.0),
    }

def reference(A_x, A_wq, A_wk, A_wv, A_wo, B_x, B_wqkv, B_wo, gate_w):
    def _A_ref(x, wq, wk, wv, wo):
        B, S, D = x.shape
        H = 32
        Dh = D // H
        q = (lambda x, *d: x.permute(*d))((x @ wq).reshape(B, S, H, Dh), 0, 2, 1, 3)
        k = x @ wk
        v = x @ wv
        scores = torch.einsum("bhqd,bkd->bhqk", q, k) * (Dh ** -0.5)
        p = _softmax(scores, axis=-1)
        o = torch.einsum("bhqk,bkd->bhqd", p, v)
        return (lambda x, *d: x.permute(*d))(o, 0, 2, 1, 3).reshape(B, S, H * Dh) @ wo

    def _B_ref(x, wqkv, wo):
        B, S, D = x.shape
        H = 32
        Dh = D // H
        qkv = (lambda x, *d: x.permute(*d))((x @ wqkv).reshape(B, S, 3, H, Dh), 2, 0, 3, 1, 4)
        q, k, v = qkv[0], qkv[1], qkv[2]
        scores = torch.einsum("bhqd,bhkd->bhqk", q, k) * (Dh ** -0.5)
        p = _softmax(scores, axis=-1)
        o = torch.einsum("bhqk,bhkd->bhqd", p, v)
        return (lambda x, *d: x.permute(*d))(o, 0, 2, 1, 3).reshape(B, S, D) @ wo

    x = A_x
    g = _sigmoid((x * gate_w).sum(-1, keepdims=True))
    a = _A_ref(x, A_wq, A_wk, A_wv, A_wo)
    b = _B_ref(x, B_wqkv, B_wo)
    return g * a + (1 - g) * b
```

```python
import sys, struct

OUT = sys.argv[1] if len(sys.argv) > 1 else "gated_mix__grouped_kv_mqa__mha_block__prompt.s"

def f32bits(x):
    return struct.unpack("<I", struct.pack("<f", x))[0]

QF_OFF = 0
KV_OFF = 4 << 20
OF_OFF = 12 << 20
G_OFF  = 16 << 20
WS_BYTES = 268435456
SCALE = 0.25 * 1.4426950408889634

L = []
def e(s=""):
    L.append(s)
def vr(b, n=1):
    return f"v{b}" if n == 1 else f"v[{b}:{b+n-1}]"
def sr(b, n=1):
    return f"s{b}" if n == 1 else f"s[{b}:{b+n-1}]"

def srd(dst, base, nbytes):
    e(f"  s_mov_b32 s{dst}, s{base}")
    e(f"  s_and_b32 s{dst+1}, s{base+1}, 0xffff")
    e(f"  s_mov_b32 s{dst+2}, {nbytes}")
    e(f"  s_mov_b32 s{dst+3}, 0x00020000")

HEADER = """; Kernarg layout for this problem (96 bytes, ptrs only, base s[0:1]):
; @launch kernel=proj_kernel grid=(264,1,1) block=(512,1,1) lds=65536
; @launch kernel=attn_kernel grid=(256,1,1) block=(1024,1,1) lds=135168
; @launch kernel=outp_kernel grid=(256,1,1) block=(512,1,1) lds=147456
.amdgcn_target "amdgcn-amd-amdhsa--gfx950"
.text
"""

def kernel_start(name):
    e(f".globl {name}")
    e(".p2align 8")
    e(f".type {name},@function")
    e(f"{name}:")

def kernel_desc(name, nvgpr, nsgpr):
    acc = (nvgpr + 3) // 4 * 4
    return f""".p2align 6
.amdhsa_kernel {name}
  .amdhsa_next_free_vgpr {nvgpr}
  .amdhsa_next_free_sgpr {nsgpr}
  .amdhsa_accum_offset {acc}
  .amdhsa_group_segment_fixed_size 0
  .amdhsa_kernarg_size 96
  .amdhsa_user_sgpr_count 2
  .amdhsa_user_sgpr_kernarg_segment_ptr 1
  .amdhsa_system_sgpr_workgroup_id_x 1
.end_amdhsa_kernel
"""

def tr_addr(vA0, vA1, vlane, t0, t1, t2, t3, perm):
    e(f"  v_lshrrev_b32 v{t0}, 4, v{vlane}          ; g")
    e(f"  v_and_b32 v{t1}, 1, v{t0}                 ; g%2")
    e(f"  v_lshrrev_b32 v{t0}, 1, v{t0}             ; h")
    e(f"  v_bfe_u32 v{t2}, v{vlane}, 2, 2           ; r")
    e(f"  v_lshl_add_u32 v{t0}, v{t0}, 3, v{t2}     ; 8h + r")
    e(f"  v_lshlrev_b32 v{t0}, 7, v{t0}             ; *128")
    e(f"  v_and_b32 v{t3}, 3, v{vlane}              ; c")
    e(f"  v_lshl_add_u32 v{t1}, v{t1}, 2, v{t3}     ; mc=(g%2)*4+c")
    if perm:
        e(f"  v_and_b32 v{t3}, 1, v{t1}")
        e(f"  v_lshrrev_b32 v{t1}, 1, v{t1}")
        e(f"  v_lshl_add_u32 v{t1}, v{t3}, 2, v{t1}     ; nc = 4*(mc%2)+mc/2")
    e(f"  v_and_b32 v{t3}, 1, v{t1}")
    e(f"  v_lshl_add_u32 v{t0}, v{t3}, 3, v{t0}     ; + (nc%2)*8")
    e(f"  v_lshrrev_b32 v{t1}, 1, v{t1}")
    e(f"  v_lshrrev_b32 v{t2}, 1, v{t2}             ; (r>>1)&1")
    e(f"  v_lshlrev_b32 v{t2}, 2, v{t2}")
    e(f"  v_xor_b32 v{t1}, v{t1}, v{t2}")
    e(f"  v_lshl_add_u32 v{vA0}, v{t1}, 4, v{t0}")
    e(f"  v_xor_b32 v{vA1}, 64, v{vA0}")

def gen_proj():
    kernel_start("proj_kernel")
    sX, sWQ, sWK, sWV, sWQKV, sGW, sWS = 4, 6, 8, 10, 12, 14, 16
    rX, rW, rWS, rW2, rG = 20, 24, 28, 32, 36
    sNB, sTB, sT0, sT1, sT2, sPitch64, sCol, sWid = 40, 41, 42, 43, 44, 45, 46, 47
    sEx = 48
    sOff = 50
    e("  s_cmp_ge_u32 s2, 264")
    e("  s_cbranch_scc1 proj_done")
    e("  s_load_dwordx4 s[4:7], s[0:1], 0")
    e("  s_load_dwordx4 s[8:11], s[0:1], 16")
    e("  s_load_dwordx2 s[12:13], s[0:1], 48")
    e("  s_load_dwordx2 s[14:15], s[0:1], 64")
    e("  s_load_dwordx2 s[16:17], s[0:1], 88")
    e(f"  s_lshr_b32 s{sNB}, s2, 3")
    e(f"  s_and_b32 s{sTB}, s2, 7")
    vTid = 0; vLane = 1; vXoff = 2; vWoff = 3; vLdsW = 4; vA0 = 5; vA1 = 6; vSt = 7
    t0, t1, t2, t3 = 8, 9, 10, 11
    vWF = 12
    vAcc = 28
    vXF = 60
    NV = 124
    e(f"  v_and_b32 v{vLane}, 63, v0")
    e(f"  v_lshrrev_b32 v{t0}, 6, v0")
    e("  s_nop 0")
    e(f"  v_readfirstlane_b32 s{sWid}, v{t0}")
    e("  s_waitcnt lgkmcnt(0)")
    srd(rX, sX, 2097152)
    srd(rWS, sWS, WS_BYTES)
    e(f"  s_lshl_b32 s{sT0}, s{sTB}, 3")
    e(f"  s_add_u32 s{sT0}, s{sT0}, s{sWid}")
    e(f"  s_lshl_b32 s{sT1}, s{sT0}, 15              ; *32*1024")
    e(f"  v_and_b32 v{t0}, 31, v{vLane}")
    e(f"  v_lshlrev_b32 v{t0}, 10, v{t0}")
    e(f"  v_lshrrev_b32 v{t1}, 5, v{vLane}")
    e(f"  v_lshl_add_u32 v{t0}, v{t1}, 4, v{t0}")
    e(f"  v_add_u32 v{vXoff}, s{sT1}, v{t0}")
    e(f"  v_lshrrev_b32 v{t0}, 3, v0")
    e(f"  v_and_b32 v{t1}, 7, v0                    ; chunk")
    e(f"  v_bfe_u32 v{t2}, v0, 4, 1")
    e(f"  v_lshlrev_b32 v{t2}, 2, v{t2}")
    e(f"  v_xor_b32 v{t2}, v{t2}, v{t1}")
    e(f"  v_lshlrev_b32 v{t2}, 4, v{t2}")
    e(f"  v_lshl_add_u32 v{vLdsW}, v{t0}, 7, v{t2}")
    e(f"  s_cmp_eq_u32 s{sNB}, 32")
    e("  s_cbranch_scc1 proj_special_load")
    e(f"  s_cmp_lt_u32 s{sNB}, 8")
    e("  s_cbranch_scc1 proj_wq")
    srd(rW, sWQKV, 512 * 3072)
    e(f"  s_sub_u32 s{sCol}, s{sNB}, 8")
    e(f"  s_lshl_b32 s{sCol}, s{sCol}, 7")
    e(f"  s_mov_b32 s{sPitch64}, {3072*64}")
    e(f"  v_mul_u32_u24 v{vWoff}, 3072, v{t0}")
    e("  s_branch proj_wcommon")
    e("proj_wq:")
    srd(rW, sWQ, 512 * 1024)
    e(f"  s_lshl_b32 s{sCol}, s{sNB}, 7")
    e(f"  s_mov_b32 s{sPitch64}, {1024*64}")
    e(f"  v_lshlrev_b32 v{vWoff}, 10, v{t0}")
    e("proj_wcommon:")
    e(f"  v_lshl_add_u32 v{vWoff}, v{t1}, 4, v{vWoff}")
    e(f"  s_mov_b32 s{sOff}, s{sCol}")
    for i in range(8):
        e(f"  buffer_load_dwordx4 {vr(vAcc+4*i,4)}, v{vWoff}, {sr(rW,4)}, s{sOff} offen")
        if i < 7:
            e(f"  s_add_u32 s{sOff}, s{sOff}, s{sPitch64}")
    e("  s_branch proj_xload")
    e("proj_special_load:")
    srd(rW, sWK, 512 * 32)
    srd(rW2, sWV, 512 * 32)
    srd(rG, sGW, 1024)
    for i in range(32):
        e(f"  v_mov_b32 v{vAcc+i}, 0")
    e(f"  v_and_b32 v{t2}, 1, v{t1}")
    e(f"  v_lshlrev_b32 v{t2}, 4, v{t2}")
    e(f"  v_lshl_add_u32 v{vWoff}, v{t0}, 5, v{t2}")
    e(f"  v_cmp_gt_u32 vcc, 2, v{t1}")
    e(f"  s_and_saveexec_b64 {sr(sEx,2)}, vcc")
    for i in range(8):
        e(f"  buffer_load_dwordx4 {vr(vAcc+4*i,4)}, v{vWoff}, {sr(rW,4)}, 0 offen offset:{i*2048}" if i*2048 < 4096 else
          f"  buffer_load_dwordx4 {vr(vAcc+4*i,4)}, v{vWoff}, {sr(rW,4)}, s{sOff} offen")
        if i >= 1 and i < 7:
            e(f"  s_mov_b32 s{sOff}, {(i+1)*2048}")
    e(f"  s_mov_b64 exec, {sr(sEx,2)}")
    e(f"  v_lshrrev_b32 v{t2}, 1, v{t1}")
    e(f"  v_cmp_eq_u32 vcc, 2, v{t2}                ; chunks 4,5")
    e(f"  s_and_saveexec_b64 {sr(sEx,2)}, vcc")
    for i in range(8):
        e(f"  buffer_load_dwordx4 {vr(vAcc+4*i,4)}, v{vWoff}, {sr(rW2,4)}, 0 offen offset:{i*2048}" if i*2048 < 4096 else
          f"  buffer_load_dwordx4 {vr(vAcc+4*i,4)}, v{vWoff}, {sr(rW2,4)}, s{sOff} offen")
        if i >= 1 and i < 7:
            e(f"  s_mov_b32 s{sOff}, {(i+1)*2048}")
    e(f"  s_mov_b64 exec, {sr(sEx,2)}")
    e(f"  v_lshlrev_b32 v{t2}, 1, v{t0}             ; row*2")
    e(f"  v_cmp_eq_u32 vcc, 2, v{t1}                ; chunk 2")
    e(f"  s_and_saveexec_b64 {sr(sEx,2)}, vcc")
    for i in range(8):
        e(f"  buffer_load_ushort v{vAcc+4*i}, v{t2}, {sr(rG,4)}, 0 offen offset:{i*128}")
    e(f"  s_mov_b64 exec, {sr(sEx,2)}")
    e("  s_waitcnt vmcnt(0)")
    e("proj_xload:")
    for s in range(16):
        e(f"  buffer_load_dwordx4 {vr(vXF+4*s,4)}, v{vXoff}, {sr(rX,4)}, 0 offen offset:{s*32}")
    tr_addr(vA0, vA1, vLane, t0, t1, t2, t3, False)
    e("  s_waitcnt vmcnt(16)")
    for i in range(8):
        e(f"  ds_write_b128 v{vLdsW}, {vr(vAcc+4*i,4)} offset:{i*8192}")
    e("  s_waitcnt lgkmcnt(0)")
    e("  s_barrier")

    def wread(s):
        b = s % 2
        for ct in range(2):
            for u in range(2):
                e(f"  ds_read_b64_tr_b16 {vr(vWF+b*8+ct*4+u*2,2)}, v{vA0 if ct==0 else vA1} offset:{s*2048+u*512}")

    def mainloop(orient):
        wread(0)
        for s in range(32):
            if s < 31:
                wread(s + 1)
            vm = 15 if s < 16 else 31 - s
            e(f"  s_waitcnt vmcnt({vm}) lgkmcnt({4 if s < 31 else 0})")
            xf = vXF + 4 * (s % 16)
            for ct in range(2):
                wf = vWF + (s % 2) * 8 + ct * 4
                acc = vAcc + 16 * ct
                c = "0" if s == 0 else vr(acc, 16)
                if orient[ct] == 'T':
                    e(f"  v_mfma_f32_32x32x16_bf16 {vr(acc,16)}, {vr(wf,4)}, {vr(xf,4)}, {c}")
                else:
                    e(f"  v_mfma_f32_32x32x16_bf16 {vr(acc,16)}, {vr(xf,4)}, {vr(wf,4)}, {c}")
            if s < 16:
                e(f"  buffer_load_dwordx4 {vr(xf,4)}, v{vXoff}, {sr(rX,4)}, 0 offen offset:{(s+16)*32}")
        e("  s_nop 15")

    e(f"  s_cmp_eq_u32 s{sNB}, 32")
    e("  s_cbranch_scc1 proj_main_special")
    e(f"  s_cmp_ge_u32 s{sNB}, 24")
    e("  s_cbranch_scc1 proj_main_v")
    mainloop("TT")
    e(f"  s_mov_b32 s{sT1}, {f32bits(SCALE)}")
    e(f"  s_cmp_lt_u32 s{sNB}, 16")
    e(f"  s_cselect_b32 s{sT1}, s{sT1}, 1.0")
    e(f"  s_lshl_b32 s{sT2}, s{sNB}, 8               ; nb*4*64")
    e(f"  s_add_u32 s{sT2}, s{sT2}, s{sT0}")
    e(f"  s_lshl_b32 s{sOff}, s{sT2}, 10             ; Q dest")
    e(f"  s_mov_b32 s{sCol}, 65536")
    e(f"  s_cmp_lt_u32 s{sNB}, 16")
    e(f"  s_cbranch_scc1 proj_qk_store")
    e(f"  s_sub_u32 s{sT2}, s{sT2}, {16*256}")
    e(f"  s_lshl_b32 s{sOff}, s{sT2}, 11")
    e(f"  s_add_u32 s{sOff}, s{sOff}, {KV_OFF}")
    e(f"  s_mov_b32 s{sCol}, 131072")
    e("proj_qk_store:")
    e(f"  v_lshlrev_b32 v{vSt}, 4, v{vLane}")
    for i in range(32):
        e(f"  v_mul_f32 v{vAcc+i}, s{sT1}, v{vAcc+i}")
    for hh in range(4):
        for j in range(4):
            e(f"  v_cvt_pk_bf16_f32 v{vXF+hh*4+j}, v{vAcc+hh*8+2*j}, v{vAcc+hh*8+2*j+1}")
    for hh in range(4):
        e(f"  buffer_store_dwordx4 {vr(vXF+hh*4,4)}, v{vSt}, {sr(rWS,4)}, s{sOff} offen")
        if hh < 3:
            e(f"  s_add_u32 s{sOff}, s{sOff}, s{sCol}")
    e("  s_endpgm")
    def v_store_addr():
        e(f"  v_and_b32 v{t0}, 3, v{vLane}")
        e(f"  v_and_b32 v{t1}, 4, v{vLane}")
        e(f"  v_lshl_or_b32 v{t0}, v{t1}, 1, v{t0}")
        e(f"  v_and_b32 v{t1}, 8, v{vLane}")
        e(f"  v_lshrrev_b32 v{t1}, 1, v{t1}")
        e(f"  v_or_b32 v{t0}, v{t0}, v{t1}              ; m")
        e(f"  v_lshlrev_b32 v{t0}, 4, v{t0}")
        e(f"  v_lshrrev_b32 v{t1}, 5, v{vLane}          ; half")
        e(f"  v_lshl_add_u32 v{t0}, v{t1}, 9, v{t0}")
        e(f"  v_bfe_u32 v{t1}, v{vLane}, 4, 1           ; subhead")
        e(f"  v_lshl_add_u32 v{vSt}, v{t1}, 17, v{t0}")
    e("proj_main_v:")
    mainloop("NN")
    v_store_addr()
    e(f"  s_sub_u32 s{sT2}, s{sNB}, 24")
    e(f"  s_lshl_b32 s{sT2}, s{sT2}, 8")
    e(f"  s_add_u32 s{sT2}, s{sT2}, s{sT0}")
    e(f"  s_lshl_b32 s{sOff}, s{sT2}, 11")
    e(f"  s_add_u32 s{sOff}, s{sOff}, {KV_OFF+1024}")
    for ct in range(2):
        for j in range(8):
            e(f"  v_cvt_pk_bf16_f32 v{vXF+ct*8+j}, v{vAcc+ct*16+2*j}, v{vAcc+ct*16+2*j+1}")
    for ct in range(2):
        for j in range(2):
            e(f"  buffer_store_dwordx4 {vr(vXF+ct*8+j*4,4)}, v{vSt}, {sr(rWS,4)}, s{sOff} offen offset:{j*256}")
        if ct == 0:
            e(f"  s_add_u32 s{sOff}, s{sOff}, {2*131072}")
    e("  s_endpgm")
    e("proj_main_special:")
    mainloop("TN")
    e(f"  s_lshl_b32 s{sOff}, s{sT0}, 11")
    e(f"  s_add_u32 s{sOff}, s{sOff}, {KV_OFF + 32*131072}")
    e(f"  v_lshlrev_b32 v{t2}, 4, v{vLane}")
    for j in range(4):
        e(f"  v_cvt_pk_bf16_f32 v{vXF+j}, v{vAcc+2*j}, v{vAcc+2*j+1}")
    for j in range(8):
        e(f"  v_cvt_pk_bf16_f32 v{vXF+8+j}, v{vAcc+16+2*j}, v{vAcc+16+2*j+1}")
    e(f"  buffer_store_dwordx4 {vr(vXF,4)}, v{t2}, {sr(rWS,4)}, s{sOff} offen")
    v_store_addr()
    g0, g1 = vXF + 20, vXF + 21
    e(f"  v_cvt_pk_bf16_f32 v{g0}, v{vAcc+8}, v{vAcc+8}")
    e(f"  v_lshlrev_b32 v{g0}, 16, v{g0}")
    e(f"  v_mul_f32 v{g0}, {hex(f32bits(-1.4426950408889634))}, v{g0}")
    e(f"  v_exp_f32 v{g0}, v{g0}")
    e("  s_nop 0")
    e(f"  v_add_f32 v{g0}, 1.0, v{g0}")
    e(f"  v_rcp_f32 v{g0}, v{g0}")
    e("  s_nop 0")
    e(f"  v_cvt_pk_bf16_f32 v{g0}, v{g0}, v{g0}")
    e(f"  v_lshlrev_b32 v{g0}, 16, v{g0}")
    e(f"  v_lshlrev_b32 v{g1}, 2, v{vLane}")
    e(f"  s_lshl_b32 s{sT2}, s{sT0}, 7")
    e(f"  s_add_u32 s{sT2}, s{sT2}, {G_OFF}")
    e(f"  v_cmp_gt_u32 vcc, 32, v{vLane}")
    e(f"  s_and_saveexec_b64 {sr(sEx,2)}, vcc")
    e(f"  buffer_store_dword v{g0}, v{g1}, {sr(rWS,4)}, s{sT2} offen")
    e(f"  s_mov_b64 exec, {sr(sEx,2)}")
    e(f"  s_add_u32 s{sOff}, s{sOff}, 1024")
    e(f"  v_and_b32 v{t0}, 16, v{vLane}")
    e(f"  v_cmp_eq_u32 vcc, 0, v{t0}")
    e(f"  s_and_saveexec_b64 {sr(sEx,2)}, vcc")
    for j in range(2):
        e(f"  buffer_store_dwordx4 {vr(vXF+8+j*4,4)}, v{vSt}, {sr(rWS,4)}, s{sOff} offen offset:{j*256}")
    e(f"  s_mov_b64 exec, {sr(sEx,2)}")
    e("proj_done:")
    e("  s_endpgm")
    return kernel_desc("proj_kernel", NV, 56)

def gen_attn():
    kernel_start("attn_kernel")
    sWS = 4; rWS = 8
    sWid, sHB, sBr, sHead, sQt, sT0, sT1, sIt, sThr, sInf, sFlag, sOff = 12, 13, 14, 15, 16, 17, 18, 19, 20, 21, 22, 23
    sMask = 24
    vLane, vAddr, vG, t0, t1, t2, t3 = 1, 2, 3, 4, 5, 6, 7
    vQ = 8
    vK = 12
    vV = 20
    vP = 36
    vO = 44
    vC = 60
    vS = 76
    NV = 108
    e("  s_cmp_ge_u32 s2, 256")
    e("  s_cbranch_scc1 attn_done")
    e("  s_load_dwordx2 s[4:5], s[0:1], 88")
    e(f"  v_and_b32 v{vLane}, 63, v0")
    e(f"  v_lshrrev_b32 v{t0}, 6, v0")
    e("  s_nop 0")
    e(f"  v_readfirstlane_b32 s{sWid}, v{t0}")
    e(f"  s_and_b32 s{sT0}, s2, 7")
    e(f"  s_lshr_b32 s{sT1}, s2, 3")
    e(f"  s_lshl_b32 s{sT0}, s{sT0}, 3")
    e(f"  s_lshr_b32 s{sHB}, s{sT1}, 2")
    e(f"  s_add_u32 s{sHB}, s{sHB}, s{sT0}           ; hb64")
    e(f"  s_and_b32 s{sT1}, s{sT1}, 3")
    e(f"  s_lshl_b32 s{sQt}, s{sT1}, 4")
    e(f"  s_add_u32 s{sQt}, s{sQt}, s{sWid}          ; qtile")
    e(f"  s_lshr_b32 s{sBr}, s{sHB}, 5")
    e(f"  s_and_b32 s{sHead}, s{sHB}, 31")
    e("  s_mov_b32 s24, 0x0000ffff")
    e("  s_mov_b32 s25, 0x0000ffff")
    e(f"  s_mov_b32 s{sThr}, {hex(f32bits(2.0**24))}")
    e(f"  s_mov_b32 s{sInf}, 0x7f800000")
    e(f"  s_mov_b32 s{sFlag}, 0")
    e(f"  v_lshlrev_b32 v{vAddr}, 4, v{vLane}        ; lane*16")
    e("  s_waitcnt lgkmcnt(0)")
    srd(rWS, sWS, WS_BYTES)
    e(f"  s_lshl_b32 s{sT0}, s{sHB}, 6")
    e(f"  s_add_u32 s{sT0}, s{sT0}, s{sQt}")
    e(f"  s_lshl_b32 s{sT0}, s{sT0}, 10")
    e(f"  buffer_load_dwordx4 {vr(vQ,4)}, v{vAddr}, {sr(rWS,4)}, s{sT0} offen")
    e(f"  s_cmp_eq_u32 s{sBr}, 1")
    e(f"  s_cselect_b32 s{sT0}, s{sHead}, 32")
    e(f"  s_lshl_b32 s{sT0}, s{sT0}, 17")
    e(f"  s_add_u32 s{sT0}, s{sT0}, {KV_OFF}")
    e(f"  s_lshl_b32 s{sT1}, s{sWid}, 10")
    e(f"  s_add_u32 s{sT0}, s{sT0}, s{sT1}")
    for c in range(8):
        e(f"  s_mov_b32 m0, s{sT1}")
        e("  s_nop 0")
        e(f"  buffer_load_dwordx4 v{vAddr}, {sr(rWS,4)}, s{sT0} offen lds")
        if c < 7:
            e(f"  s_add_u32 s{sT0}, s{sT0}, 16384")
            e(f"  s_add_u32 s{sT1}, s{sT1}, 16384")
    e(f"  v_and_b32 v{t0}, 31, v{vLane}")
    e(f"  v_and_b32 v{t1}, 27, v{t0}")
    e(f"  v_mov_b32 v{t2}, 0x3f803f80")
    e(f"  v_cmp_eq_u32 vcc, 16, v{t1}")
    e("  s_nop 1")
    e(f"  v_cndmask_b32 v{t2}, 0, v{t2}, vcc")
    for i in range(16):
        e(f"  v_mov_b32 v{vV+i}, v{t2}")
    e("  s_waitcnt vmcnt(7)")
    e("  s_barrier")

    def kread(buf, off):
        e(f"  ds_read_b128 {vr(vK+4*buf,4)}, v{vAddr} offset:{off}")
    def vread(buf, off):
        e(f"  s_mov_b64 exec, {sr(sMask,2)}")
        e(f"  ds_read_b128 {vr(vV+8*buf,4)}, v{vAddr} offset:{off+1024}")
        e(f"  ds_read_b128 {vr(vV+8*buf+4,4)}, v{vAddr} offset:{off+1024+256}")
        e("  s_mov_b64 exec, -1")
    def rowmax(src, dst, tmp):
        e(f"  v_max3_f32 v{dst}, v{src}, v{src+1}, v{src+2}")
        for i in range(3, 15, 2):
            e(f"  v_max3_f32 v{dst}, v{dst}, v{src+i}, v{src+i+1}")
        e(f"  v_max_f32 v{dst}, v{dst}, v{src+15}")
        e(f"  v_mov_b32 v{tmp}, v{dst}")
        e("  s_nop 1")
        e(f"  v_permlane32_swap_b32 v{dst}, v{tmp}")
        e(f"  v_max_f32 v{dst}, v{dst}, v{tmp}")

    kread(0, 0)
    kread(1, 2048)
    vread(0, 0)
    e("  s_waitcnt lgkmcnt(3)")
    e(f"  v_mfma_f32_32x32x16_bf16 {vr(vS,16)}, {vr(vK,4)}, {vr(vQ,4)}, 0")
    for i in range(16):
        e(f"  v_mov_b32 v{vO+i}, 0")
    e("  s_nop 3")
    rowmax(vS, t0, t1)
    e(f"  v_sub_f32 v{t0}, 0, v{t0}")
    for i in range(16):
        e(f"  v_mov_b32 v{vC+i}, v{t0}")
    e("  s_nop 1")
    e(f"  v_mfma_f32_32x32x16_bf16 {vr(vS,16)}, {vr(vK,4)}, {vr(vQ,4)}, {vr(vC,16)}")
    e(f"  s_mov_b32 s{sIt}, 0")
    e(".p2align 6")
    e("attn_loop:")
    for u in range(8):
        b = u % 2
        S = vS + 16 * b
        Sn = vS + 16 * (1 - b)
        if u == 4:
            e(f"  s_cmp_lg_u32 s{sIt}, 0")
            e("  s_cbranch_scc1 attn_nobar")
            e("  s_waitcnt vmcnt(0)")
            e("  s_barrier")
            e("attn_nobar:")
        e("  s_waitcnt lgkmcnt(2)")
        e(f"  v_mfma_f32_32x32x16_bf16 {vr(Sn,16)}, {vr(vK+4*(1-b),4)}, {vr(vQ,4)}, {vr(vC,16)}")
        kread(b, (u + 2) * 2048)
        vread(1 - b, (u + 1) * 2048)
        for i in range(16):
            e(f"  v_exp_f32 v{S+i}, v{S+i}")
        if u == 7:
            e(f"  v_cmp_ngt_f32 vcc, s{sThr}, v{vO+8}")
            e("  s_cbranch_vccnz attn_rare")
            e("attn_rare_ret:")
        for i in range(8):
            e(f"  v_cvt_pk_bf16_f32 v{vP+i}, v{S+2*i}, v{S+2*i+1}")
        e("  s_waitcnt lgkmcnt(3)")
        e(f"  v_mfma_f32_32x32x16_bf16 {vr(vO,16)}, {vr(vV+8*b,4)}, {vr(vP,4)}, {vr(vO,16)}")
        e(f"  v_mfma_f32_32x32x16_bf16 {vr(vO,16)}, {vr(vV+8*b+4,4)}, {vr(vP+4,4)}, {vr(vO,16)}")
    e(f"  v_add_u32 v{vAddr}, 16384, v{vAddr}")
    e(f"  s_add_u32 s{sIt}, s{sIt}, 1")
    e(f"  s_cmp_lt_u32 s{sIt}, 8")
    e("  s_cbranch_scc1 attn_loop")
    e("  s_waitcnt lgkmcnt(0)")
    e("  s_nop 15")
    e(f"  v_mov_b32 v{t1}, 0x207")
    e(f"  s_mov_b64 {sr(26,2)}, 0")
    for i in range(9):
        e(f"  v_cmp_class_f32 vcc, v{vO+i}, v{t1}")
        e(f"  s_or_b64 {sr(26,2)}, {sr(26,2)}, vcc")
    e(f"  s_cmp_lg_u64 {sr(26,2)}, 0")
    e(f"  s_cselect_b32 s{sT0}, 1, 0")
    e(f"  s_or_b32 s{sFlag}, s{sFlag}, s{sT0}")
    e(f"  s_cmp_lg_u32 s{sFlag}, 0")
    e("  s_cbranch_scc1 attn_fallback")
    e("attn_epilogue:")
    e(f"  v_rcp_f32 v{t0}, v{vO+8}")
    e("  s_nop 0")
    for i in range(8):
        e(f"  v_mul_f32 v{vO+i}, v{vO+i}, v{t0}")
    for i in range(4):
        e(f"  v_cvt_pk_bf16_f32 v{vP+i}, v{vO+2*i}, v{vO+2*i+1}")
    e(f"  s_lshl_b32 s{sT0}, s{sBr}, 6")
    e(f"  s_add_u32 s{sT0}, s{sT0}, s{sQt}")
    e(f"  s_lshl_b32 s{sT0}, s{sT0}, 5")
    e(f"  s_add_u32 s{sT0}, s{sT0}, s{sHead}")
    e(f"  s_lshl_b32 s{sT0}, s{sT0}, 10")
    e(f"  s_add_u32 s{sT0}, s{sT0}, {OF_OFF}")
    e(f"  v_lshlrev_b32 v{t1}, 4, v{vLane}")
    e(f"  buffer_store_dwordx4 {vr(vP,4)}, v{t1}, {sr(rWS,4)}, s{sT0} offen")
    e("attn_done:")
    e("  s_endpgm")

    S = vS + 16; Sn = vS
    e("attn_rare:")
    e(f"  v_cmp_ngt_f32 vcc, s{sInf}, v{vO+8}")
    e("  s_cbranch_vccz attn_rare_ok")
    e(f"  s_mov_b32 s{sFlag}, 1")
    e("  s_branch attn_rare_ret")
    e("attn_rare_ok:")
    e(f"  v_frexp_exp_i32_f32 v{t0}, v{vO+8}")
    e(f"  v_sub_u32 v{t1}, 0, v{t0}")
    e(f"  v_cvt_f32_i32 v{t0}, v{t0}")
    for i in range(9):
        e(f"  v_ldexp_f32 v{vO+i}, v{vO+i}, v{t1}")
    for i in range(16):
        e(f"  v_ldexp_f32 v{S+i}, v{S+i}, v{t1}")
    for i in range(16):
        e(f"  v_sub_f32 v{Sn+i}, v{Sn+i}, v{t0}")
    for i in range(16):
        e(f"  v_sub_f32 v{vC+i}, v{vC+i}, v{t0}")
    e("  s_branch attn_rare_ret")

    e("attn_fallback:")
    e(f"  v_lshlrev_b32 v{vAddr}, 4, v{vLane}")
    for i in range(16):
        e(f"  v_mov_b32 v{vO+i}, 0")
    e(f"  v_mov_b32 v{vG}, 0xff7fffff")
    e(f"  s_mov_b32 s{sIt}, 0")
    e("attn_fb_loop:")
    kread(0, 0)
    vread(0, 0)
    e("  s_waitcnt lgkmcnt(0)")
    e(f"  v_mfma_f32_32x32x16_bf16 {vr(vS,16)}, {vr(vK,4)}, {vr(vQ,4)}, 0")
    e("  s_nop 15")
    e("  s_nop 3")
    rowmax(vS, t0, t1)
    e(f"  v_max_f32 v{t0}, v{t0}, v{vG}             ; m_new")
    e(f"  v_sub_f32 v{t1}, v{vG}, v{t0}")
    e(f"  v_exp_f32 v{t1}, v{t1}                    ; alpha")
    e(f"  v_mov_b32 v{vG}, v{t0}")
    for i in range(16):
        e(f"  v_sub_f32 v{vS+i}, v{vS+i}, v{t0}")
    for i in range(16):
        e(f"  v_exp_f32 v{vS+i}, v{vS+i}")
    for i in range(9):
        e(f"  v_mul_f32 v{vO+i}, v{vO+i}, v{t1}")
    for i in range(8):
        e(f"  v_cvt_pk_bf16_f32 v{vP+i}, v{vS+2*i}, v{vS+2*i+1}")
    e("  s_nop 1")
    e(f"  v_mfma_f32_32x32x16_bf16 {vr(vO,16)}, {vr(vV,4)}, {vr(vP,4)}, {vr(vO,16)}")
    e(f"  v_mfma_f32_32x32x16_bf16 {vr(vO,16)}, {vr(vV+4,4)}, {vr(vP+4,4)}, {vr(vO,16)}")
    e(f"  v_add_u32 v{vAddr}, 2048, v{vAddr}")
    e("  s_nop 15")
    e("  s_nop 3")
    e(f"  s_add_u32 s{sIt}, s{sIt}, 1")
    e(f"  s_cmp_lt_u32 s{sIt}, 64")
    e("  s_cbranch_scc1 attn_fb_loop")
    e("  s_branch attn_epilogue")
    return kernel_desc("attn_kernel", NV, 32)

def gen_outp():
    kernel_start("outp_kernel")
    sWA, sWB, sOut, sWS = 4, 6, 8, 10
    rWA, rWB, rOut, rWS = 12, 16, 20, 24
    sWid, sNB, sTBk, sBr, sTT, sCT, sT0, sT1, sQt = 28, 29, 30, 31, 32, 33, 34, 35, 36
    vLane, vWoff, vLdsW, vA0, vA1, vG, t0, t1, t2, t3 = 1, 2, 3, 4, 5, 6, 7, 8, 9, 10
    vWF = 12
    vAcc = 20
    vB = 36
    vOF = 52
    NV = 180
    e("  s_cmp_ge_u32 s2, 256")
    e("  s_cbranch_scc1 outp_done")
    e("  s_load_dwordx2 s[4:5], s[0:1], 32")
    e("  s_load_dwordx2 s[6:7], s[0:1], 56")
    e("  s_load_dwordx2 s[8:9], s[0:1], 72")
    e("  s_load_dwordx2 s[10:11], s[0:1], 88")
    e(f"  v_and_b32 v{vLane}, 63, v0")
    e(f"  v_lshrrev_b32 v{t0}, 6, v0")
    e("  s_nop 0")
    e(f"  v_readfirstlane_b32 s{sWid}, v{t0}")
    e(f"  s_and_b32 s{sNB}, s2, 7")
    e(f"  s_lshr_b32 s{sTBk}, s2, 3")
    e(f"  s_lshr_b32 s{sBr}, s{sWid}, 2")
    e(f"  s_bfe_u32 s{sTT}, s{sWid}, 0x10001")
    e(f"  s_and_b32 s{sCT}, s{sWid}, 1")
    e(f"  s_lshl_b32 s{sQt}, s{sTBk}, 1")
    e(f"  s_add_u32 s{sQt}, s{sQt}, s{sTT}")
    e(f"  v_lshrrev_b32 v{t0}, 3, v0")
    e(f"  v_and_b32 v{t1}, 7, v0                    ; chunk")
    e(f"  v_bfe_u32 v{t2}, v0, 4, 1")
    e(f"  v_lshlrev_b32 v{t2}, 2, v{t2}")
    e(f"  v_xor_b32 v{t2}, v{t2}, v{t1}")
    e(f"  v_lshlrev_b32 v{t2}, 4, v{t2}")
    e(f"  v_lshl_add_u32 v{vLdsW}, v{t0}, 7, v{t2}")
    e(f"  v_lshlrev_b32 v{vWoff}, 10, v{t0}")
    e(f"  v_lshl_add_u32 v{vWoff}, v{t1}, 4, v{vWoff}")
    e("  s_waitcnt lgkmcnt(0)")
    srd(rWA, sWA, 512 * 1024)
    srd(rWB, sWB, 512 * 1024)
    srd(rOut, sOut, 2097152)
    srd(rWS, sWS, WS_BYTES)
    e(f"  s_lshl_b32 s{sT0}, s{sNB}, 7")
    stg = vOF + 64
    for i in range(8):
        e(f"  buffer_load_dwordx4 {vr(stg+4*i,4)}, v{vWoff}, {sr(rWA,4)}, s{sT0} offen")
        e(f"  buffer_load_dwordx4 {vr(stg+32+4*i,4)}, v{vWoff}, {sr(rWB,4)}, s{sT0} offen")
        if i < 7:
            e(f"  s_add_u32 s{sT0}, s{sT0}, 65536")
    e(f"  v_lshlrev_b32 v{t3}, 4, v{vLane}")
    e(f"  s_lshl_b32 s{sT1}, s{sBr}, 6")
    e(f"  s_add_u32 s{sT1}, s{sT1}, s{sQt}")
    e(f"  s_lshl_b32 s{sT1}, s{sT1}, 15")
    e(f"  s_add_u32 s{sT1}, s{sT1}, {OF_OFF}")
    vOa = 11
    e(f"  v_mov_b32 v{vOa}, v{t3}")
    for s in range(16):
        e(f"  buffer_load_dwordx4 {vr(vOF+4*s,4)}, v{vOa}, {sr(rWS,4)}, s{sT1} offen offset:{(s%4)*1024}")
        if s % 4 == 3:
            e(f"  s_add_u32 s{sT1}, s{sT1}, 4096")
    e(f"  v_and_b32 v{t0}, 31, v{vLane}")
    e(f"  v_lshlrev_b32 v{t0}, 2, v{t0}")
    e(f"  s_lshl_b32 s{sT0}, s{sQt}, 7")
    e(f"  s_add_u32 s{sT0}, s{sT0}, {G_OFF}")
    e(f"  buffer_load_dword v{vG}, v{t0}, {sr(rWS,4)}, s{sT0} offen")
    tr_addr(vA0, vA1, vLane, t0, t1, t2, t3, True)
    e(f"  s_lshl_b32 s{sT0}, s{sCT}, 6")
    e(f"  v_xor_b32 v{vA0}, s{sT0}, v{vA0}")
    e(f"  v_add_u32 v{vA1}, 32768, v{vA0}")
    e(f"  s_lshl_b32 s{sT0}, s{sBr}, 16")
    e(f"  v_add_u32 v{vA0}, s{sT0}, v{vA0}")
    e(f"  v_add_u32 v{vA1}, s{sT0}, v{vA1}")
    e(f"  v_add_u32 v{t0}, 65536, v{vLdsW}")
    e("  s_waitcnt vmcnt(17)")
    for i in range(8):
        e(f"  ds_write_b128 v{vLdsW}, {vr(stg+4*i,4)} offset:{i*8192}")
        e(f"  ds_write_b128 v{t0}, {vr(stg+32+4*i,4)} offset:{i*8192}")
    e("  s_waitcnt lgkmcnt(0)")
    for s in range(16, 32):
        e(f"  buffer_load_dwordx4 {vr(vOF+4*s,4)}, v{vOa}, {sr(rWS,4)}, s{sT1} offen offset:{(s%4)*1024}")
        if s % 4 == 3 and s < 31:
            e(f"  s_add_u32 s{sT1}, s{sT1}, 4096")
    e("  s_barrier")
    def wread(s):
        b = s % 2
        for u in range(2):
            e(f"  ds_read_b64_tr_b16 {vr(vWF+b*4+u*2,2)}, v{vA0 if s < 16 else vA1} offset:{(s%16)*2048+u*512}")
    wread(0)
    for s in range(32):
        if s < 31:
            wread(s + 1)
        vm = (32 - s) if s < 16 else (31 - s)
        e(f"  s_waitcnt vmcnt({vm}) lgkmcnt({2 if s < 31 else 0})")
        c = "0" if s == 0 else vr(vAcc, 16)
        e(f"  v_mfma_f32_32x32x16_bf16 {vr(vAcc,16)}, {vr(vWF+(s%2)*4,4)}, {vr(vOF+4*s,4)}, {c}")
    e("  s_nop 15")
    e(f"  s_and_b32 s{sT0}, s{sWid}, 3")
    e(f"  s_lshl_b32 s{sT0}, s{sT0}, 12")
    e(f"  s_add_u32 s{sT0}, s{sT0}, 131072")
    e(f"  v_lshlrev_b32 v{t0}, 4, v{vLane}")
    e(f"  v_add_u32 v{t0}, s{sT0}, v{t0}")
    e(f"  s_cmp_eq_u32 s{sBr}, 0")
    e("  s_cbranch_scc1 outp_a")
    for q in range(4):
        e(f"  ds_write_b128 v{t0}, {vr(vAcc+4*q,4)} offset:{q*1024}")
    e("  s_waitcnt lgkmcnt(0)")
    e("  s_barrier")
    e("  s_endpgm")
    e("outp_a:")
    e("  s_barrier")
    for q in range(4):
        e(f"  ds_read_b128 {vr(vB+4*q,4)}, v{t0} offset:{q*1024}")
    vOm = t1
    e(f"  v_sub_f32 v{vOm}, 1.0, v{vG}")
    e(f"  v_cvt_pk_bf16_f32 v{vOm}, v{vOm}, v{vOm}")
    e(f"  v_lshlrev_b32 v{vOm}, 16, v{vOm}")
    e(f"  s_mov_b32 s{sT1}, 0xffff0000")
    def round_pair(x0, x1, tmp):
        e(f"  v_cvt_pk_bf16_f32 v{tmp}, v{x0}, v{x1}")
        e(f"  v_lshlrev_b32 v{x0}, 16, v{tmp}")
        e(f"  v_and_b32 v{x1}, s{sT1}, v{tmp}")
    for i in range(0, 16, 2):
        round_pair(vAcc + i, vAcc + i + 1, t2)
        e(f"  v_mul_f32 v{vAcc+i}, v{vG}, v{vAcc+i}")
        e(f"  v_mul_f32 v{vAcc+i+1}, v{vG}, v{vAcc+i+1}")
        round_pair(vAcc + i, vAcc + i + 1, t2)
    e("  s_waitcnt lgkmcnt(0)")
    for i in range(0, 16, 2):
        round_pair(vB + i, vB + i + 1, t2)
        e(f"  v_mul_f32 v{vB+i}, v{vOm}, v{vB+i}")
        e(f"  v_mul_f32 v{vB+i+1}, v{vOm}, v{vB+i+1}")
        round_pair(vB + i, vB + i + 1, t2)
        e(f"  v_add_f32 v{vAcc+i}, v{vAcc+i}, v{vB+i}")
        e(f"  v_add_f32 v{vAcc+i+1}, v{vAcc+i+1}, v{vB+i+1}")
        e(f"  v_cvt_pk_bf16_f32 v{vOF+i//2}, v{vAcc+i}, v{vAcc+i+1}")
    e(f"  v_and_b32 v{t0}, 31, v{vLane}")
    e(f"  v_lshlrev_b32 v{t0}, 10, v{t0}")
    e(f"  v_lshrrev_b32 v{t2}, 5, v{vLane}")
    e(f"  v_lshl_add_u32 v{t0}, v{t2}, 5, v{t0}")
    e(f"  s_lshl_b32 s{sT0}, s{sQt}, 15")
    e(f"  s_lshl_b32 s{sT1}, s{sNB}, 7")
    e(f"  s_add_u32 s{sT0}, s{sT0}, s{sT1}")
    e(f"  s_lshl_b32 s{sT1}, s{sCT}, 6")
    e(f"  s_add_u32 s{sT0}, s{sT0}, s{sT1}")
    e(f"  buffer_store_dwordx4 {vr(vOF,4)}, v{t0}, {sr(rOut,4)}, s{sT0} offen")
    e(f"  buffer_store_dwordx4 {vr(vOF+4,4)}, v{t0}, {sr(rOut,4)}, s{sT0} offen offset:16")
    e("outp_done:")
    e("  s_endpgm")
    return kernel_desc("outp_kernel", NV, 40)

descs = []
descs.append(gen_proj())
descs.append(gen_attn())
descs.append(gen_outp())
text = HEADER + "\n".join(L) + "\n" + '.section .rodata,"a"\n' + "".join(descs)
open(OUT, "w").write(text)
print("wrote", OUT, len(text), "bytes")
```

```python
import sys, struct, os
DBG = os.environ.get("DBG","")

OUT = sys.argv[1] if len(sys.argv) > 1 else "gated_mix__grouped_kv_mqa__mha_block__prompt.s"

def f32bits(x):
    return struct.unpack("<I", struct.pack("<f", x))[0]

QF_OFF = 0
KV_OFF = 4 << 20
OF_OFF = 12 << 20
G_OFF  = 16 << 20
WS_BYTES = 268435456
SCALE = 0.25 * 1.4426950408889634

L = []
def e(s=""):
    L.append(s)
def vr(b, n=1):
    return f"v{b}" if n == 1 else f"v[{b}:{b+n-1}]"
def sr(b, n=1):
    return f"s{b}" if n == 1 else f"s[{b}:{b+n-1}]"

def srd(dst, base, nbytes):
    e(f"  s_mov_b32 s{dst}, s{base}")
    e(f"  s_and_b32 s{dst+1}, s{base+1}, 0xffff")
    e(f"  s_mov_b32 s{dst+2}, {nbytes}")
    e(f"  s_mov_b32 s{dst+3}, 0x00020000")

HEADER = """; Kernarg layout for this problem (96 bytes, ptrs only, base s[0:1]):
; @launch kernel=proj_kernel grid=(256,1,1) block=(512,1,1) lds=147456
; @launch kernel=attn_kernel grid=(256,1,1) block=(1024,1,1) lds=135168
; @launch kernel=outp_kernel grid=(256,1,1) block=(512,1,1) lds=147456
.amdgcn_target "amdgcn-amd-amdhsa--gfx950"
.text
"""

def kernel_start(name):
    e(f".globl {name}")
    e(".p2align 8")
    e(f".type {name},@function")
    e(f"{name}:")

def kernel_desc(name, nvgpr, nsgpr):
    acc = (nvgpr + 3) // 4 * 4
    return f""".p2align 6
.amdhsa_kernel {name}
  .amdhsa_next_free_vgpr {nvgpr}
  .amdhsa_next_free_sgpr {nsgpr}
  .amdhsa_accum_offset {acc}
  .amdhsa_group_segment_fixed_size 0
  .amdhsa_kernarg_size 96
  .amdhsa_user_sgpr_count 2
  .amdhsa_user_sgpr_kernarg_segment_ptr 1
  .amdhsa_system_sgpr_workgroup_id_x 1
.end_amdhsa_kernel
"""

def tr_addr(vA0, vA1, vlane, t0, t1, t2, t3, perm):
    e(f"  v_lshrrev_b32 v{t0}, 4, v{vlane}          ; g")
    e(f"  v_and_b32 v{t1}, 1, v{t0}                 ; g%2")
    e(f"  v_lshrrev_b32 v{t0}, 1, v{t0}             ; h")
    e(f"  v_bfe_u32 v{t2}, v{vlane}, 2, 2           ; r")
    e(f"  v_lshl_add_u32 v{t0}, v{t0}, 3, v{t2}     ; 8h + r")
    e(f"  v_lshlrev_b32 v{t0}, 7, v{t0}             ; *128")
    e(f"  v_and_b32 v{t3}, 3, v{vlane}              ; c")
    e(f"  v_lshl_add_u32 v{t1}, v{t1}, 2, v{t3}     ; mc=(g%2)*4+c")
    if perm:
        e(f"  v_and_b32 v{t3}, 1, v{t1}")
        e(f"  v_lshrrev_b32 v{t1}, 1, v{t1}")
        e(f"  v_lshl_add_u32 v{t1}, v{t3}, 2, v{t1}     ; nc = 4*(mc%2)+mc/2")
    e(f"  v_and_b32 v{t3}, 1, v{t1}")
    e(f"  v_lshl_add_u32 v{t0}, v{t3}, 3, v{t0}     ; + (nc%2)*8")
    e(f"  v_lshrrev_b32 v{t1}, 1, v{t1}")
    e(f"  v_lshrrev_b32 v{t2}, 1, v{t2}             ; (r>>1)&1")
    e(f"  v_lshlrev_b32 v{t2}, 2, v{t2}")
    e(f"  v_xor_b32 v{t1}, v{t1}, v{t2}")
    e(f"  v_lshl_add_u32 v{vA0}, v{t1}, 4, v{t0}")
    e(f"  v_xor_b32 v{vA1}, 64, v{vA0}")

def gen_proj():
    kernel_start("proj_kernel")
    STG = 36864
    sX, sWQ, sWK, sWV, sWQKV, sWS = 4, 6, 8, 10, 12, 16
    rX, rW, rWS, rS = 20, 24, 28, 32
    sNB, sTB, sT0, sT1, sT2, sPitch, sCol, sWid = 40, 41, 42, 43, 44, 45, 46, 47
    sEx = 48
    sOff, sTT, sCG, sSpec, sXo, sWo, sM, sQt = 50, 51, 52, 53, 54, 55, 56, 57
    sC, sSo, sMS = 58, 59, 60
    sSMask = 36
    e("  s_cmp_ge_u32 s2, 256")
    e("  s_cbranch_scc1 proj_done")
    e("  s_load_dwordx4 s[4:7], s[0:1], 0")
    e("  s_load_dwordx4 s[8:11], s[0:1], 16")
    e("  s_load_dwordx2 s[12:13], s[0:1], 48")
    e("  s_load_dwordx2 s[16:17], s[0:1], 88")
    if "p" in DBG:
        e("  s_load_dwordx2 s[80:81], s[0:1], 80")
        e("  s_memtime s[64:65]")
    e(f"  s_and_b32 s{sT0}, s2, 3")
    e(f"  s_lshl_b32 s{sT0}, s{sT0}, 2")
    e(f"  s_bfe_u32 s{sT1}, s2, 0x20003")
    e(f"  s_add_u32 s{sTB}, s{sT0}, s{sT1}")
    e(f"  s_bfe_u32 s{sT0}, s2, 0x10002")
    e(f"  s_lshl_b32 s{sT0}, s{sT0}, 3")
    e(f"  s_lshr_b32 s{sT1}, s2, 5")
    e(f"  s_add_u32 s{sNB}, s{sT0}, s{sT1}")
    vLane = 1; vXo0 = 2; vXo1 = 3; vWo = 4; vSt = 5; vSo = 6
    t0, t1, t2, t3 = 8, 9, 10, 11
    vXA = 12
    vWA = 20
    vSA = 24
    vXF = 28
    vWF = 44
    vSF = 76
    vAcc = 156
    vOut = 28
    NV = 204
    e(f"  v_and_b32 v{vLane}, 63, v0")
    e(f"  v_lshrrev_b32 v{t0}, 6, v0")
    e("  s_nop 0")
    e(f"  v_readfirstlane_b32 s{sWid}, v{t0}")
    e(f"  s_sub_u32 s{sSpec}, s{sNB}, s{sTB}")
    e(f"  s_and_b32 s{sSpec}, s{sSpec}, 15")
    e(f"  s_and_b32 s{sTT}, s{sWid}, 3")
    e(f"  s_lshr_b32 s{sCG}, s{sWid}, 2")
    e(f"  s_lshl_b32 s{sQt}, s{sTB}, 2")
    e(f"  s_add_u32 s{sQt}, s{sQt}, s{sTT}")
    e(f"  v_lshrrev_b32 v{t0}, 3, v{vLane}          ; l/8")
    e(f"  v_lshrrev_b32 v{t1}, 4, v{vLane}          ; l/16")
    e(f"  v_and_b32 v{t2}, 7, v{vLane}")
    if "z" not in DBG:
        e(f"  v_xor_b32 v{t2}, v{t2}, v{t1}")
    e(f"  v_lshlrev_b32 v{t2}, 4, v{t2}")
    e(f"  v_lshl_add_u32 v{vXo0}, v{t0}, 10, v{t2}")
    e(f"  v_xor_b32 v{vXo1}, 64, v{vXo0}")
    e(f"  v_add_u32 v{vXo1}, 8192, v{vXo1}")
    e(f"  v_lshrrev_b32 v{t0}, 2, v{vLane}")
    e(f"  v_and_b32 v{t2}, 1, v{vLane}")
    e(f"  v_lshlrev_b32 v{t2}, 4, v{t2}")
    e(f"  v_lshl_add_u32 v{vSo}, v{t0}, 5, v{t2}")
    e(f"  v_and_b32 v{t2}, 15, v{vLane}")
    e(f"  v_lshlrev_b32 v{t3}, 2, v{t1}")
    if "z" not in DBG:
        e(f"  v_xor_b32 v{t2}, v{t2}, v{t3}")
    e(f"  v_lshlrev_b32 v{t2}, 4, v{t2}")
    e("  s_waitcnt lgkmcnt(0)")
    if "p" in DBG:
        e("  s_memtime s[78:79]")
        e("  s_waitcnt lgkmcnt(0)")
    srd(rX, sX, 2097152)
    srd(rWS, sWS, WS_BYTES)
    e(f"  s_cmp_lt_u32 s{sNB}, 4")
    e("  s_cbranch_scc1 proj_wq")
    srd(rW, sWQKV, 512 * 3072)
    e(f"  s_sub_u32 s{sCol}, s{sNB}, 4")
    e(f"  s_lshl_b32 s{sCol}, s{sCol}, 8")
    e(f"  s_mov_b32 s{sPitch}, 3072")
    e("  s_branch proj_wcommon")
    e("proj_wq:")
    srd(rW, sWQ, 512 * 1024)
    e(f"  s_lshl_b32 s{sCol}, s{sNB}, 8")
    e(f"  s_mov_b32 s{sPitch}, 1024")
    e("proj_wcommon:")
    e(f"  v_mul_lo_u32 v{vWo}, v{t1}, s{sPitch}")
    e(f"  v_add_u32 v{vWo}, v{vWo}, v{t2}")
    e(f"  s_lshl_b32 s{sXo}, s{sTB}, 17")
    e(f"  s_lshl_b32 s{sT0}, s{sWid}, 14")
    e(f"  s_add_u32 s{sXo}, s{sXo}, s{sT0}")
    e(f"  s_lshl_b32 s{sT0}, s{sWid}, 3")
    e(f"  s_mul_i32 s{sWo}, s{sT0}, s{sPitch}")
    e(f"  s_add_u32 s{sWo}, s{sWo}, s{sCol}")
    e(f"  s_lshl_b32 s{sM}, s{sWid}, 11")
    e(f"  s_lshl_b32 s{sT2}, s{sPitch}, 2            ; 4*pitch")
    e(f"  s_lshl_b32 s{sPitch}, s{sPitch}, 6")
    e(f"  s_bfe_u32 s{sC}, s2, 0x30003")
    e(f"  s_bitcmp1_b32 s{sWid}, 0")
    e(f"  s_cselect_b32 s{sT0}, s{sWV}, s{sWK}")
    e(f"  s_cselect_b32 s{sT1}, s{sWV+1}, s{sWK+1}")
    e(f"  s_mov_b32 s{sSMask}, 0x33333333")
    e(f"  s_cselect_b32 s{sSMask}, 0xcccccccc, s{sSMask}")
    e(f"  s_mov_b32 s{sSMask+1}, s{sSMask}")
    srd(rS, sT0, 512 * 32)
    e(f"  s_lshr_b32 s{sT0}, s{sWid}, 1")
    e(f"  s_lshl_b32 s{sSo}, s{sT0}, 9               ; 16 rows * 32B")
    e(f"  s_lshl_b32 s{sMS}, s{sT0}, 10")

    def dma_piece(c, spec, i):
        st = (c % 4) * STG
        if i == 0:
            e(f"  s_lshl_b32 s{sT0}, s{sC}, 7")
            e(f"  s_add_u32 s{sT0}, s{sT0}, s{sXo}")
            e(f"  s_add_u32 m0, s{sM}, {st}")
            e(f"  s_mul_i32 s{sT1}, s{sC}, s{sPitch}")
            e(f"  buffer_load_dwordx4 v{vXo0}, {sr(rX,4)}, s{sT0} offen lds")
        elif i == 1:
            e(f"  s_add_u32 m0, s{sM}, {st+1024}")
            e(f"  s_add_u32 s{sT1}, s{sT1}, s{sWo}")
            e(f"  buffer_load_dwordx4 v{vXo1}, {sr(rX,4)}, s{sT0} offen lds")
        elif i == 2:
            e(f"  s_add_u32 m0, s{sM}, {st+16384}")
            e(f"  s_add_u32 s{sT0}, s{sT1}, s{sT2}")
            e(f"  buffer_load_dwordx4 v{vWo}, {sr(rW,4)}, s{sT1} offen lds")
        else:
            e(f"  s_add_u32 m0, s{sM}, {st+16384+1024}")
            e(f"  s_lshl_b32 s{sT1}, s{sC}, 11")
            e(f"  buffer_load_dwordx4 v{vWo}, {sr(rW,4)}, s{sT0} offen lds")
            if spec:
                e(f"  s_add_u32 m0, s{sMS}, {st+32768}")
                e(f"  s_add_u32 s{sT1}, s{sT1}, s{sSo}")
                e(f"  s_mov_b64 exec, {sr(sSMask,2)}")
                e(f"  buffer_load_dwordx4 v{vSo}, {sr(rS,4)}, s{sT1} offen lds")
                e("  s_mov_b64 exec, -1")
            e(f"  s_add_u32 s{sC}, s{sC}, 1")
            e(f"  s_and_b32 s{sC}, s{sC}, 7")
    def dma(c, spec):
        for i in range(4):
            dma_piece(c, spec, i)

    def addr_setup():
        e(f"  v_and_b32 v{t0}, 31, v{vLane}")
        e(f"  v_lshrrev_b32 v{t1}, 5, v{vLane}          ; h")
        e(f"  v_bfe_u32 v{t2}, v{vLane}, 1, 3           ; (row>>1)&7")
        e(f"  v_xor_b32 v{t1}, v{t1}, v{t2}")
        e(f"  v_lshlrev_b32 v{t1}, 4, v{t1}")
        e(f"  v_lshl_add_u32 v{t0}, v{t0}, 7, v{t1}")
        e(f"  s_lshl_b32 s{sOff}, s{sTT}, 12")
        e(f"  v_add_u32 v{t0}, s{sOff}, v{t0}")
        for sp in range(4):
            e(f"  v_xor_b32 v{vXA+sp}, {sp*32}, v{t0}")
            e(f"  v_add_u32 v{vXA+4+sp}, {2*STG}, v{vXA+sp}")
        e(f"  v_lshrrev_b32 v{t0}, 5, v{vLane}          ; h")
        e(f"  v_bfe_u32 v{t1}, v{vLane}, 2, 2           ; r")
        e(f"  v_lshl_add_u32 v{t0}, v{t0}, 3, v{t1}     ; 8h+r")
        e(f"  v_bfe_u32 v{t2}, v{vLane}, 4, 1           ; g%2")
        e(f"  v_and_b32 v{t3}, 3, v{vLane}              ; c")
        e(f"  v_lshl_add_u32 v{t2}, v{t2}, 2, v{t3}     ; nc")
        e(f"  v_lshlrev_b32 v{t2}, 3, v{t2}             ; nc*8")
        e(f"  v_lshl_add_u32 v{vSA}, v{t0}, 6, v{t2}")
        e(f"  v_add_u32 v{vSA}, 32768, v{vSA}")
        e(f"  v_add_u32 v{vSA+1}, {2*STG}, v{vSA}")
        e(f"  v_lshl_add_u32 v{t0}, v{t0}, 8, v{t2}     ; k*256 + nc*8")
        e(f"  s_lshl_b32 s{sOff}, s{sCG}, 1")
        e(f"  v_xor_b32 v{t1}, s{sOff}, v{t1}           ; (2cg) ^ r")
        e(f"  v_lshl_add_u32 v{t0}, v{t1}, 6, v{t0}")
        e(f"  v_add_u32 v{vWA}, 16384, v{t0}")
        e(f"  v_xor_b32 v{vWA+1}, 64, v{vWA}")
        e(f"  v_add_u32 v{vWA+2}, {2*STG}, v{vWA}")
        e(f"  v_add_u32 v{vWA+3}, {2*STG}, v{vWA+1}")

    def reads(c, sp, spec):
        st = c % 4
        so = (st % 2) * STG
        hi = st // 2
        rs = 64 * (c % 2)
        e(f"  ds_read_b128 {vr(vXF+rs+4*sp,4)}, v{vXA+sp+4*hi} offset:{so}")
        for ct in range(2):
            for u in range(2):
                e(f"  ds_read_b64_tr_b16 {vr(vWF+rs+sp*8+ct*4+u*2,2)}, v{vWA+2*hi+ct} offset:{so+(16*sp+4*u)*256}")
        if spec:
            for u in range(2):
                e(f"  ds_read_b64_tr_b16 {vr(vSF+rs+sp*4+u*2,2)}, v{vSA+hi} offset:{so+(16*sp+4*u)*64}")

    def mainloop(orient, spec, dspec):
        n = 5 if dspec else 4
        for c in range(4):
            dma(c, dspec)
        addr_setup()
        e(f"  s_waitcnt vmcnt({3*n})")
        e("  s_barrier")
        if "p" in DBG:
            e(f"  s_memtime s[66:67]")
            e("  s_waitcnt lgkmcnt(0)")
        for sp in range(4):
            reads(0, sp, spec)
        for c in range(8):
            if c < 7:
                ng = min(c + 3, 7) - (c + 1)
                e(f"  s_waitcnt vmcnt({ng*n}) lgkmcnt(0)")
                e("  s_barrier")
                if "p" in DBG and c in (0,3,6):
                    e(f"  s_memtime s[{68+2*(0,3,6).index(c)}:{69+2*(0,3,6).index(c)}]")
                    e("  s_waitcnt lgkmcnt(0)")
            else:
                e("  s_waitcnt lgkmcnt(0)")
            rs = 64 * (c % 2)
            for sp in range(4):
                if c < 7:
                    reads(c + 1, sp, spec)
                xf = vXF + rs + 4 * sp
                first = (c == 0 and sp == 0)
                for ct in range(2):
                    wf = vWF + rs + sp * 8 + ct * 4
                    acc = vAcc + 16 * ct
                    cc = "0" if first else vr(acc, 16)
                    if orient == 'T':
                        e(f"  v_mfma_f32_32x32x16_bf16 {vr(acc,16)}, {vr(wf,4)}, {vr(xf,4)}, {cc}")
                    else:
                        e(f"  v_mfma_f32_32x32x16_bf16 {vr(acc,16)}, {vr(xf,4)}, {vr(wf,4)}, {cc}")
                if spec:
                    acc = vAcc + 32
                    sf = vSF + rs + 4 * sp
                    cc = "0" if first else vr(acc, 16)
                    if spec == 'T':
                        e(f"  v_mfma_f32_32x32x16_bf16 {vr(acc,16)}, {vr(sf,4)}, {vr(xf,4)}, {cc}")
                    else:
                        e(f"  v_mfma_f32_32x32x16_bf16 {vr(acc,16)}, {vr(xf,4)}, {vr(sf,4)}, {cc}")
                if c + 4 <= 7:
                    dma_piece(c + 4, dspec, sp)
        e("  s_nop 15")
        if "p" in DBG:
            e("  s_memtime s[74:75]")
            e("  s_waitcnt lgkmcnt(0)")

    def v_store_addr():
        e(f"  v_and_b32 v{t0}, 3, v{vLane}")
        e(f"  v_and_b32 v{t1}, 4, v{vLane}")
        e(f"  v_lshl_or_b32 v{t0}, v{t1}, 1, v{t0}")
        e(f"  v_and_b32 v{t1}, 8, v{vLane}")
        e(f"  v_lshrrev_b32 v{t1}, 1, v{t1}")
        e(f"  v_or_b32 v{t0}, v{t0}, v{t1}              ; m")
        e(f"  v_lshlrev_b32 v{t0}, 4, v{t0}")
        e(f"  v_lshrrev_b32 v{t1}, 5, v{vLane}          ; half")
        e(f"  v_lshl_add_u32 v{t0}, v{t1}, 9, v{t0}")
        e(f"  v_bfe_u32 v{t1}, v{vLane}, 4, 1           ; subhead")
        e(f"  v_lshl_add_u32 v{vSt}, v{t1}, 17, v{t0}")

    def spec_epilogue(kind):
        A = vAcc + 32
        e(f"  s_lshl_b32 s{sOff}, s{sQt}, 11")
        if kind == 'T':
            e(f"  s_add_u32 s{sOff}, s{sOff}, {KV_OFF + 32*131072}")
            e(f"  v_lshlrev_b32 v{t2}, 4, v{vLane}")
            for j in range(4):
                e(f"  v_cvt_pk_bf16_f32 v{vOut+16+j}, v{A+2*j}, v{A+2*j+1}")
            e(f"  buffer_store_dwordx4 {vr(vOut+16,4)}, v{t2}, {sr(rWS,4)}, s{sOff} offen")
        else:
            e(f"  s_add_u32 s{sOff}, s{sOff}, {KV_OFF + 31*131072}")
            v_store_addr()
            for j in range(8):
                e(f"  v_cvt_pk_bf16_f32 v{vOut+16+j}, v{A+2*j}, v{A+2*j+1}")
            e(f"  v_and_b32 v{t0}, 16, v{vLane}")
            e(f"  v_cmp_ne_u32 vcc, 0, v{t0}")
            e(f"  s_and_saveexec_b64 {sr(sEx,2)}, vcc")
            for j in range(2):
                e(f"  buffer_store_dwordx4 {vr(vOut+16+j*4,4)}, v{vSt}, {sr(rWS,4)}, s{sOff} offen offset:{1024+j*256}")
            e(f"  s_mov_b64 exec, {sr(sEx,2)}")

    def variants(o):
        e(f"  s_cmp_ge_u32 s{sSpec}, 8")
        e(f"  s_cbranch_scc1 proj_{o}_plain")
        e(f"  s_cmp_lg_u32 s{sSpec}, s{sWid}")
        e(f"  s_cbranch_scc1 proj_{o}_none")
        e(f"  s_cmp_eq_u32 s{sCG}, 0")
        e(f"  s_cbranch_scc1 proj_{o}_T")
        e(f"proj_{o}_N:")
        mainloop(o, 'N', True)
        spec_epilogue('N')
        e(f"  s_branch proj_{o}_epi")
        e(f"proj_{o}_T:")
        mainloop(o, 'T', True)
        spec_epilogue('T')
        e(f"  s_branch proj_{o}_epi")
        e(f"proj_{o}_none:")
        mainloop(o, None, True)
        e(f"  s_branch proj_{o}_epi")
        e(f"proj_{o}_plain:")
        mainloop(o, None, False)
    e(f"  s_cmp_ge_u32 s{sNB}, 12")
    e("  s_cbranch_scc1 proj_v_sel")
    variants('T')
    e("proj_T_epi:")
    e(f"  s_mov_b32 s{sT1}, {f32bits(SCALE)}")
    e(f"  s_cmp_lt_u32 s{sNB}, 8")
    e(f"  s_cselect_b32 s{sT1}, s{sT1}, 1.0")
    e(f"  s_lshl_b32 s{sT2}, s{sNB}, 3")
    e(f"  s_lshl_b32 s{sT0}, s{sCG}, 2")
    e(f"  s_add_u32 s{sT2}, s{sT2}, s{sT0}")
    e(f"  s_lshl_b32 s{sT2}, s{sT2}, 6")
    e(f"  s_add_u32 s{sT2}, s{sT2}, s{sQt}")
    e(f"  s_lshl_b32 s{sOff}, s{sT2}, 10             ; Q dest")
    e(f"  s_mov_b32 s{sCol}, 65536")
    e(f"  s_cmp_lt_u32 s{sNB}, 8")
    e(f"  s_cbranch_scc1 proj_qk_store")
    e(f"  s_sub_u32 s{sT2}, s{sT2}, {64*64}")
    e(f"  s_lshl_b32 s{sOff}, s{sT2}, 11")
    e(f"  s_add_u32 s{sOff}, s{sOff}, {KV_OFF}")
    e(f"  s_mov_b32 s{sCol}, 131072")
    e("proj_qk_store:")
    e(f"  v_lshlrev_b32 v{vSt}, 4, v{vLane}")
    for hh in range(4):
        for i in range(8):
            e(f"  v_mul_f32 v{vAcc+hh*8+i}, s{sT1}, v{vAcc+hh*8+i}")
        for j in range(4):
            e(f"  v_cvt_pk_bf16_f32 v{vOut+hh*4+j}, v{vAcc+hh*8+2*j}, v{vAcc+hh*8+2*j+1}")
        e(f"  buffer_store_dwordx4 {vr(vOut+hh*4,4)}, v{vSt}, {sr(rWS,4)}, s{sOff} offen")
        if hh < 3:
            e(f"  s_add_u32 s{sOff}, s{sOff}, s{sCol}")
    if "p" in DBG:
        e("  s_waitcnt vmcnt(0)")
        e("  s_memtime s[76:77]")
        e("  s_waitcnt lgkmcnt(0)")
        for i in range(7):
            e(f"  s_sub_u32 s{66+2*i}, s{66+2*i}, s64")
            e(f"  v_mov_b32 v{4+i}, s{66+2*i}")
        e("  v_mov_b32 v11, 0")
        srd(84, 80, 256)
        e(f"  s_lshl_b32 s64, s{sWid}, 5")
        e("  v_mov_b32 v12, s64")
        e("  s_cmp_lg_u32 s2, 40")
        e("  s_cbranch_scc1 proj_done")
        e("  buffer_store_dwordx4 v[4:7], v12, s[84:87], 0 offen")
        e("  buffer_store_dwordx4 v[8:11], v12, s[84:87], 0 offen offset:16")
    e("  s_endpgm")
    e("proj_v_sel:")
    variants('N')
    e("proj_N_epi:")
    v_store_addr()
    e(f"  s_sub_u32 s{sT2}, s{sNB}, 12")
    e(f"  s_lshl_b32 s{sT2}, s{sT2}, 3")
    e(f"  s_lshl_b32 s{sT0}, s{sCG}, 2")
    e(f"  s_add_u32 s{sT2}, s{sT2}, s{sT0}")
    e(f"  s_lshl_b32 s{sT2}, s{sT2}, 6")
    e(f"  s_add_u32 s{sT2}, s{sT2}, s{sQt}")
    e(f"  s_lshl_b32 s{sOff}, s{sT2}, 11")
    e(f"  s_add_u32 s{sOff}, s{sOff}, {KV_OFF+1024}")
    for ct in range(2):
        for j in range(8):
            e(f"  v_cvt_pk_bf16_f32 v{vOut+ct*8+j}, v{vAcc+ct*16+2*j}, v{vAcc+ct*16+2*j+1}")
        for j in range(2):
            e(f"  buffer_store_dwordx4 {vr(vOut+ct*8+j*4,4)}, v{vSt}, {sr(rWS,4)}, s{sOff} offen offset:{j*256}")
        if ct == 0:
            e(f"  s_add_u32 s{sOff}, s{sOff}, {2*131072}")
    e("proj_done:")
    e("  s_endpgm")
    return kernel_desc("proj_kernel", NV, 64 if "p" not in DBG else 96)

def gen_attn():
    kernel_start("attn_kernel")
    sWS = 4; rWS = 8
    sWid, sHB, sBr, sHead, sQt, sT0, sT1, sIt, sThr, sInf, sFlag, sOff = 12, 13, 14, 15, 16, 17, 18, 19, 20, 21, 22, 23
    sMask = 24
    vLane, vAddr, vG, t0, t1, t2, t3 = 1, 2, 3, 4, 5, 6, 7
    vQ = 8
    vK = 12
    vV = 20
    vP = 36
    vO = 44
    vC = 60
    vS = 76
    NV = 108
    e("  s_cmp_ge_u32 s2, 256")
    e("  s_cbranch_scc1 attn_done")
    e("  s_load_dwordx2 s[4:5], s[0:1], 88")
    e("  s_load_dwordx2 s[6:7], s[0:1], 0")
    e("  s_load_dwordx2 s[28:29], s[0:1], 64")
    if "t" in DBG:
        e("  s_load_dwordx2 s[40:41], s[0:1], 80")
        e("  s_memtime s[32:33]")
        e("  s_memrealtime s[34:35]")
    e(f"  v_and_b32 v{vLane}, 63, v0")
    e(f"  v_lshrrev_b32 v{t0}, 6, v0")
    e("  s_nop 0")
    e(f"  v_readfirstlane_b32 s{sWid}, v{t0}")
    e(f"  s_and_b32 s{sT0}, s2, 7")
    e(f"  s_lshr_b32 s{sT1}, s2, 3")
    e(f"  s_lshl_b32 s{sT0}, s{sT0}, 3")
    e(f"  s_lshr_b32 s{sHB}, s{sT1}, 2")
    e(f"  s_add_u32 s{sHB}, s{sHB}, s{sT0}           ; hb64")
    e(f"  s_and_b32 s{sT1}, s{sT1}, 3")
    e(f"  s_lshl_b32 s{sQt}, s{sT1}, 4")
    e(f"  s_add_u32 s{sQt}, s{sQt}, s{sWid}          ; qtile")
    e(f"  s_lshr_b32 s{sBr}, s{sHB}, 5")
    e(f"  s_and_b32 s{sHead}, s{sHB}, 31")
    e("  s_mov_b32 s24, 0x0000ffff")
    e("  s_mov_b32 s25, 0x0000ffff")
    e(f"  s_mov_b32 s{sThr}, {hex(f32bits(2.0**24))}")
    e(f"  s_mov_b32 s{sInf}, 0x7f800000")
    e(f"  s_mov_b32 s{sFlag}, 0")
    e(f"  v_lshlrev_b32 v{vAddr}, 4, v{vLane}        ; lane*16")
    e("  s_waitcnt lgkmcnt(0)")
    srd(rWS, sWS, WS_BYTES)
    rXg, rGw = 48, 52
    srd(rXg, 6, 2097152)
    srd(rGw, 28, 1024)
    e(f"  s_lshl_b32 s{sOff}, s2, 3")
    e(f"  s_add_u32 s{sOff}, s{sOff}, s{sWid}         ; token")
    e(f"  s_cmp_ge_u32 s{sWid}, 8")
    e("  s_cbranch_scc1 attn_nogate0")
    e(f"  s_lshl_b32 s{sT0}, s{sOff}, 10")
    e(f"  buffer_load_dwordx4 {vr(vS,4)}, v{vAddr}, {sr(rXg,4)}, s{sT0} offen")
    e(f"  buffer_load_dwordx4 {vr(vS+4,4)}, v{vAddr}, {sr(rGw,4)}, 0 offen")
    e("attn_nogate0:")
    e(f"  s_lshl_b32 s{sT0}, s{sHB}, 6")
    e(f"  s_add_u32 s{sT0}, s{sT0}, s{sQt}")
    e(f"  s_lshl_b32 s{sT0}, s{sT0}, 10")
    e(f"  buffer_load_dwordx4 {vr(vQ,4)}, v{vAddr}, {sr(rWS,4)}, s{sT0} offen")
    e(f"  s_cmp_eq_u32 s{sBr}, 1")
    e(f"  s_cselect_b32 s{sT0}, s{sHead}, 32")
    e(f"  s_lshl_b32 s{sT0}, s{sT0}, 17")
    e(f"  s_add_u32 s{sT0}, s{sT0}, {KV_OFF}")
    e(f"  s_lshl_b32 s{sT1}, s{sWid}, 10")
    e(f"  s_add_u32 s{sT0}, s{sT0}, s{sT1}")
    for c in range(8):
        e(f"  s_mov_b32 m0, s{sT1}")
        e("  s_nop 0")
        e(f"  buffer_load_dwordx4 v{vAddr}, {sr(rWS,4)}, s{sT0} offen lds")
        if c < 7:
            e(f"  s_add_u32 s{sT0}, s{sT0}, 16384")
            e(f"  s_add_u32 s{sT1}, s{sT1}, 16384")
    e(f"  v_and_b32 v{t0}, 31, v{vLane}")
    e(f"  v_and_b32 v{t1}, 27, v{t0}")
    e(f"  v_mov_b32 v{t2}, 0x3f803f80")
    e(f"  v_cmp_eq_u32 vcc, 16, v{t1}")
    e("  s_nop 1")
    e(f"  v_cndmask_b32 v{t2}, 0, v{t2}, vcc")
    for i in range(16):
        e(f"  v_mov_b32 v{vV+i}, v{t2}")
    e(f"  s_cmp_ge_u32 s{sWid}, 8")
    e("  s_cbranch_scc1 attn_nogate1")
    e("  s_waitcnt vmcnt(9)")
    e(f"  v_mov_b32 v{t0}, 0")
    for i in range(4):
        e(f"  v_dot2_f32_bf16 v{t0}, v{vS+i}, v{vS+4+i}, v{t0}")
    e("  s_nop 2")
    for m in (0x041F, 0x081F, 0x101F, 0x201F, 0x401F):
        e(f"  ds_swizzle_b32 v{t1}, v{t0} offset:{hex(m)}")
        e("  s_waitcnt lgkmcnt(0)")
        e(f"  v_add_f32 v{t0}, v{t0}, v{t1}")
    e(f"  v_mov_b32 v{t1}, v{t0}")
    e("  s_nop 1")
    e(f"  v_permlane32_swap_b32 v{t0}, v{t1}")
    e(f"  v_add_f32 v{t0}, v{t0}, v{t1}")
    e(f"  v_cvt_pk_bf16_f32 v{t0}, v{t0}, v{t0}")
    e(f"  v_lshlrev_b32 v{t0}, 16, v{t0}")
    e(f"  v_mul_f32 v{t0}, {hex(f32bits(-1.4426950408889634))}, v{t0}")
    e(f"  v_exp_f32 v{t0}, v{t0}")
    e("  s_nop 0")
    e(f"  v_add_f32 v{t0}, 1.0, v{t0}")
    e(f"  v_rcp_f32 v{t0}, v{t0}")
    e("  s_nop 0")
    e(f"  v_cvt_pk_bf16_f32 v{t0}, v{t0}, v{t0}")
    e(f"  v_lshlrev_b32 v{t0}, 16, v{t0}")
    e(f"  s_lshl_b32 s{sOff}, s{sOff}, 2")
    e(f"  s_add_u32 s{sOff}, s{sOff}, {G_OFF}")
    e(f"  v_mov_b32 v{t1}, 0")
    e("  s_mov_b64 exec, 1")
    e(f"  buffer_store_dword v{t0}, v{t1}, {sr(rWS,4)}, s{sOff} offen")
    e("  s_mov_b64 exec, -1")
    e("  s_waitcnt vmcnt(8)")
    e("  s_branch attn_gate_done")
    e("attn_nogate1:")
    e("  s_waitcnt vmcnt(7)")
    e("attn_gate_done:")
    e("  s_barrier")

    def kread(buf, off):
        e(f"  ds_read_b128 {vr(vK+4*buf,4)}, v{vAddr} offset:{off}")
    def vread(buf, off):
        e(f"  s_mov_b64 exec, {sr(sMask,2)}")
        e(f"  ds_read_b128 {vr(vV+8*buf,4)}, v{vAddr} offset:{off+1024}")
        e(f"  ds_read_b128 {vr(vV+8*buf+4,4)}, v{vAddr} offset:{off+1024+256}")
        e("  s_mov_b64 exec, -1")
    def rowmax(src, dst, tmp):
        e(f"  v_max3_f32 v{dst}, v{src}, v{src+1}, v{src+2}")
        for i in range(3, 15, 2):
            e(f"  v_max3_f32 v{dst}, v{dst}, v{src+i}, v{src+i+1}")
        e(f"  v_max_f32 v{dst}, v{dst}, v{src+15}")
        e(f"  v_mov_b32 v{tmp}, v{dst}")
        e("  s_nop 1")
        e(f"  v_permlane32_swap_b32 v{dst}, v{tmp}")
        e(f"  v_max_f32 v{dst}, v{dst}, v{tmp}")

    kread(0, 0)
    kread(1, 2048)
    vread(0, 0)
    e("  s_waitcnt lgkmcnt(3)")
    e(f"  v_mfma_f32_32x32x16_bf16 {vr(vS,16)}, {vr(vK,4)}, {vr(vQ,4)}, 0")
    for i in range(16):
        e(f"  v_mov_b32 v{vO+i}, 0")
    e("  s_nop 3")
    rowmax(vS, t0, t1)
    e(f"  v_sub_f32 v{t0}, 0, v{t0}")
    for i in range(16):
        e(f"  v_mov_b32 v{vC+i}, v{t0}")
    e("  s_nop 1")
    e(f"  v_mfma_f32_32x32x16_bf16 {vr(vS,16)}, {vr(vK,4)}, {vr(vQ,4)}, {vr(vC,16)}")
    e(f"  s_mov_b32 s{sIt}, 0")
    if "t" in DBG:
        e("  s_memtime s[44:45]")
        e("  s_waitcnt lgkmcnt(0)")
    e(".p2align 6")
    e("attn_loop:")
    for u in range(8):
        b = u % 2
        S = vS + 16 * b
        Sn = vS + 16 * (1 - b)
        if u == 4:
            e(f"  s_cmp_lg_u32 s{sIt}, 0")
            e("  s_cbranch_scc1 attn_nobar")
            e("  s_waitcnt vmcnt(0)")
            e("  s_barrier")
            e("attn_nobar:")
        e("  s_waitcnt lgkmcnt(2)")
        e(f"  v_mfma_f32_32x32x16_bf16 {vr(Sn,16)}, {vr(vK+4*(1-b),4)}, {vr(vQ,4)}, {vr(vC,16)}")
        kread(b, (u + 2) * 2048)
        vread(1 - b, (u + 1) * 2048)
        for i in range(16):
            e(f"  v_exp_f32 v{S+i}, v{S+i}" if "E" not in DBG else f"  v_max3_f32 v{S+i}, v{S+i}, v{S+i}, v{S+i}\n  v_max3_f32 v{S+i}, v{S+i}, v{S+i}, v{S+i}")
        if u == 7:
            e(f"  v_cmp_ngt_f32 vcc, s{sThr}, v{vO+8}")
            e("  s_cbranch_vccnz attn_rare")
            e("attn_rare_ret:")
        for i in range(8):
            e(f"  v_cvt_pk_bf16_f32 v{vP+i}, v{S+2*i}, v{S+2*i+1}")
        e("  s_waitcnt lgkmcnt(3)")
        if "M" not in DBG:
            e(f"  v_mfma_f32_32x32x16_bf16 {vr(vO,16)}, {vr(vV+8*b,4)}, {vr(vP,4)}, {vr(vO,16)}")
            e(f"  v_mfma_f32_32x32x16_bf16 {vr(vO,16)}, {vr(vV+8*b+4,4)}, {vr(vP+4,4)}, {vr(vO,16)}")
    e(f"  v_add_u32 v{vAddr}, 16384, v{vAddr}")
    e(f"  s_add_u32 s{sIt}, s{sIt}, 1")
    e(f"  s_cmp_lt_u32 s{sIt}, 8")
    e("  s_cbranch_scc1 attn_loop")
    e("  s_waitcnt lgkmcnt(0)")
    e("  s_nop 15")
    e(f"  v_mov_b32 v{t1}, 0x207")
    e(f"  s_mov_b64 {sr(26,2)}, 0")
    for i in range(9):
        e(f"  v_cmp_class_f32 vcc, v{vO+i}, v{t1}")
        e(f"  s_or_b64 {sr(26,2)}, {sr(26,2)}, vcc")
    e(f"  s_cmp_lg_u64 {sr(26,2)}, 0")
    e(f"  s_cselect_b32 s{sT0}, 1, 0")
    e(f"  s_or_b32 s{sFlag}, s{sFlag}, s{sT0}")
    e(f"  s_cmp_lg_u32 s{sFlag}, 0")
    e("  s_cbranch_scc1 attn_fallback")
    e("attn_epilogue:")
    e(f"  v_rcp_f32 v{t0}, v{vO+8}")
    e("  s_nop 0")
    for i in range(8):
        e(f"  v_mul_f32 v{vO+i}, v{vO+i}, v{t0}")
    for i in range(4):
        e(f"  v_cvt_pk_bf16_f32 v{vP+i}, v{vO+2*i}, v{vO+2*i+1}")
    e(f"  s_lshl_b32 s{sT0}, s{sBr}, 6")
    e(f"  s_add_u32 s{sT0}, s{sT0}, s{sQt}")
    e(f"  s_lshl_b32 s{sT0}, s{sT0}, 5")
    e(f"  s_add_u32 s{sT0}, s{sT0}, s{sHead}")
    e(f"  s_lshl_b32 s{sT0}, s{sT0}, 10")
    e(f"  s_add_u32 s{sT0}, s{sT0}, {OF_OFF}")
    e(f"  v_lshlrev_b32 v{t1}, 4, v{vLane}")
    e(f"  buffer_store_dwordx4 {vr(vP,4)}, v{t1}, {sr(rWS,4)}, s{sT0} offen")
    if "t" in DBG:
        e("  s_memtime s[36:37]")
        e("  s_memrealtime s[38:39]")
        e("  s_waitcnt lgkmcnt(0)")
        e("  s_sub_u32 s36, s36, s32")
        e("  s_sub_u32 s38, s38, s34")
        e("  s_sub_u32 s37, s44, s32")
        srd(28, 40, 256)
        e("  v_mov_b32 v4, s36")
        e("  v_mov_b32 v5, s38")
        e("  v_mov_b32 v6, s37")
        e("  v_mov_b32 v7, 0")
        e(f"  s_lshl_b32 s36, s{sWid}, 4")
        e("  v_mov_b32 v8, s36")
        e("  s_cmp_lg_u32 s2, 100")
        e("  s_cbranch_scc1 attn_done")
        e("  buffer_store_dwordx4 v[4:7], v8, s[28:31], 0 offen")
    e("attn_done:")
    e("  s_endpgm")

    S = vS + 16; Sn = vS
    e("attn_rare:")
    e(f"  v_cmp_ngt_f32 vcc, s{sInf}, v{vO+8}")
    e("  s_cbranch_vccz attn_rare_ok")
    e(f"  s_mov_b32 s{sFlag}, 1")
    e("  s_branch attn_rare_ret")
    e("attn_rare_ok:")
    e(f"  v_frexp_exp_i32_f32 v{t0}, v{vO+8}")
    e(f"  v_sub_u32 v{t1}, 0, v{t0}")
    e(f"  v_cvt_f32_i32 v{t0}, v{t0}")
    for i in range(9):
        e(f"  v_ldexp_f32 v{vO+i}, v{vO+i}, v{t1}")
    for i in range(16):
        e(f"  v_ldexp_f32 v{S+i}, v{S+i}, v{t1}")
    for i in range(16):
        e(f"  v_sub_f32 v{Sn+i}, v{Sn+i}, v{t0}")
    for i in range(16):
        e(f"  v_sub_f32 v{vC+i}, v{vC+i}, v{t0}")
    e("  s_branch attn_rare_ret")

    e("attn_fallback:")
    e(f"  v_lshlrev_b32 v{vAddr}, 4, v{vLane}")
    for i in range(16):
        e(f"  v_mov_b32 v{vO+i}, 0")
    e(f"  v_mov_b32 v{vG}, 0xff7fffff")
    e(f"  s_mov_b32 s{sIt}, 0")
    e("attn_fb_loop:")
    kread(0, 0)
    vread(0, 0)
    e("  s_waitcnt lgkmcnt(0)")
    e(f"  v_mfma_f32_32x32x16_bf16 {vr(vS,16)}, {vr(vK,4)}, {vr(vQ,4)}, 0")
    e("  s_nop 15")
    e("  s_nop 3")
    rowmax(vS, t0, t1)
    e(f"  v_max_f32 v{t0}, v{t0}, v{vG}             ; m_new")
    e(f"  v_sub_f32 v{t1}, v{vG}, v{t0}")
    e(f"  v_exp_f32 v{t1}, v{t1}                    ; alpha")
    e(f"  v_mov_b32 v{vG}, v{t0}")
    for i in range(16):
        e(f"  v_sub_f32 v{vS+i}, v{vS+i}, v{t0}")
    for i in range(16):
        e(f"  v_exp_f32 v{vS+i}, v{vS+i}")
    for i in range(9):
        e(f"  v_mul_f32 v{vO+i}, v{vO+i}, v{t1}")
    for i in range(8):
        e(f"  v_cvt_pk_bf16_f32 v{vP+i}, v{vS+2*i}, v{vS+2*i+1}")
    e("  s_nop 1")
    e(f"  v_mfma_f32_32x32x16_bf16 {vr(vO,16)}, {vr(vV,4)}, {vr(vP,4)}, {vr(vO,16)}")
    e(f"  v_mfma_f32_32x32x16_bf16 {vr(vO,16)}, {vr(vV+4,4)}, {vr(vP+4,4)}, {vr(vO,16)}")
    e(f"  v_add_u32 v{vAddr}, 2048, v{vAddr}")
    e("  s_nop 15")
    e("  s_nop 3")
    e(f"  s_add_u32 s{sIt}, s{sIt}, 1")
    e(f"  s_cmp_lt_u32 s{sIt}, 64")
    e("  s_cbranch_scc1 attn_fb_loop")
    e("  s_branch attn_epilogue")
    return kernel_desc("attn_kernel", NV, 56)

def gen_outp():
    kernel_start("outp_kernel")
    sWA, sWB, sOut, sWS = 4, 6, 8, 10
    rW, rOut, rWS = 12, 20, 24
    sWid, sNB, sTBk, sBr, sTT, sCT, sT0, sT1, sQt, sWo, sM, sOo = 28, 29, 30, 31, 32, 33, 34, 35, 36, 37, 38, 39
    vLane, vWo, vA0, vA1, vG, vOa, t0, t1, t2, t3 = 1, 2, 3, 4, 5, 6, 7, 8, 9, 10
    vWF = 12
    vAcc = 76
    vB = 92
    vOF = 108
    NV = 236
    e("  s_cmp_ge_u32 s2, 256")
    e("  s_cbranch_scc1 outp_done")
    e("  s_load_dwordx2 s[4:5], s[0:1], 32")
    e("  s_load_dwordx2 s[6:7], s[0:1], 56")
    e("  s_load_dwordx2 s[8:9], s[0:1], 72")
    e("  s_load_dwordx2 s[10:11], s[0:1], 88")
    e(f"  v_and_b32 v{vLane}, 63, v0")
    e(f"  v_lshrrev_b32 v{t0}, 6, v0")
    e("  s_nop 0")
    e(f"  v_readfirstlane_b32 s{sWid}, v{t0}")
    e(f"  s_and_b32 s{sT0}, s2, 7")
    e(f"  s_lshl_b32 s{sT0}, s{sT0}, 2")
    e(f"  s_bfe_u32 s{sT1}, s2, 0x20003")
    e(f"  s_add_u32 s{sTBk}, s{sT0}, s{sT1}")
    e(f"  s_lshr_b32 s{sNB}, s2, 5")
    e(f"  s_lshr_b32 s{sBr}, s{sWid}, 2")
    e(f"  s_bfe_u32 s{sTT}, s{sWid}, 0x10001")
    e(f"  s_and_b32 s{sCT}, s{sWid}, 1")
    e(f"  s_lshl_b32 s{sQt}, s{sTBk}, 1")
    e(f"  s_add_u32 s{sQt}, s{sQt}, s{sTT}")
    e(f"  v_lshrrev_b32 v{t0}, 3, v{vLane}          ; l/8")
    e(f"  v_and_b32 v{t1}, 7, v{vLane}")
    e(f"  v_bfe_u32 v{t2}, v{vLane}, 4, 1           ; (row>>1)&1")
    e(f"  v_lshlrev_b32 v{t2}, 2, v{t2}")
    e(f"  v_xor_b32 v{t1}, v{t1}, v{t2}")
    e(f"  v_lshlrev_b32 v{t1}, 4, v{t1}")
    e(f"  v_lshl_add_u32 v{vWo}, v{t0}, 10, v{t1}")
    e(f"  v_lshlrev_b32 v{vOa}, 4, v{vLane}")
    e("  s_waitcnt lgkmcnt(0)")
    e(f"  s_cmp_eq_u32 s{sBr}, 0")
    e(f"  s_cselect_b32 s{sT0}, s{sWA}, s{sWB}")
    e(f"  s_cselect_b32 s{sT1}, s{sWA+1}, s{sWB+1}")
    srd(rW, sT0, 512 * 1024)
    srd(rOut, sOut, 2097152)
    srd(rWS, sWS, WS_BYTES)
    e(f"  s_and_b32 s{sT0}, s{sWid}, 3")
    e(f"  s_lshl_b32 s{sWo}, s{sT0}, 15              ; q*32 rows * 1024")
    e(f"  s_lshl_b32 s{sT1}, s{sNB}, 7")
    e(f"  s_add_u32 s{sWo}, s{sWo}, s{sT1}")
    e(f"  s_lshl_b32 s{sM}, s{sT0}, 12               ; q*32 rows * 128")
    e(f"  s_lshl_b32 s{sT1}, s{sBr}, 16")
    e(f"  s_add_u32 s{sM}, s{sM}, s{sT1}")
    e(f"  s_lshl_b32 s{sOo}, s{sBr}, 6")
    e(f"  s_add_u32 s{sOo}, s{sOo}, s{sQt}")
    e(f"  s_lshl_b32 s{sOo}, s{sOo}, 15")
    e(f"  s_add_u32 s{sOo}, s{sOo}, {OF_OFF}")
    for c in range(4):
        for i in range(4):
            e(f"  s_add_u32 m0, s{sM}, {c*16384 + i*1024}")
            e(f"  s_add_u32 s{sT0}, s{sWo}, {c*131072 + i*8192}")
            e(f"  buffer_load_dwordx4 v{vWo}, {sr(rW,4)}, s{sT0} offen lds")
        for s_ in range(8 * c, 8 * c + 8):
            e(f"  buffer_load_dwordx4 {vr(vOF+4*s_,4)}, v{vOa}, {sr(rWS,4)}, s{sOo} offen offset:{(s_%4)*1024}")
            if s_ % 4 == 3:
                e(f"  s_add_u32 s{sOo}, s{sOo}, 4096")
    e(f"  v_and_b32 v{t0}, 31, v{vLane}")
    e(f"  v_lshlrev_b32 v{t0}, 2, v{t0}")
    e(f"  s_lshl_b32 s{sT0}, s{sQt}, 7")
    e(f"  s_add_u32 s{sT0}, s{sT0}, {G_OFF}")
    e(f"  buffer_load_dword v{vG}, v{t0}, {sr(rWS,4)}, s{sT0} offen")
    tr_addr(vA0, vA1, vLane, t0, t1, t2, t3, True)
    e(f"  s_lshl_b32 s{sT0}, s{sCT}, 6")
    e(f"  v_xor_b32 v{vA0}, s{sT0}, v{vA0}")
    e(f"  s_lshl_b32 s{sT0}, s{sBr}, 16")
    e(f"  v_add_u32 v{vA0}, s{sT0}, v{vA0}")
    e(f"  v_add_u32 v{vA1}, 32768, v{vA0}")
    def wread(s_):
        rs = 32 * ((s_ // 8) % 2) + 4 * (s_ % 8)
        for u in range(2):
            e(f"  ds_read_b64_tr_b16 {vr(vWF+rs+u*2,2)}, v{vA0 if s_ < 16 else vA1} offset:{(s_%16)*2048+u*512}")
    e(f"  s_waitcnt vmcnt({3*12+1+8})")
    e("  s_barrier")
    for s_ in range(8):
        wread(s_)
    for c in range(4):
        if c < 3:
            e(f"  s_waitcnt vmcnt({(2-c)*12+1+8}) lgkmcnt(0)")
            e("  s_barrier")
        else:
            e("  s_waitcnt vmcnt(0) lgkmcnt(0)")
        for k in range(8):
            s_ = 8 * c + k
            if c < 3:
                wread(s_ + 8)
            cc = "0" if s_ == 0 else vr(vAcc, 16)
            rs = 32 * (c % 2) + 4 * k
            e(f"  v_mfma_f32_32x32x16_bf16 {vr(vAcc,16)}, {vr(vWF+rs,4)}, {vr(vOF+4*s_,4)}, {cc}")
    e("  s_nop 15")
    e(f"  s_and_b32 s{sT0}, s{sWid}, 3")
    e(f"  s_lshl_b32 s{sT0}, s{sT0}, 12")
    e(f"  s_add_u32 s{sT0}, s{sT0}, 131072")
    e(f"  v_add_u32 v{t0}, s{sT0}, v{vOa}")
    e(f"  s_cmp_eq_u32 s{sBr}, 0")
    e("  s_cbranch_scc1 outp_a")
    for q in range(4):
        e(f"  ds_write_b128 v{t0}, {vr(vAcc+4*q,4)} offset:{q*1024}")
    e("  s_waitcnt lgkmcnt(0)")
    e("  s_barrier")
    e("  s_endpgm")
    e("outp_a:")
    vOm = t1
    e(f"  v_sub_f32 v{vOm}, 1.0, v{vG}")
    e(f"  v_cvt_pk_bf16_f32 v{vOm}, v{vOm}, v{vOm}")
    e(f"  v_lshlrev_b32 v{vOm}, 16, v{vOm}")
    e(f"  s_mov_b32 s{sT1}, 0xffff0000")
    def round_pair(x0, x1, tmp):
        e(f"  v_cvt_pk_bf16_f32 v{tmp}, v{x0}, v{x1}")
        e(f"  v_lshlrev_b32 v{x0}, 16, v{tmp}")
        e(f"  v_and_b32 v{x1}, s{sT1}, v{tmp}")
    for i in range(0, 16, 2):
        round_pair(vAcc + i, vAcc + i + 1, t2)
        e(f"  v_mul_f32 v{vAcc+i}, v{vG}, v{vAcc+i}")
        e(f"  v_mul_f32 v{vAcc+i+1}, v{vG}, v{vAcc+i+1}")
        round_pair(vAcc + i, vAcc + i + 1, t2)
    e("  s_barrier")
    for q in range(4):
        e(f"  ds_read_b128 {vr(vB+4*q,4)}, v{t0} offset:{q*1024}")
    e(f"  v_and_b32 v{t0}, 31, v{vLane}")
    e(f"  v_lshlrev_b32 v{t0}, 10, v{t0}")
    e(f"  v_lshrrev_b32 v{t2}, 5, v{vLane}")
    e(f"  v_lshl_add_u32 v{t0}, v{t2}, 5, v{t0}")
    e(f"  s_lshl_b32 s{sT0}, s{sQt}, 15")
    e(f"  s_lshl_b32 s{sWo}, s{sNB}, 7")
    e(f"  s_add_u32 s{sT0}, s{sT0}, s{sWo}")
    e(f"  s_lshl_b32 s{sWo}, s{sCT}, 6")
    e(f"  s_add_u32 s{sT0}, s{sT0}, s{sWo}")
    e("  s_waitcnt lgkmcnt(0)")
    for i in range(0, 16, 2):
        round_pair(vB + i, vB + i + 1, t2)
        e(f"  v_mul_f32 v{vB+i}, v{vOm}, v{vB+i}")
        e(f"  v_mul_f32 v{vB+i+1}, v{vOm}, v{vB+i+1}")
        round_pair(vB + i, vB + i + 1, t2)
        e(f"  v_add_f32 v{vAcc+i}, v{vAcc+i}, v{vB+i}")
        e(f"  v_add_f32 v{vAcc+i+1}, v{vAcc+i+1}, v{vB+i+1}")
        e(f"  v_cvt_pk_bf16_f32 v{vOF+i//2}, v{vAcc+i}, v{vAcc+i+1}")
        if i == 6:
            e(f"  buffer_store_dwordx4 {vr(vOF,4)}, v{t0}, {sr(rOut,4)}, s{sT0} offen")
    e(f"  buffer_store_dwordx4 {vr(vOF+4,4)}, v{t0}, {sr(rOut,4)}, s{sT0} offen offset:16")
    e("outp_done:")
    e("  s_endpgm")
    return kernel_desc("outp_kernel", NV, 48)

descs = []
descs.append(gen_proj())
descs.append(gen_attn())
descs.append(gen_outp())
text = HEADER + "\n".join(L) + "\n" + '.section .rodata,"a"\n' + "".join(descs)
open(OUT, "w").write(text)
print("wrote", OUT, len(text), "bytes")
```

```python
import sys, struct, os
DBG = os.environ.get("DBG","")

OUT = sys.argv[1] if len(sys.argv) > 1 else "gated_mix__grouped_kv_mqa__mha_block__prompt.s"

def f32bits(x):
    return struct.unpack("<I", struct.pack("<f", x))[0]

QF_OFF = 0
KV_OFF = 4 << 20
OF_OFF = 12 << 20
G_OFF  = 16 << 20
WS_BYTES = 268435456
SCALE = 0.25 * 1.4426950408889634
THR = int(os.environ.get("THR", "64"))
HEAD = int(os.environ.get("HEAD", "40"))

L = []
def e(s=""):
    L.append(s)
def vr(b, n=1):
    return f"v{b}" if n == 1 else f"v[{b}:{b+n-1}]"
def sr(b, n=1):
    return f"s{b}" if n == 1 else f"s[{b}:{b+n-1}]"

def srd(dst, base, nbytes):
    e(f"  s_mov_b32 s{dst}, s{base}")
    e(f"  s_and_b32 s{dst+1}, s{base+1}, 0xffff")
    e(f"  s_mov_b32 s{dst+2}, {nbytes}")
    e(f"  s_mov_b32 s{dst+3}, 0x00020000")

HEADER = """; Kernarg layout for this problem (96 bytes, ptrs only, base s[0:1]):
; @launch kernel=proj_kernel grid=(256,1,1) block=(512,1,1) lds=147456
; @launch kernel=attn_kernel grid=(256,1,1) block=(1024,1,1) lds=135168
; @launch kernel=outp_kernel grid=(256,1,1) block=(512,1,1) lds=147456
.amdgcn_target "amdgcn-amd-amdhsa--gfx950"
.text
"""

def kernel_start(name):
    e(f".globl {name}")
    e(".p2align 8")
    e(f".type {name},@function")
    e(f"{name}:")

def kernel_desc(name, nvgpr, nsgpr):
    acc = (nvgpr + 3) // 4 * 4
    return f""".p2align 6
.amdhsa_kernel {name}
  .amdhsa_next_free_vgpr {nvgpr}
  .amdhsa_next_free_sgpr {nsgpr}
  .amdhsa_accum_offset {acc}
  .amdhsa_group_segment_fixed_size 0
  .amdhsa_kernarg_size 96
  .amdhsa_user_sgpr_count 2
  .amdhsa_user_sgpr_kernarg_segment_ptr 1
  .amdhsa_system_sgpr_workgroup_id_x 1
.end_amdhsa_kernel
"""

def tr_addr(vA0, vA1, vlane, t0, t1, t2, t3, perm):
    e(f"  v_lshrrev_b32 v{t0}, 4, v{vlane}          ; g")
    e(f"  v_and_b32 v{t1}, 1, v{t0}                 ; g%2")
    e(f"  v_lshrrev_b32 v{t0}, 1, v{t0}             ; h")
    e(f"  v_bfe_u32 v{t2}, v{vlane}, 2, 2           ; r")
    e(f"  v_lshl_add_u32 v{t0}, v{t0}, 3, v{t2}     ; 8h + r")
    e(f"  v_lshlrev_b32 v{t0}, 7, v{t0}             ; *128")
    e(f"  v_and_b32 v{t3}, 3, v{vlane}              ; c")
    e(f"  v_lshl_add_u32 v{t1}, v{t1}, 2, v{t3}     ; mc=(g%2)*4+c")
    if perm:
        e(f"  v_and_b32 v{t3}, 1, v{t1}")
        e(f"  v_lshrrev_b32 v{t1}, 1, v{t1}")
        e(f"  v_lshl_add_u32 v{t1}, v{t3}, 2, v{t1}     ; nc = 4*(mc%2)+mc/2")
    e(f"  v_and_b32 v{t3}, 1, v{t1}")
    e(f"  v_lshl_add_u32 v{t0}, v{t3}, 3, v{t0}     ; + (nc%2)*8")
    e(f"  v_lshrrev_b32 v{t1}, 1, v{t1}")
    e(f"  v_lshrrev_b32 v{t2}, 1, v{t2}             ; (r>>1)&1")
    e(f"  v_lshlrev_b32 v{t2}, 2, v{t2}")
    e(f"  v_xor_b32 v{t1}, v{t1}, v{t2}")
    e(f"  v_lshl_add_u32 v{vA0}, v{t1}, 4, v{t0}")
    e(f"  v_xor_b32 v{vA1}, 64, v{vA0}")

def gen_proj():
    kernel_start("proj_kernel")
    STG = 36864
    sX, sWQ, sWK, sWV, sWQKV, sWS = 4, 6, 8, 10, 12, 16
    rX, rW, rWS, rS = 20, 24, 28, 32
    sNB, sTB, sT0, sT1, sT2, sPitch, sCol, sWid = 40, 41, 42, 43, 44, 45, 46, 47
    sEx = 48
    sOff, sTT, sCG, sSpec, sXo, sWo, sM, sQt = 50, 51, 52, 53, 54, 55, 56, 57
    sC, sSo, sMS = 58, 59, 60
    sSMask = 36
    e("  s_cmp_ge_u32 s2, 256")
    e("  s_cbranch_scc1 proj_done")
    e("  s_load_dwordx4 s[4:7], s[0:1], 0")
    e("  s_load_dwordx4 s[8:11], s[0:1], 16")
    e("  s_load_dwordx2 s[12:13], s[0:1], 48")
    e("  s_load_dwordx2 s[16:17], s[0:1], 88")
    if "p" in DBG:
        e("  s_load_dwordx2 s[80:81], s[0:1], 80")
        e("  s_memtime s[64:65]")
    e(f"  s_and_b32 s{sT0}, s2, 3")
    e(f"  s_lshl_b32 s{sT0}, s{sT0}, 2")
    e(f"  s_bfe_u32 s{sT1}, s2, 0x20003")
    e(f"  s_add_u32 s{sTB}, s{sT0}, s{sT1}")
    e(f"  s_bfe_u32 s{sT0}, s2, 0x10002")
    e(f"  s_lshl_b32 s{sT0}, s{sT0}, 3")
    e(f"  s_lshr_b32 s{sT1}, s2, 5")
    e(f"  s_add_u32 s{sNB}, s{sT0}, s{sT1}")
    vLane = 1; vXo0 = 2; vXo1 = 3; vWo = 4; vSt = 5; vSo = 6
    t0, t1, t2, t3 = 8, 9, 10, 11
    vXA = 12
    vWA = 20
    vSA = 24
    vXF = 28
    vWF = 44
    vSF = 76
    vAcc = 156
    vOut = 28
    NV = 204
    e(f"  v_and_b32 v{vLane}, 63, v0")
    e(f"  v_lshrrev_b32 v{t0}, 6, v0")
    e("  s_nop 0")
    e(f"  v_readfirstlane_b32 s{sWid}, v{t0}")
    e(f"  s_sub_u32 s{sSpec}, s{sNB}, s{sTB}")
    e(f"  s_and_b32 s{sSpec}, s{sSpec}, 15")
    e(f"  s_and_b32 s{sTT}, s{sWid}, 3")
    e(f"  s_lshr_b32 s{sCG}, s{sWid}, 2")
    e(f"  s_lshl_b32 s{sQt}, s{sTB}, 2")
    e(f"  s_add_u32 s{sQt}, s{sQt}, s{sTT}")
    e(f"  v_lshrrev_b32 v{t0}, 3, v{vLane}          ; l/8")
    e(f"  v_lshrrev_b32 v{t1}, 4, v{vLane}          ; l/16")
    e(f"  v_and_b32 v{t2}, 7, v{vLane}")
    if "z" not in DBG:
        e(f"  v_xor_b32 v{t2}, v{t2}, v{t1}")
    e(f"  v_lshlrev_b32 v{t2}, 4, v{t2}")
    e(f"  v_lshl_add_u32 v{vXo0}, v{t0}, 10, v{t2}")
    e(f"  v_xor_b32 v{vXo1}, 64, v{vXo0}")
    e(f"  v_add_u32 v{vXo1}, 8192, v{vXo1}")
    e(f"  v_lshrrev_b32 v{t0}, 2, v{vLane}")
    e(f"  v_and_b32 v{t2}, 1, v{vLane}")
    e(f"  v_lshlrev_b32 v{t2}, 4, v{t2}")
    e(f"  v_lshl_add_u32 v{vSo}, v{t0}, 5, v{t2}")
    e(f"  v_and_b32 v{t2}, 15, v{vLane}")
    e(f"  v_lshlrev_b32 v{t3}, 2, v{t1}")
    if "z" not in DBG:
        e(f"  v_xor_b32 v{t2}, v{t2}, v{t3}")
    e(f"  v_lshlrev_b32 v{t2}, 4, v{t2}")
    e("  s_waitcnt lgkmcnt(0)")
    if "p" in DBG:
        e("  s_memtime s[78:79]")
        e("  s_waitcnt lgkmcnt(0)")
    srd(rX, sX, 2097152)
    srd(rWS, sWS, WS_BYTES)
    e(f"  s_cmp_lt_u32 s{sNB}, 4")
    e("  s_cbranch_scc1 proj_wq")
    srd(rW, sWQKV, 512 * 3072)
    e(f"  s_sub_u32 s{sCol}, s{sNB}, 4")
    e(f"  s_lshl_b32 s{sCol}, s{sCol}, 8")
    e(f"  s_mov_b32 s{sPitch}, 3072")
    e("  s_branch proj_wcommon")
    e("proj_wq:")
    srd(rW, sWQ, 512 * 1024)
    e(f"  s_lshl_b32 s{sCol}, s{sNB}, 8")
    e(f"  s_mov_b32 s{sPitch}, 1024")
    e("proj_wcommon:")
    e(f"  v_mul_lo_u32 v{vWo}, v{t1}, s{sPitch}")
    e(f"  v_add_u32 v{vWo}, v{vWo}, v{t2}")
    e(f"  s_lshl_b32 s{sXo}, s{sTB}, 17")
    e(f"  s_lshl_b32 s{sT0}, s{sWid}, 14")
    e(f"  s_add_u32 s{sXo}, s{sXo}, s{sT0}")
    e(f"  s_lshl_b32 s{sT0}, s{sWid}, 3")
    e(f"  s_mul_i32 s{sWo}, s{sT0}, s{sPitch}")
    e(f"  s_add_u32 s{sWo}, s{sWo}, s{sCol}")
    e(f"  s_lshl_b32 s{sM}, s{sWid}, 11")
    e(f"  s_lshl_b32 s{sT2}, s{sPitch}, 2            ; 4*pitch")
    e(f"  s_lshl_b32 s{sPitch}, s{sPitch}, 6")
    e(f"  s_bfe_u32 s{sC}, s2, 0x30003")
    e(f"  s_bitcmp1_b32 s{sWid}, 0")
    e(f"  s_cselect_b32 s{sT0}, s{sWV}, s{sWK}")
    e(f"  s_cselect_b32 s{sT1}, s{sWV+1}, s{sWK+1}")
    e(f"  s_mov_b32 s{sSMask}, 0x33333333")
    e(f"  s_cselect_b32 s{sSMask}, 0xcccccccc, s{sSMask}")
    e(f"  s_mov_b32 s{sSMask+1}, s{sSMask}")
    srd(rS, sT0, 512 * 32)
    e(f"  s_lshr_b32 s{sT0}, s{sWid}, 1")
    e(f"  s_lshl_b32 s{sSo}, s{sT0}, 9               ; 16 rows * 32B")
    e(f"  s_lshl_b32 s{sMS}, s{sT0}, 10")

    def dma_piece(c, spec, i):
        st = (c % 4) * STG
        if i == 0:
            e(f"  s_lshl_b32 s{sT0}, s{sC}, 7")
            e(f"  s_add_u32 s{sT0}, s{sT0}, s{sXo}")
            e(f"  s_add_u32 m0, s{sM}, {st}")
            e(f"  s_mul_i32 s{sT1}, s{sC}, s{sPitch}")
            e(f"  buffer_load_dwordx4 v{vXo0}, {sr(rX,4)}, s{sT0} offen lds")
        elif i == 1:
            e(f"  s_add_u32 m0, s{sM}, {st+1024}")
            e(f"  s_add_u32 s{sT1}, s{sT1}, s{sWo}")
            e(f"  buffer_load_dwordx4 v{vXo1}, {sr(rX,4)}, s{sT0} offen lds")
        elif i == 2:
            e(f"  s_add_u32 m0, s{sM}, {st+16384}")
            e(f"  s_add_u32 s{sT0}, s{sT1}, s{sT2}")
            e(f"  buffer_load_dwordx4 v{vWo}, {sr(rW,4)}, s{sT1} offen lds")
        else:
            e(f"  s_add_u32 m0, s{sM}, {st+16384+1024}")
            e(f"  s_lshl_b32 s{sT1}, s{sC}, 11")
            e(f"  buffer_load_dwordx4 v{vWo}, {sr(rW,4)}, s{sT0} offen lds")
            if spec:
                e(f"  s_add_u32 m0, s{sMS}, {st+32768}")
                e(f"  s_add_u32 s{sT1}, s{sT1}, s{sSo}")
                e(f"  s_mov_b64 exec, {sr(sSMask,2)}")
                e(f"  buffer_load_dwordx4 v{vSo}, {sr(rS,4)}, s{sT1} offen lds")
                e("  s_mov_b64 exec, -1")
            e(f"  s_add_u32 s{sC}, s{sC}, 1")
            e(f"  s_and_b32 s{sC}, s{sC}, 7")
    def dma(c, spec):
        for i in range(4):
            dma_piece(c, spec, i)

    def addr_setup():
        e(f"  v_and_b32 v{t0}, 31, v{vLane}")
        e(f"  v_lshrrev_b32 v{t1}, 5, v{vLane}          ; h")
        e(f"  v_bfe_u32 v{t2}, v{vLane}, 1, 3           ; (row>>1)&7")
        e(f"  v_xor_b32 v{t1}, v{t1}, v{t2}")
        e(f"  v_lshlrev_b32 v{t1}, 4, v{t1}")
        e(f"  v_lshl_add_u32 v{t0}, v{t0}, 7, v{t1}")
        e(f"  s_lshl_b32 s{sOff}, s{sTT}, 12")
        e(f"  v_add_u32 v{t0}, s{sOff}, v{t0}")
        for sp in range(4):
            e(f"  v_xor_b32 v{vXA+sp}, {sp*32}, v{t0}")
            e(f"  v_add_u32 v{vXA+4+sp}, {2*STG}, v{vXA+sp}")
        e(f"  v_lshrrev_b32 v{t0}, 5, v{vLane}          ; h")
        e(f"  v_bfe_u32 v{t1}, v{vLane}, 2, 2           ; r")
        e(f"  v_lshl_add_u32 v{t0}, v{t0}, 3, v{t1}     ; 8h+r")
        e(f"  v_bfe_u32 v{t2}, v{vLane}, 4, 1           ; g%2")
        e(f"  v_and_b32 v{t3}, 3, v{vLane}              ; c")
        e(f"  v_lshl_add_u32 v{t2}, v{t2}, 2, v{t3}     ; nc")
        e(f"  v_lshlrev_b32 v{t2}, 3, v{t2}             ; nc*8")
        e(f"  v_lshl_add_u32 v{vSA}, v{t0}, 6, v{t2}")
        e(f"  v_add_u32 v{vSA}, 32768, v{vSA}")
        e(f"  v_add_u32 v{vSA+1}, {2*STG}, v{vSA}")
        e(f"  v_lshl_add_u32 v{t0}, v{t0}, 8, v{t2}     ; k*256 + nc*8")
        e(f"  s_lshl_b32 s{sOff}, s{sCG}, 1")
        e(f"  v_xor_b32 v{t1}, s{sOff}, v{t1}           ; (2cg) ^ r")
        e(f"  v_lshl_add_u32 v{t0}, v{t1}, 6, v{t0}")
        e(f"  v_add_u32 v{vWA}, 16384, v{t0}")
        e(f"  v_xor_b32 v{vWA+1}, 64, v{vWA}")
        e(f"  v_add_u32 v{vWA+2}, {2*STG}, v{vWA}")
        e(f"  v_add_u32 v{vWA+3}, {2*STG}, v{vWA+1}")

    def reads(c, sp, spec):
        st = c % 4
        so = (st % 2) * STG
        hi = st // 2
        rs = 64 * (c % 2)
        e(f"  ds_read_b128 {vr(vXF+rs+4*sp,4)}, v{vXA+sp+4*hi} offset:{so}")
        for ct in range(2):
            for u in range(2):
                e(f"  ds_read_b64_tr_b16 {vr(vWF+rs+sp*8+ct*4+u*2,2)}, v{vWA+2*hi+ct} offset:{so+(16*sp+4*u)*256}")
        if spec:
            for u in range(2):
                e(f"  ds_read_b64_tr_b16 {vr(vSF+rs+sp*4+u*2,2)}, v{vSA+hi} offset:{so+(16*sp+4*u)*64}")

    def mainloop(orient, spec, dspec):
        n = 5 if dspec else 4
        for c in range(4):
            dma(c, dspec)
        addr_setup()
        e(f"  s_waitcnt vmcnt({3*n})")
        e("  s_barrier")
        if "p" in DBG:
            e(f"  s_memtime s[66:67]")
            e("  s_waitcnt lgkmcnt(0)")
        for sp in range(4):
            reads(0, sp, spec)
        for c in range(8):
            if c < 7:
                ng = min(c + 3, 7) - (c + 1)
                e(f"  s_waitcnt vmcnt({ng*n}) lgkmcnt(0)")
                e("  s_barrier")
                if "p" in DBG and c in (0,3,6):
                    e(f"  s_memtime s[{68+2*(0,3,6).index(c)}:{69+2*(0,3,6).index(c)}]")
                    e("  s_waitcnt lgkmcnt(0)")
            else:
                e("  s_waitcnt lgkmcnt(0)")
            rs = 64 * (c % 2)
            for sp in range(4):
                if c < 7:
                    reads(c + 1, sp, spec)
                xf = vXF + rs + 4 * sp
                first = (c == 0 and sp == 0)
                for ct in range(2):
                    wf = vWF + rs + sp * 8 + ct * 4
                    acc = vAcc + 16 * ct
                    cc = "0" if first else vr(acc, 16)
                    if orient == 'T':
                        e(f"  v_mfma_f32_32x32x16_bf16 {vr(acc,16)}, {vr(wf,4)}, {vr(xf,4)}, {cc}")
                    else:
                        e(f"  v_mfma_f32_32x32x16_bf16 {vr(acc,16)}, {vr(xf,4)}, {vr(wf,4)}, {cc}")
                if spec:
                    acc = vAcc + 32
                    sf = vSF + rs + 4 * sp
                    cc = "0" if first else vr(acc, 16)
                    if spec == 'T':
                        e(f"  v_mfma_f32_32x32x16_bf16 {vr(acc,16)}, {vr(sf,4)}, {vr(xf,4)}, {cc}")
                    else:
                        e(f"  v_mfma_f32_32x32x16_bf16 {vr(acc,16)}, {vr(xf,4)}, {vr(sf,4)}, {cc}")
                if c + 4 <= 7:
                    dma_piece(c + 4, dspec, sp)
        e("  s_nop 15")
        if "p" in DBG:
            e("  s_memtime s[74:75]")
            e("  s_waitcnt lgkmcnt(0)")

    def v_store_addr():
        e(f"  v_and_b32 v{t0}, 3, v{vLane}")
        e(f"  v_and_b32 v{t1}, 4, v{vLane}")
        e(f"  v_lshl_or_b32 v{t0}, v{t1}, 1, v{t0}")
        e(f"  v_and_b32 v{t1}, 8, v{vLane}")
        e(f"  v_lshrrev_b32 v{t1}, 1, v{t1}")
        e(f"  v_or_b32 v{t0}, v{t0}, v{t1}              ; m")
        e(f"  v_lshlrev_b32 v{t0}, 4, v{t0}")
        e(f"  v_lshrrev_b32 v{t1}, 5, v{vLane}          ; half")
        e(f"  v_lshl_add_u32 v{t0}, v{t1}, 9, v{t0}")
        e(f"  v_bfe_u32 v{t1}, v{vLane}, 4, 1           ; subhead")
        e(f"  v_lshl_add_u32 v{vSt}, v{t1}, 17, v{t0}")

    def spec_epilogue(kind):
        A = vAcc + 32
        e(f"  s_lshl_b32 s{sOff}, s{sQt}, 11")
        if kind == 'T':
            e(f"  s_add_u32 s{sOff}, s{sOff}, {KV_OFF + 32*131072}")
            e(f"  v_lshlrev_b32 v{t2}, 4, v{vLane}")
            for j in range(4):
                e(f"  v_cvt_pk_bf16_f32 v{vOut+16+j}, v{A+2*j}, v{A+2*j+1}")
            e(f"  buffer_store_dwordx4 {vr(vOut+16,4)}, v{t2}, {sr(rWS,4)}, s{sOff} offen")
        else:
            e(f"  s_add_u32 s{sOff}, s{sOff}, {KV_OFF + 31*131072}")
            v_store_addr()
            for j in range(8):
                e(f"  v_cvt_pk_bf16_f32 v{vOut+16+j}, v{A+2*j}, v{A+2*j+1}")
            e(f"  v_and_b32 v{t0}, 16, v{vLane}")
            e(f"  v_cmp_ne_u32 vcc, 0, v{t0}")
            e(f"  s_and_saveexec_b64 {sr(sEx,2)}, vcc")
            for j in range(2):
                e(f"  buffer_store_dwordx4 {vr(vOut+16+j*4,4)}, v{vSt}, {sr(rWS,4)}, s{sOff} offen offset:{1024+j*256}")
            e(f"  s_mov_b64 exec, {sr(sEx,2)}")

    def variants(o):
        e(f"  s_cmp_ge_u32 s{sSpec}, 8")
        e(f"  s_cbranch_scc1 proj_{o}_plain")
        e(f"  s_cmp_lg_u32 s{sSpec}, s{sWid}")
        e(f"  s_cbranch_scc1 proj_{o}_none")
        e(f"  s_cmp_eq_u32 s{sCG}, 0")
        e(f"  s_cbranch_scc1 proj_{o}_T")
        e(f"proj_{o}_N:")
        mainloop(o, 'N', True)
        spec_epilogue('N')
        e(f"  s_branch proj_{o}_epi")
        e(f"proj_{o}_T:")
        mainloop(o, 'T', True)
        spec_epilogue('T')
        e(f"  s_branch proj_{o}_epi")
        e(f"proj_{o}_none:")
        mainloop(o, None, True)
        e(f"  s_branch proj_{o}_epi")
        e(f"proj_{o}_plain:")
        mainloop(o, None, False)
    e(f"  s_cmp_ge_u32 s{sNB}, 12")
    e("  s_cbranch_scc1 proj_v_sel")
    variants('T')
    e("proj_T_epi:")
    e(f"  s_mov_b32 s{sT1}, {f32bits(SCALE)}")
    e(f"  s_cmp_lt_u32 s{sNB}, 8")
    e(f"  s_cselect_b32 s{sT1}, s{sT1}, 1.0")
    e(f"  s_lshl_b32 s{sT2}, s{sNB}, 3")
    e(f"  s_lshl_b32 s{sT0}, s{sCG}, 2")
    e(f"  s_add_u32 s{sT2}, s{sT2}, s{sT0}")
    e(f"  s_lshl_b32 s{sT2}, s{sT2}, 6")
    e(f"  s_add_u32 s{sT2}, s{sT2}, s{sQt}")
    e(f"  s_lshl_b32 s{sOff}, s{sT2}, 10             ; Q dest")
    e(f"  s_mov_b32 s{sCol}, 65536")
    e(f"  s_cmp_lt_u32 s{sNB}, 8")
    e(f"  s_cbranch_scc1 proj_qk_store")
    e(f"  s_sub_u32 s{sT2}, s{sT2}, {64*64}")
    e(f"  s_lshl_b32 s{sOff}, s{sT2}, 11")
    e(f"  s_add_u32 s{sOff}, s{sOff}, {KV_OFF}")
    e(f"  s_mov_b32 s{sCol}, 131072")
    e("proj_qk_store:")
    e(f"  v_lshlrev_b32 v{vSt}, 4, v{vLane}")
    for hh in range(4):
        for i in range(8):
            e(f"  v_mul_f32 v{vAcc+hh*8+i}, s{sT1}, v{vAcc+hh*8+i}")
        for j in range(4):
            e(f"  v_cvt_pk_bf16_f32 v{vOut+hh*4+j}, v{vAcc+hh*8+2*j}, v{vAcc+hh*8+2*j+1}")
        e(f"  buffer_store_dwordx4 {vr(vOut+hh*4,4)}, v{vSt}, {sr(rWS,4)}, s{sOff} offen")
        if hh < 3:
            e(f"  s_add_u32 s{sOff}, s{sOff}, s{sCol}")
    if "p" in DBG:
        e("  s_waitcnt vmcnt(0)")
        e("  s_memtime s[76:77]")
        e("  s_waitcnt lgkmcnt(0)")
        for i in range(7):
            e(f"  s_sub_u32 s{66+2*i}, s{66+2*i}, s64")
            e(f"  v_mov_b32 v{4+i}, s{66+2*i}")
        e("  v_mov_b32 v11, 0")
        srd(84, 80, 256)
        e(f"  s_lshl_b32 s64, s{sWid}, 5")
        e("  v_mov_b32 v12, s64")
        e("  s_cmp_lg_u32 s2, 40")
        e("  s_cbranch_scc1 proj_done")
        e("  buffer_store_dwordx4 v[4:7], v12, s[84:87], 0 offen")
        e("  buffer_store_dwordx4 v[8:11], v12, s[84:87], 0 offen offset:16")
    e("  s_endpgm")
    e("proj_v_sel:")
    variants('N')
    e("proj_N_epi:")
    v_store_addr()
    e(f"  s_sub_u32 s{sT2}, s{sNB}, 12")
    e(f"  s_lshl_b32 s{sT2}, s{sT2}, 3")
    e(f"  s_lshl_b32 s{sT0}, s{sCG}, 2")
    e(f"  s_add_u32 s{sT2}, s{sT2}, s{sT0}")
    e(f"  s_lshl_b32 s{sT2}, s{sT2}, 6")
    e(f"  s_add_u32 s{sT2}, s{sT2}, s{sQt}")
    e(f"  s_lshl_b32 s{sOff}, s{sT2}, 11")
    e(f"  s_add_u32 s{sOff}, s{sOff}, {KV_OFF+1024}")
    for ct in range(2):
        for j in range(8):
            e(f"  v_cvt_pk_bf16_f32 v{vOut+ct*8+j}, v{vAcc+ct*16+2*j}, v{vAcc+ct*16+2*j+1}")
        for j in range(2):
            e(f"  buffer_store_dwordx4 {vr(vOut+ct*8+j*4,4)}, v{vSt}, {sr(rWS,4)}, s{sOff} offen offset:{j*256}")
        if ct == 0:
            e(f"  s_add_u32 s{sOff}, s{sOff}, {2*131072}")
    e("proj_done:")
    e("  s_endpgm")
    return kernel_desc("proj_kernel", NV, 64 if "p" not in DBG else 96)

def gen_attn():
    kernel_start("attn_kernel")
    sWS = 4; rWS = 8
    sWid, sHB, sBr, sHead, sQt, sT0, sT1, sIt, sThr, sInf, sFlag, sOff = 12, 13, 14, 15, 16, 17, 18, 19, 20, 21, 22, 23
    sMask = 24
    vLane, vAddr, vG, t0, t1, t2, t3 = 1, 2, 3, 4, 5, 6, 7
    vQ = 8
    vK = 12
    vV = 20
    vP = 36
    vO = 52
    vC = 68
    vS = 84
    NV = 120
    e("  s_cmp_ge_u32 s2, 256")
    e("  s_cbranch_scc1 attn_done")
    e("  s_load_dwordx2 s[4:5], s[0:1], 88")
    e("  s_load_dwordx2 s[6:7], s[0:1], 0")
    e("  s_load_dwordx2 s[28:29], s[0:1], 64")
    e("  s_load_dwordx2 s[56:57], s[0:1], 32")
    e("  s_load_dwordx2 s[58:59], s[0:1], 56")
    if "t" in DBG:
        e("  s_load_dwordx2 s[40:41], s[0:1], 80")
        e("  s_memtime s[32:33]")
        e("  s_memrealtime s[34:35]")
    e(f"  v_and_b32 v{vLane}, 63, v0")
    e(f"  v_lshrrev_b32 v{t0}, 6, v0")
    e("  s_nop 0")
    e(f"  v_readfirstlane_b32 s{sWid}, v{t0}")
    e(f"  s_and_b32 s{sT0}, s2, 7")
    e(f"  s_lshr_b32 s{sT1}, s2, 3")
    e(f"  s_lshr_b32 s{sHB}, s{sT1}, 2")
    e(f"  s_lshl_b32 s{sHB}, s{sHB}, 3")
    e(f"  s_add_u32 s{sHB}, s{sHB}, s{sT0}")
    e(f"  s_and_b32 s{sT1}, s{sT1}, 3")
    e(f"  s_lshl_b32 s{sQt}, s{sT1}, 4")
    e(f"  s_add_u32 s{sQt}, s{sQt}, s{sWid}          ; qtile")
    e(f"  s_lshr_b32 s{sBr}, s{sHB}, 5")
    e(f"  s_and_b32 s{sHead}, s{sHB}, 31")
    e("  s_mov_b32 s24, 0x0000ffff")
    e("  s_mov_b32 s25, 0x0000ffff")
    e(f"  s_mov_b32 s{sThr}, {hex(f32bits(2.0**THR))}")
    e(f"  s_mov_b32 s{sInf}, 0x7f800000")
    e(f"  s_mov_b32 s{sFlag}, 0")
    e(f"  v_lshlrev_b32 v{vAddr}, 4, v{vLane}        ; lane*16")
    e(f"  s_cmp_eq_u32 s{sBr}, 1")
    e(f"  s_cselect_b32 s{sT0}, s{sHead}, 32")
    e(f"  s_lshl_b32 s{sT0}, s{sT0}, 17")
    e(f"  s_add_u32 s{sT0}, s{sT0}, {KV_OFF}")
    e(f"  s_lshl_b32 s{sT1}, s{sWid}, 10")
    e(f"  s_add_u32 s{sT0}, s{sT0}, s{sT1}")
    e(f"  s_lshl_b32 s{sOff}, s{sHB}, 6")
    e(f"  s_add_u32 s{sOff}, s{sOff}, s{sQt}")
    e(f"  s_lshl_b32 s{sOff}, s{sOff}, 10")
    e(f"  s_mov_b32 m0, s{sT1}")
    e("  s_waitcnt lgkmcnt(0)")
    srd(rWS, sWS, WS_BYTES)
    e(f"  buffer_load_dwordx4 v{vAddr}, {sr(rWS,4)}, s{sT0} offen lds")
    e(f"  buffer_load_dwordx4 {vr(vQ,4)}, v{vAddr}, {sr(rWS,4)}, s{sOff} offen")
    rXg, rGw = 48, 52
    srd(rXg, 6, 2097152)
    srd(rGw, 28, 1024)
    e(f"  s_lshl_b32 s{sOff}, s2, 3")
    e(f"  s_add_u32 s{sOff}, s{sOff}, s{sWid}         ; token")
    e(f"  s_cmp_ge_u32 s{sWid}, 8")
    e("  s_cbranch_scc1 attn_nogate0")
    e(f"  s_lshl_b32 s{sIt}, s{sOff}, 10")
    e(f"  buffer_load_dwordx4 {vr(vC,4)}, v{vAddr}, {sr(rXg,4)}, s{sIt} offen")
    e(f"  buffer_load_dwordx4 {vr(vC+4,4)}, v{vAddr}, {sr(rGw,4)}, 0 offen")
    e("attn_nogate0:")
    e("  s_barrier")
    for c in range(1, 8):
        e(f"  s_add_u32 s{sT0}, s{sT0}, 16384")
        e(f"  s_add_u32 m0, s{sT1}, {c*16384}")
        e("  s_nop 0")
        e(f"  buffer_load_dwordx4 v{vAddr}, {sr(rWS,4)}, s{sT0} offen lds")
    e(f"  s_cmp_lt_u32 s{sWid}, 8")
    e("  s_cbranch_scc1 attn_nopf")
    e(f"  s_and_b32 s{sT0}, s2, 0xf8")
    e(f"  s_add_u32 s{sT0}, s{sT0}, s{sWid}")
    e(f"  s_sub_u32 s{sT0}, s{sT0}, 8                ; slice 0..255")
    e(f"  s_cmp_lt_u32 s{sT0}, 128")
    e("  s_cselect_b32 s30, s56, s58")
    e("  s_cselect_b32 s31, s57, s59")
    srd(rXg, 30, 512 * 1024)
    e(f"  s_and_b32 s{sT0}, s{sT0}, 127")
    e(f"  s_lshl_b32 s{sT0}, s{sT0}, 12")
    for i in range(4):
        e(f"  buffer_load_dwordx4 {vr(116,4)}, v{vAddr}, {sr(rXg,4)}, s{sT0} offen offset:{i*1024}")
    e("attn_nopf:")
    e(f"  v_and_b32 v{t0}, 31, v{vLane}")
    e(f"  v_and_b32 v{t1}, 27, v{t0}")
    e(f"  v_mov_b32 v{t2}, 0x3f803f80")
    e(f"  v_cmp_eq_u32 vcc, 16, v{t1}")
    e("  s_nop 1")
    e(f"  v_cndmask_b32 v{t2}, 0, v{t2}, vcc")
    for i in range(16):
        e(f"  v_mov_b32 v{vV+i}, v{t2}")
    for i in range(16):
        e(f"  v_mov_b32 v{vO+i}, 0")
    for i in range(8):
        e(f"  v_mov_b32 v{vP+8+i}, 0")
    e(f"  s_cmp_lt_u32 s{sWid}, 8")
    e("  s_cbranch_scc1 attn_w7")
    e("  s_waitcnt vmcnt(11)")
    e("  s_branch attn_w7d")
    e("attn_w7:")
    e("  s_waitcnt vmcnt(7)")
    e("attn_w7d:")
    e("  s_barrier")

    def kread(buf, off):
        e(f"  ds_read_b128 {vr(vK+4*buf,4)}, v{vAddr} offset:{off}")
    def vread(buf, off):
        e(f"  s_mov_b64 exec, {sr(sMask,2)}")
        e(f"  ds_read_b128 {vr(vV+8*buf,4)}, v{vAddr} offset:{off+1024}")
        e(f"  ds_read_b128 {vr(vV+8*buf+4,4)}, v{vAddr} offset:{off+1024+256}")
        e("  s_mov_b64 exec, -1")
    def rowmax(src, dst, tmp):
        e(f"  v_max3_f32 v{dst}, v{src}, v{src+1}, v{src+2}")
        for i in range(3, 15, 2):
            e(f"  v_max3_f32 v{dst}, v{dst}, v{src+i}, v{src+i+1}")
        e(f"  v_max_f32 v{dst}, v{dst}, v{src+15}")
        e(f"  v_mov_b32 v{tmp}, v{dst}")
        e("  s_nop 1")
        e(f"  v_permlane32_swap_b32 v{dst}, v{tmp}")
        e(f"  v_max_f32 v{dst}, v{dst}, v{tmp}")

    kread(0, 0)
    kread(1, 2048)
    e("  s_waitcnt lgkmcnt(0)")
    e(f"  v_mfma_f32_32x32x16_bf16 {vr(vS,16)}, {vr(vK,4)}, {vr(vQ,4)}, 0")
    e(f"  s_cmp_ge_u32 s{sWid}, 8")
    e("  s_cbranch_scc1 attn_nogate2")
    e(f"  v_mov_b32 v{t0}, 0")
    for i in range(4):
        e(f"  v_dot2_f32_bf16 v{t0}, v{vC+i}, v{vC+4+i}, v{t0}")
    e("  s_nop 2")
    for m in (0x041F, 0x081F, 0x101F, 0x201F, 0x401F):
        e(f"  ds_swizzle_b32 v{t1}, v{t0} offset:{hex(m)}")
        e("  s_waitcnt lgkmcnt(0)")
        e(f"  v_add_f32 v{t0}, v{t0}, v{t1}")
    e(f"  v_mov_b32 v{t1}, v{t0}")
    e("  s_nop 1")
    e(f"  v_permlane32_swap_b32 v{t0}, v{t1}")
    e(f"  v_add_f32 v{t0}, v{t0}, v{t1}")
    e(f"  v_cvt_pk_bf16_f32 v{t0}, v{t0}, v{t0}")
    e(f"  v_lshlrev_b32 v{t0}, 16, v{t0}")
    e(f"  v_mul_f32 v{t0}, {hex(f32bits(-1.4426950408889634))}, v{t0}")
    e(f"  v_exp_f32 v{t0}, v{t0}")
    e("  s_nop 0")
    e(f"  v_add_f32 v{t0}, 1.0, v{t0}")
    e(f"  v_rcp_f32 v{t0}, v{t0}")
    e("  s_nop 0")
    e(f"  v_cvt_pk_bf16_f32 v{t0}, v{t0}, v{t0}")
    e(f"  v_lshlrev_b32 v{t0}, 16, v{t0}")
    e(f"  s_lshl_b32 s{sOff}, s{sOff}, 2")
    e(f"  s_add_u32 s{sOff}, s{sOff}, {G_OFF}")
    e(f"  v_mov_b32 v{t1}, 0")
    e("  s_mov_b64 exec, 1")
    e(f"  buffer_store_dword v{t0}, v{t1}, {sr(rWS,4)}, s{sOff} offen")
    e("  s_mov_b64 exec, -1")
    e("attn_nogate2:")
    e("  s_nop 15")
    rowmax(vS, t0, t1)
    e(f"  v_sub_f32 v{t0}, {hex(f32bits(-float(HEAD)))}, v{t0}")
    for i in range(16):
        e(f"  v_mov_b32 v{vC+i}, v{t0}")
    e("  s_nop 1")
    e(f"  v_mfma_f32_32x32x16_bf16 {vr(vS,16)}, {vr(vK,4)}, {vr(vQ,4)}, {vr(vC,16)}")
    e(f"  s_mov_b32 s{sIt}, 0")
    if "t" in DBG:
        e("  s_memtime s[44:45]")
        e("  s_waitcnt lgkmcnt(0)")
    e(f"  s_lshr_b32 s{sT0}, s{sWid}, 2")
    for j in range(1, 4):
        e(f"  s_cmp_eq_u32 s{sT0}, {j}")
        e(f"  s_cbranch_scc1 attn_loop{j}")
    for j in range(4):
        e(".p2align 6")
        e(f"attn_loop{j}:")
        for u in range(8):
            b = u % 2
            S = vS + 16 * b
            Sn = vS + 16 * (1 - b)
            Pp = vP + 8 * (1 - b)
            Vp = vV + 8 * (1 - b)
            if u % 2 == 0 and "P" not in DBG:
                e(f"  s_setprio {(u//2 + j) % 4}")
            if u == 4:
                e(f"  s_cmp_lg_u32 s{sIt}, 0")
                e(f"  s_cbranch_scc1 attn_nobar{j}")
                e("  s_waitcnt vmcnt(0)")
                e("  s_barrier")
                e(f"attn_nobar{j}:")
            e("  s_waitcnt lgkmcnt(2)")
            e(f"  v_mfma_f32_32x32x16_bf16 {vr(Sn,16)}, {vr(vK+4*(1-b),4)}, {vr(vQ,4)}, {vr(vC,16) if 'C' not in DBG else '0'}")
            if "L" not in DBG:
                kread(b, (u + 2) * 2048)
                vread(b, u * 2048)
            for i in range(16):
                if i == 5:
                    e("  s_waitcnt lgkmcnt(3)")
                    e(f"  v_mfma_f32_32x32x16_bf16 {vr(vO,16)}, {vr(Vp,4)}, {vr(Pp,4)}, {vr(vO,16)}")
                if i == 10:
                    e(f"  v_mfma_f32_32x32x16_bf16 {vr(vO,16)}, {vr(Vp+4,4)}, {vr(Pp+4,4)}, {vr(vO,16)}")
                e(f"  v_exp_f32 v{S+i}, v{S+i}")
            for i in range(8):
                e(f"  v_cvt_pk_bf16_f32 v{vP+8*b+i}, v{S+2*i}, v{S+2*i+1}")
            if u == 7:
                e(f"  v_cmp_ngt_f32 vcc, s{sThr}, v{vO+8}")
                e(f"  v_add_u32 v{vAddr}, 16384, v{vAddr}")
                e(f"  s_add_u32 s{sIt}, s{sIt}, 1")
                e(f"  s_cbranch_vccnz attn_rare{j}")
                e(f"attn_rare_ret{j}:")
        e(f"  s_cmp_lt_u32 s{sIt}, 8")
        e(f"  s_cbranch_scc1 attn_loop{j}")
        if j < 3:
            e("  s_branch attn_tail")
    e("attn_tail:")
    e("  s_setprio 0")
    e("  s_waitcnt lgkmcnt(0)")
    e(f"  v_mfma_f32_32x32x16_bf16 {vr(vO,16)}, {vr(vV+8,4)}, {vr(vP+8,4)}, {vr(vO,16)}")
    e(f"  v_mfma_f32_32x32x16_bf16 {vr(vO,16)}, {vr(vV+12,4)}, {vr(vP+12,4)}, {vr(vO,16)}")
    e("  s_nop 15")
    e(f"  v_mov_b32 v{t1}, 0x207")
    e(f"  s_mov_b64 {sr(26,2)}, 0")
    for i in range(9):
        e(f"  v_cmp_class_f32 vcc, v{vO+i}, v{t1}")
        e(f"  s_or_b64 {sr(26,2)}, {sr(26,2)}, vcc")
    e(f"  s_cmp_lg_u64 {sr(26,2)}, 0")
    e(f"  s_cselect_b32 s{sT0}, 1, 0")
    e(f"  s_or_b32 s{sFlag}, s{sFlag}, s{sT0}")
    e(f"  s_cmp_lg_u32 s{sFlag}, 0")
    e("  s_cbranch_scc1 attn_fallback")
    e("attn_epilogue:")
    e(f"  v_rcp_f32 v{t0}, v{vO+8}")
    e("  s_nop 0")
    for i in range(8):
        e(f"  v_mul_f32 v{vO+i}, v{vO+i}, v{t0}")
    for i in range(4):
        e(f"  v_cvt_pk_bf16_f32 v{vP+i}, v{vO+2*i}, v{vO+2*i+1}")
    e(f"  s_lshl_b32 s{sT0}, s{sBr}, 6")
    e(f"  s_add_u32 s{sT0}, s{sT0}, s{sQt}")
    e(f"  s_lshl_b32 s{sT0}, s{sT0}, 5")
    e(f"  s_add_u32 s{sT0}, s{sT0}, s{sHead}")
    e(f"  s_lshl_b32 s{sT0}, s{sT0}, 10")
    e(f"  s_add_u32 s{sT0}, s{sT0}, {OF_OFF}")
    e(f"  v_lshlrev_b32 v{t1}, 4, v{vLane}")
    e(f"  buffer_store_dwordx4 {vr(vP,4)}, v{t1}, {sr(rWS,4)}, s{sT0} offen")
    if "t" in DBG:
        e("  s_memtime s[36:37]")
        e("  s_memrealtime s[38:39]")
        e("  s_waitcnt lgkmcnt(0)")
        e("  s_sub_u32 s36, s36, s32")
        e("  s_sub_u32 s38, s38, s34")
        e("  s_sub_u32 s37, s44, s32")
        srd(28, 40, 256)
        e("  v_mov_b32 v4, s36")
        e("  v_mov_b32 v5, s38")
        e("  v_mov_b32 v6, s37")
        e("  v_mov_b32 v7, 0")
        e(f"  s_lshl_b32 s36, s{sWid}, 4")
        e("  v_mov_b32 v8, s36")
        e("  s_cmp_lg_u32 s2, 100")
        e("  s_cbranch_scc1 attn_done")
        e("  buffer_store_dwordx4 v[4:7], v8, s[28:31], 0 offen")
    e("attn_done:")
    e("  s_endpgm")

    for j in range(4):
        e(f"attn_rare{j}:")
        e(f"  s_mov_b32 s{sT1}, {j}")
        if j < 3:
            e("  s_branch attn_rare")
    e("attn_rare:")
    e(f"  v_cmp_ngt_f32 vcc, s{sInf}, v{vO+8}")
    e("  s_cbranch_vccz attn_rare_ok")
    e(f"  s_mov_b32 s{sFlag}, 1")
    e("  s_branch attn_rare_back")
    e("attn_rare_ok:")
    e(f"  v_frexp_exp_i32_f32 v{t0}, v{vO+8}")
    e(f"  v_add_u32 v{t0}, {HEAD}, v{t0}")
    e(f"  v_sub_u32 v{t1}, 0, v{t0}")
    e(f"  v_cvt_f32_i32 v{t0}, v{t0}")
    for i in range(9):
        e(f"  v_ldexp_f32 v{vO+i}, v{vO+i}, v{t1}")
    for i in range(8):
        e(f"  v_lshlrev_b32 v{t2}, 16, v{vP+8+i}")
        e(f"  v_and_b32 v{t3}, 0xffff0000, v{vP+8+i}")
        e(f"  v_ldexp_f32 v{t2}, v{t2}, v{t1}")
        e(f"  v_ldexp_f32 v{t3}, v{t3}, v{t1}")
        e(f"  v_cvt_pk_bf16_f32 v{vP+8+i}, v{t2}, v{t3}")
    for i in range(16):
        e(f"  v_sub_f32 v{vS+i}, v{vS+i}, v{t0}")
    for i in range(16):
        e(f"  v_sub_f32 v{vC+i}, v{vC+i}, v{t0}")
    e("attn_rare_back:")
    for j in range(3):
        e(f"  s_cmp_eq_u32 s{sT1}, {j}")
        e(f"  s_cbranch_scc1 attn_rare_ret{j}")
    e("  s_branch attn_rare_ret3")

    e("attn_fallback:")
    e(f"  v_lshlrev_b32 v{vAddr}, 4, v{vLane}")
    for i in range(16):
        e(f"  v_mov_b32 v{vO+i}, 0")
    e(f"  v_mov_b32 v{vG}, 0xff7fffff")
    e(f"  s_mov_b32 s{sIt}, 0")
    e("attn_fb_loop:")
    kread(0, 0)
    vread(0, 0)
    e("  s_waitcnt lgkmcnt(0)")
    e(f"  v_mfma_f32_32x32x16_bf16 {vr(vS,16)}, {vr(vK,4)}, {vr(vQ,4)}, 0")
    e("  s_nop 15")
    e("  s_nop 3")
    rowmax(vS, t0, t1)
    e(f"  v_max_f32 v{t0}, v{t0}, v{vG}             ; m_new")
    e(f"  v_sub_f32 v{t1}, v{vG}, v{t0}")
    e(f"  v_exp_f32 v{t1}, v{t1}                    ; alpha")
    e(f"  v_mov_b32 v{vG}, v{t0}")
    for i in range(16):
        e(f"  v_sub_f32 v{vS+i}, v{vS+i}, v{t0}")
    for i in range(16):
        e(f"  v_exp_f32 v{vS+i}, v{vS+i}")
    for i in range(9):
        e(f"  v_mul_f32 v{vO+i}, v{vO+i}, v{t1}")
    for i in range(8):
        e(f"  v_cvt_pk_bf16_f32 v{vP+i}, v{vS+2*i}, v{vS+2*i+1}")
    e("  s_nop 1")
    e(f"  v_mfma_f32_32x32x16_bf16 {vr(vO,16)}, {vr(vV,4)}, {vr(vP,4)}, {vr(vO,16)}")
    e(f"  v_mfma_f32_32x32x16_bf16 {vr(vO,16)}, {vr(vV+4,4)}, {vr(vP+4,4)}, {vr(vO,16)}")
    e(f"  v_add_u32 v{vAddr}, 2048, v{vAddr}")
    e("  s_nop 15")
    e("  s_nop 3")
    e(f"  s_add_u32 s{sIt}, s{sIt}, 1")
    e(f"  s_cmp_lt_u32 s{sIt}, 64")
    e("  s_cbranch_scc1 attn_fb_loop")
    e("  s_branch attn_epilogue")
    return kernel_desc("attn_kernel", NV, 64)

def gen_outp():
    kernel_start("outp_kernel")
    sWA, sWB, sOut, sWS = 4, 6, 8, 10
    rW, rOut, rWS = 12, 20, 24
    sWid, sNB, sTBk, sBr, sTT, sCT, sT0, sT1, sQt, sWo, sM, sOo = 28, 29, 30, 31, 32, 33, 34, 35, 36, 37, 38, 39
    vLane, vWo, vA0, vA1, vG, vOa, t0, t1, t2, t3 = 1, 2, 3, 4, 5, 6, 7, 8, 9, 10
    vWF = 12
    vAcc = 76
    vB = 92
    vOF = 108
    NV = 236
    e("  s_cmp_ge_u32 s2, 256")
    e("  s_cbranch_scc1 outp_done")
    e("  s_load_dwordx2 s[4:5], s[0:1], 32")
    e("  s_load_dwordx2 s[6:7], s[0:1], 56")
    e("  s_load_dwordx2 s[8:9], s[0:1], 72")
    e("  s_load_dwordx2 s[10:11], s[0:1], 88")
    e(f"  v_and_b32 v{vLane}, 63, v0")
    e(f"  v_lshrrev_b32 v{t0}, 6, v0")
    e("  s_nop 0")
    e(f"  v_readfirstlane_b32 s{sWid}, v{t0}")
    e(f"  s_and_b32 s{sT0}, s2, 7")
    e(f"  s_lshl_b32 s{sT0}, s{sT0}, 2")
    e(f"  s_bfe_u32 s{sT1}, s2, 0x20003")
    e(f"  s_add_u32 s{sTBk}, s{sT0}, s{sT1}")
    e(f"  s_lshr_b32 s{sNB}, s2, 5")
    e(f"  s_lshr_b32 s{sBr}, s{sWid}, 2")
    e(f"  s_bfe_u32 s{sTT}, s{sWid}, 0x10001")
    e(f"  s_and_b32 s{sCT}, s{sWid}, 1")
    e(f"  s_lshl_b32 s{sQt}, s{sTBk}, 1")
    e(f"  s_add_u32 s{sQt}, s{sQt}, s{sTT}")
    e(f"  v_lshrrev_b32 v{t0}, 3, v{vLane}          ; l/8")
    e(f"  v_and_b32 v{t1}, 7, v{vLane}")
    e(f"  v_bfe_u32 v{t2}, v{vLane}, 4, 1           ; (row>>1)&1")
    e(f"  v_lshlrev_b32 v{t2}, 2, v{t2}")
    e(f"  v_xor_b32 v{t1}, v{t1}, v{t2}")
    e(f"  v_lshlrev_b32 v{t1}, 4, v{t1}")
    e(f"  v_lshl_add_u32 v{vWo}, v{t0}, 10, v{t1}")
    e(f"  v_lshlrev_b32 v{vOa}, 4, v{vLane}")
    e("  s_waitcnt lgkmcnt(0)")
    e(f"  s_cmp_eq_u32 s{sBr}, 0")
    e(f"  s_cselect_b32 s{sT0}, s{sWA}, s{sWB}")
    e(f"  s_cselect_b32 s{sT1}, s{sWA+1}, s{sWB+1}")
    srd(rW, sT0, 512 * 1024)
    srd(rOut, sOut, 2097152)
    srd(rWS, sWS, WS_BYTES)
    e(f"  s_and_b32 s{sT0}, s{sWid}, 3")
    e(f"  s_lshl_b32 s{sWo}, s{sT0}, 15              ; q*32 rows * 1024")
    e(f"  s_lshl_b32 s{sT1}, s{sNB}, 7")
    e(f"  s_add_u32 s{sWo}, s{sWo}, s{sT1}")
    e(f"  s_lshl_b32 s{sM}, s{sT0}, 12               ; q*32 rows * 128")
    e(f"  s_lshl_b32 s{sT1}, s{sBr}, 16")
    e(f"  s_add_u32 s{sM}, s{sM}, s{sT1}")
    e(f"  s_lshl_b32 s{sOo}, s{sBr}, 6")
    e(f"  s_add_u32 s{sOo}, s{sOo}, s{sQt}")
    e(f"  s_lshl_b32 s{sOo}, s{sOo}, 15")
    e(f"  s_add_u32 s{sOo}, s{sOo}, {OF_OFF}")
    for c in range(4):
        for i in range(4):
            e(f"  s_add_u32 m0, s{sM}, {c*16384 + i*1024}")
            e(f"  s_add_u32 s{sT0}, s{sWo}, {c*131072 + i*8192}")
            e(f"  buffer_load_dwordx4 v{vWo}, {sr(rW,4)}, s{sT0} offen lds")
        for s_ in range(8 * c, 8 * c + 8):
            e(f"  buffer_load_dwordx4 {vr(vOF+4*s_,4)}, v{vOa}, {sr(rWS,4)}, s{sOo} offen offset:{(s_%4)*1024}")
            if s_ % 4 == 3:
                e(f"  s_add_u32 s{sOo}, s{sOo}, 4096")
    e(f"  v_and_b32 v{t0}, 31, v{vLane}")
    e(f"  v_lshlrev_b32 v{t0}, 2, v{t0}")
    e(f"  s_lshl_b32 s{sT0}, s{sQt}, 7")
    e(f"  s_add_u32 s{sT0}, s{sT0}, {G_OFF}")
    e(f"  buffer_load_dword v{vG}, v{t0}, {sr(rWS,4)}, s{sT0} offen")
    tr_addr(vA0, vA1, vLane, t0, t1, t2, t3, True)
    e(f"  s_lshl_b32 s{sT0}, s{sCT}, 6")
    e(f"  v_xor_b32 v{vA0}, s{sT0}, v{vA0}")
    e(f"  s_lshl_b32 s{sT0}, s{sBr}, 16")
    e(f"  v_add_u32 v{vA0}, s{sT0}, v{vA0}")
    e(f"  v_add_u32 v{vA1}, 32768, v{vA0}")
    def wread(s_):
        rs = 32 * ((s_ // 8) % 2) + 4 * (s_ % 8)
        for u in range(2):
            e(f"  ds_read_b64_tr_b16 {vr(vWF+rs+u*2,2)}, v{vA0 if s_ < 16 else vA1} offset:{(s_%16)*2048+u*512}")
    e(f"  s_waitcnt vmcnt({3*12+1+8})")
    e("  s_barrier")
    for s_ in range(8):
        wread(s_)
    for c in range(4):
        if c < 3:
            e(f"  s_waitcnt vmcnt({(2-c)*12+1+8}) lgkmcnt(0)")
            e("  s_barrier")
        else:
            e("  s_waitcnt vmcnt(0) lgkmcnt(0)")
        for k in range(8):
            s_ = 8 * c + k
            if c < 3:
                wread(s_ + 8)
            cc = "0" if s_ == 0 else vr(vAcc, 16)
            rs = 32 * (c % 2) + 4 * k
            e(f"  v_mfma_f32_32x32x16_bf16 {vr(vAcc,16)}, {vr(vWF+rs,4)}, {vr(vOF+4*s_,4)}, {cc}")
    e("  s_nop 15")
    e(f"  s_and_b32 s{sT0}, s{sWid}, 3")
    e(f"  s_lshl_b32 s{sT0}, s{sT0}, 12")
    e(f"  s_add_u32 s{sT0}, s{sT0}, 131072")
    e(f"  v_add_u32 v{t0}, s{sT0}, v{vOa}")
    e(f"  s_cmp_eq_u32 s{sBr}, 0")
    e("  s_cbranch_scc1 outp_a")
    for q in range(4):
        e(f"  ds_write_b128 v{t0}, {vr(vAcc+4*q,4)} offset:{q*1024}")
    e("  s_waitcnt lgkmcnt(0)")
    e("  s_barrier")
    e("  s_endpgm")
    e("outp_a:")
    vOm = t1
    e(f"  v_sub_f32 v{vOm}, 1.0, v{vG}")
    e(f"  v_cvt_pk_bf16_f32 v{vOm}, v{vOm}, v{vOm}")
    e(f"  v_lshlrev_b32 v{vOm}, 16, v{vOm}")
    e(f"  s_mov_b32 s{sT1}, 0xffff0000")
    def round_pair(x0, x1, tmp):
        e(f"  v_cvt_pk_bf16_f32 v{tmp}, v{x0}, v{x1}")
        e(f"  v_lshlrev_b32 v{x0}, 16, v{tmp}")
        e(f"  v_and_b32 v{x1}, s{sT1}, v{tmp}")
    for i in range(0, 16, 2):
        round_pair(vAcc + i, vAcc + i + 1, t2)
        e(f"  v_mul_f32 v{vAcc+i}, v{vG}, v{vAcc+i}")
        e(f"  v_mul_f32 v{vAcc+i+1}, v{vG}, v{vAcc+i+1}")
        round_pair(vAcc + i, vAcc + i + 1, t2)
    e("  s_barrier")
    for q in range(4):
        e(f"  ds_read_b128 {vr(vB+4*q,4)}, v{t0} offset:{q*1024}")
    e(f"  v_and_b32 v{t0}, 31, v{vLane}")
    e(f"  v_lshlrev_b32 v{t0}, 10, v{t0}")
    e(f"  v_lshrrev_b32 v{t2}, 5, v{vLane}")
    e(f"  v_lshl_add_u32 v{t0}, v{t2}, 5, v{t0}")
    e(f"  s_lshl_b32 s{sT0}, s{sQt}, 15")
    e(f"  s_lshl_b32 s{sWo}, s{sNB}, 7")
    e(f"  s_add_u32 s{sT0}, s{sT0}, s{sWo}")
    e(f"  s_lshl_b32 s{sWo}, s{sCT}, 6")
    e(f"  s_add_u32 s{sT0}, s{sT0}, s{sWo}")
    e("  s_waitcnt lgkmcnt(0)")
    for i in range(0, 16, 2):
        round_pair(vB + i, vB + i + 1, t2)
        e(f"  v_mul_f32 v{vB+i}, v{vOm}, v{vB+i}")
        e(f"  v_mul_f32 v{vB+i+1}, v{vOm}, v{vB+i+1}")
        round_pair(vB + i, vB + i + 1, t2)
        e(f"  v_add_f32 v{vAcc+i}, v{vAcc+i}, v{vB+i}")
        e(f"  v_add_f32 v{vAcc+i+1}, v{vAcc+i+1}, v{vB+i+1}")
        e(f"  v_cvt_pk_bf16_f32 v{vOF+i//2}, v{vAcc+i}, v{vAcc+i+1}")
        if i == 6:
            e(f"  buffer_store_dwordx4 {vr(vOF,4)}, v{t0}, {sr(rOut,4)}, s{sT0} offen")
    e(f"  buffer_store_dwordx4 {vr(vOF+4,4)}, v{t0}, {sr(rOut,4)}, s{sT0} offen offset:16")
    e("outp_done:")
    e("  s_endpgm")
    return kernel_desc("outp_kernel", NV, 48)

descs = []
descs.append(gen_proj())
descs.append(gen_attn())
descs.append(gen_outp())
if "r" in DBG:
    import re
    L4 = []
    kidx = -1
    for ln in L:
        st = ln.strip()
        if st.endswith("_kernel:"):
            kidx += 1
            B = 124 if "attn" in st else 250
            L4.append(ln)
            L4.append("  s_memrealtime s[90:91]")
            L4.append("  s_load_dwordx2 s[92:93], s[0:1], 88")
            L4.append(f"  v_mov_b32 v{B}, v0")
            continue
        if st == "s_endpgm":
            L4.append("  s_waitcnt vmcnt(0) lgkmcnt(0)")
            L4.append("  s_memrealtime s[94:95]")
            L4.append("  s_mov_b32 s96, s92")
            L4.append("  s_and_b32 s97, s93, 0xffff")
            L4.append("  s_mov_b32 s98, 268435456")
            L4.append("  s_mov_b32 s99, 0x00020000")
            L4.append("  s_waitcnt lgkmcnt(0)")
            L4.append(f"  v_mov_b32 v{B+2}, s90")
            L4.append(f"  v_mov_b32 v{B+3}, s94")
            L4.append(f"  v_lshrrev_b32 v{B+1}, 6, v{B}")
            L4.append(f"  v_lshlrev_b32 v{B+1}, 3, v{B+1}")
            L4.append(f"  s_lshl_b32 s90, s2, 7")
            L4.append(f"  s_add_u32 s90, s90, {(20<<20) + kidx*65536}")
            L4.append("  s_mov_b64 exec, 1")
            L4.append(f"  buffer_store_dwordx2 v[{B+2}:{B+3}], v{B+1}, s[96:99], s90 offen")
        L4.append(ln)
    L[:] = L4
    def fix(d):
        n = 128 if "attn" in d else 256
        d = re.sub(r"next_free_vgpr \d+", f"next_free_vgpr {n}", d)
        d = re.sub(r"accum_offset \d+", f"accum_offset {n}", d)
        return re.sub(r"next_free_sgpr \d+", "next_free_sgpr 102", d)
    descs[:] = [fix(d) for d in descs]
L3 = []
for ln in L:
    if ln.strip().startswith("buffer_store_dwordx4") and ("s[28:31]" in ln or "s[8:11]" in ln) and "v[4:7], v8" not in ln:
        ln = ln + " sc0 sc1"
    L3.append(ln)
L[:] = L3
STF = os.environ.get("STF", "")
if STF:
    L2 = []
    for ln in L:
        if ln.strip().startswith("buffer_store_dwordx4"):
            if STF == "skip":
                continue
            ln = ln + " " + STF
        L2.append(ln)
    L[:] = L2
text = HEADER + "\n".join(L) + "\n" + '.section .rodata,"a"\n' + "".join(descs)
open(OUT, "w").write(text)
print("wrote", OUT, len(text), "bytes")
```

```python
import sys, struct, os
DBG = os.environ.get("DBG","")

OUT = sys.argv[1] if len(sys.argv) > 1 else "gated_mix__grouped_kv_mqa__mha_block__prompt.s"

def f32bits(x):
    return struct.unpack("<I", struct.pack("<f", x))[0]

QF_OFF = 0
KV_OFF = 4 << 20
OF_OFF = 12 << 20
G_OFF  = 16 << 20
WS_BYTES = 268435456
SCALE = 0.25 * 1.4426950408889634
THR = int(os.environ.get("THR", "64"))
HEAD = int(os.environ.get("HEAD", "40"))

L = []
def e(s=""):
    L.append(s)
def vr(b, n=1):
    return f"v{b}" if n == 1 else f"v[{b}:{b+n-1}]"
def sr(b, n=1):
    return f"s{b}" if n == 1 else f"s[{b}:{b+n-1}]"

def srd(dst, base, nbytes):
    e(f"  s_mov_b32 s{dst}, s{base}")
    e(f"  s_and_b32 s{dst+1}, s{base+1}, 0xffff")
    e(f"  s_mov_b32 s{dst+2}, {nbytes}")
    e(f"  s_mov_b32 s{dst+3}, 0x00020000")

HEADER = """; Kernarg layout for this problem (96 bytes, ptrs only, base s[0:1]):
; @launch kernel=proj_kernel grid=(256,1,1) block=(512,1,1) lds=147456
; @launch kernel=attn_kernel grid=(256,1,1) block=(512,1,1) lds=135168
; @launch kernel=outp_kernel grid=(256,1,1) block=(512,1,1) lds=147456
.amdgcn_target "amdgcn-amd-amdhsa--gfx950"
.text
"""

def kernel_start(name):
    e(f".globl {name}")
    e(".p2align 8")
    e(f".type {name},@function")
    e(f"{name}:")

def kernel_desc(name, nvgpr, nsgpr):
    acc = (nvgpr + 3) // 4 * 4
    return f""".p2align 6
.amdhsa_kernel {name}
  .amdhsa_next_free_vgpr {nvgpr}
  .amdhsa_next_free_sgpr {nsgpr}
  .amdhsa_accum_offset {acc}
  .amdhsa_group_segment_fixed_size 0
  .amdhsa_kernarg_size 96
  .amdhsa_user_sgpr_count 2
  .amdhsa_user_sgpr_kernarg_segment_ptr 1
  .amdhsa_system_sgpr_workgroup_id_x 1
.end_amdhsa_kernel
"""

def tr_addr(vA0, vA1, vlane, t0, t1, t2, t3, perm):
    e(f"  v_lshrrev_b32 v{t0}, 4, v{vlane}          ; g")
    e(f"  v_and_b32 v{t1}, 1, v{t0}                 ; g%2")
    e(f"  v_lshrrev_b32 v{t0}, 1, v{t0}             ; h")
    e(f"  v_bfe_u32 v{t2}, v{vlane}, 2, 2           ; r")
    e(f"  v_lshl_add_u32 v{t0}, v{t0}, 3, v{t2}     ; 8h + r")
    e(f"  v_lshlrev_b32 v{t0}, 7, v{t0}             ; *128")
    e(f"  v_and_b32 v{t3}, 3, v{vlane}              ; c")
    e(f"  v_lshl_add_u32 v{t1}, v{t1}, 2, v{t3}     ; mc=(g%2)*4+c")
    if perm:
        e(f"  v_and_b32 v{t3}, 1, v{t1}")
        e(f"  v_lshrrev_b32 v{t1}, 1, v{t1}")
        e(f"  v_lshl_add_u32 v{t1}, v{t3}, 2, v{t1}     ; nc = 4*(mc%2)+mc/2")
    e(f"  v_and_b32 v{t3}, 1, v{t1}")
    e(f"  v_lshl_add_u32 v{t0}, v{t3}, 3, v{t0}     ; + (nc%2)*8")
    e(f"  v_lshrrev_b32 v{t1}, 1, v{t1}")
    e(f"  v_lshrrev_b32 v{t2}, 1, v{t2}             ; (r>>1)&1")
    e(f"  v_lshlrev_b32 v{t2}, 2, v{t2}")
    e(f"  v_xor_b32 v{t1}, v{t1}, v{t2}")
    e(f"  v_lshl_add_u32 v{vA0}, v{t1}, 4, v{t0}")
    e(f"  v_xor_b32 v{vA1}, 64, v{vA0}")

def gen_proj():
    kernel_start("proj_kernel")
    STG = 36864
    sX, sWQ, sWK, sWV, sWQKV, sWS = 4, 6, 8, 10, 12, 16
    rX, rW, rWS, rS = 20, 24, 28, 32
    sNB, sTB, sT0, sT1, sT2, sPitch, sCol, sWid = 40, 41, 42, 43, 44, 45, 46, 47
    sEx = 48
    sOff, sTT, sCG, sSpec, sXo, sWo, sM, sQt = 50, 51, 52, 53, 54, 55, 56, 57
    sC, sSo, sMS = 58, 59, 60
    sSMask = 36
    e("  s_cmp_ge_u32 s2, 256")
    e("  s_cbranch_scc1 proj_done")
    e("  s_load_dwordx4 s[4:7], s[0:1], 0")
    e("  s_load_dwordx4 s[8:11], s[0:1], 16")
    e("  s_load_dwordx2 s[12:13], s[0:1], 48")
    e("  s_load_dwordx2 s[16:17], s[0:1], 88")
    if "p" in DBG:
        e("  s_load_dwordx2 s[80:81], s[0:1], 80")
        e("  s_memtime s[64:65]")
    e(f"  s_and_b32 s{sT0}, s2, 3")
    e(f"  s_lshl_b32 s{sT0}, s{sT0}, 2")
    e(f"  s_bfe_u32 s{sT1}, s2, 0x20003")
    e(f"  s_add_u32 s{sTB}, s{sT0}, s{sT1}")
    e(f"  s_bfe_u32 s{sT0}, s2, 0x10002")
    e(f"  s_lshl_b32 s{sT0}, s{sT0}, 3")
    e(f"  s_lshr_b32 s{sT1}, s2, 5")
    e(f"  s_add_u32 s{sNB}, s{sT0}, s{sT1}")
    vLane = 1; vXo0 = 2; vXo1 = 3; vWo = 4; vSt = 5; vSo = 6
    t0, t1, t2, t3 = 8, 9, 10, 11
    vXA = 12
    vWA = 20
    vSA = 24
    vXF = 28
    vWF = 44
    vSF = 76
    vAcc = 156
    vOut = 28
    NV = 204
    e(f"  v_and_b32 v{vLane}, 63, v0")
    e(f"  v_lshrrev_b32 v{t0}, 6, v0")
    e("  s_nop 0")
    e(f"  v_readfirstlane_b32 s{sWid}, v{t0}")
    e(f"  s_sub_u32 s{sSpec}, s{sNB}, s{sTB}")
    e(f"  s_and_b32 s{sSpec}, s{sSpec}, 15")
    e(f"  s_and_b32 s{sTT}, s{sWid}, 3")
    e(f"  s_lshr_b32 s{sCG}, s{sWid}, 2")
    e(f"  s_lshl_b32 s{sQt}, s{sTB}, 2")
    e(f"  s_add_u32 s{sQt}, s{sQt}, s{sTT}")
    e(f"  v_lshrrev_b32 v{t0}, 3, v{vLane}          ; l/8")
    e(f"  v_lshrrev_b32 v{t1}, 4, v{vLane}          ; l/16")
    e(f"  v_and_b32 v{t2}, 7, v{vLane}")
    if "z" not in DBG:
        e(f"  v_xor_b32 v{t2}, v{t2}, v{t1}")
    e(f"  v_lshlrev_b32 v{t2}, 4, v{t2}")
    e(f"  v_lshl_add_u32 v{vXo0}, v{t0}, 10, v{t2}")
    e(f"  v_xor_b32 v{vXo1}, 64, v{vXo0}")
    e(f"  v_add_u32 v{vXo1}, 8192, v{vXo1}")
    e(f"  v_lshrrev_b32 v{t0}, 2, v{vLane}")
    e(f"  v_and_b32 v{t2}, 1, v{vLane}")
    e(f"  v_lshlrev_b32 v{t2}, 4, v{t2}")
    e(f"  v_lshl_add_u32 v{vSo}, v{t0}, 5, v{t2}")
    e(f"  v_and_b32 v{t2}, 15, v{vLane}")
    e(f"  v_lshlrev_b32 v{t3}, 2, v{t1}")
    if "z" not in DBG:
        e(f"  v_xor_b32 v{t2}, v{t2}, v{t3}")
    e(f"  v_lshlrev_b32 v{t2}, 4, v{t2}")
    e("  s_waitcnt lgkmcnt(0)")
    if "p" in DBG:
        e("  s_memtime s[78:79]")
        e("  s_waitcnt lgkmcnt(0)")
    srd(rX, sX, 2097152)
    srd(rWS, sWS, WS_BYTES)
    e(f"  s_cmp_lt_u32 s{sNB}, 4")
    e("  s_cbranch_scc1 proj_wq")
    srd(rW, sWQKV, 512 * 3072)
    e(f"  s_sub_u32 s{sCol}, s{sNB}, 4")
    e(f"  s_lshl_b32 s{sCol}, s{sCol}, 8")
    e(f"  s_mov_b32 s{sPitch}, 3072")
    e("  s_branch proj_wcommon")
    e("proj_wq:")
    srd(rW, sWQ, 512 * 1024)
    e(f"  s_lshl_b32 s{sCol}, s{sNB}, 8")
    e(f"  s_mov_b32 s{sPitch}, 1024")
    e("proj_wcommon:")
    e(f"  v_mul_lo_u32 v{vWo}, v{t1}, s{sPitch}")
    e(f"  v_add_u32 v{vWo}, v{vWo}, v{t2}")
    e(f"  s_lshl_b32 s{sXo}, s{sTB}, 17")
    e(f"  s_lshl_b32 s{sT0}, s{sWid}, 14")
    e(f"  s_add_u32 s{sXo}, s{sXo}, s{sT0}")
    e(f"  s_lshl_b32 s{sT0}, s{sWid}, 3")
    e(f"  s_mul_i32 s{sWo}, s{sT0}, s{sPitch}")
    e(f"  s_add_u32 s{sWo}, s{sWo}, s{sCol}")
    e(f"  s_lshl_b32 s{sM}, s{sWid}, 11")
    e(f"  s_lshl_b32 s{sT2}, s{sPitch}, 2            ; 4*pitch")
    e(f"  s_lshl_b32 s{sPitch}, s{sPitch}, 6")
    e(f"  s_bfe_u32 s{sC}, s2, 0x30003")
    e(f"  s_bitcmp1_b32 s{sWid}, 0")
    e(f"  s_cselect_b32 s{sT0}, s{sWV}, s{sWK}")
    e(f"  s_cselect_b32 s{sT1}, s{sWV+1}, s{sWK+1}")
    e(f"  s_mov_b32 s{sSMask}, 0x33333333")
    e(f"  s_cselect_b32 s{sSMask}, 0xcccccccc, s{sSMask}")
    e(f"  s_mov_b32 s{sSMask+1}, s{sSMask}")
    srd(rS, sT0, 512 * 32)
    e(f"  s_lshr_b32 s{sT0}, s{sWid}, 1")
    e(f"  s_lshl_b32 s{sSo}, s{sT0}, 9               ; 16 rows * 32B")
    e(f"  s_lshl_b32 s{sMS}, s{sT0}, 10")

    def dma_piece(c, spec, i):
        st = (c % 4) * STG
        if i == 0:
            e(f"  s_lshl_b32 s{sT0}, s{sC}, 7")
            e(f"  s_add_u32 s{sT0}, s{sT0}, s{sXo}")
            e(f"  s_add_u32 m0, s{sM}, {st}")
            e(f"  s_mul_i32 s{sT1}, s{sC}, s{sPitch}")
            e(f"  buffer_load_dwordx4 v{vXo0}, {sr(rX,4)}, s{sT0} offen lds")
        elif i == 1:
            e(f"  s_add_u32 m0, s{sM}, {st+1024}")
            e(f"  s_add_u32 s{sT1}, s{sT1}, s{sWo}")
            e(f"  buffer_load_dwordx4 v{vXo1}, {sr(rX,4)}, s{sT0} offen lds")
        elif i == 2:
            e(f"  s_add_u32 m0, s{sM}, {st+16384}")
            e(f"  s_add_u32 s{sT0}, s{sT1}, s{sT2}")
            e(f"  buffer_load_dwordx4 v{vWo}, {sr(rW,4)}, s{sT1} offen lds")
        else:
            e(f"  s_add_u32 m0, s{sM}, {st+16384+1024}")
            e(f"  s_lshl_b32 s{sT1}, s{sC}, 11")
            e(f"  buffer_load_dwordx4 v{vWo}, {sr(rW,4)}, s{sT0} offen lds")
            if spec:
                e(f"  s_add_u32 m0, s{sMS}, {st+32768}")
                e(f"  s_add_u32 s{sT1}, s{sT1}, s{sSo}")
                e(f"  s_mov_b64 exec, {sr(sSMask,2)}")
                e(f"  buffer_load_dwordx4 v{vSo}, {sr(rS,4)}, s{sT1} offen lds")
                e("  s_mov_b64 exec, -1")
            e(f"  s_add_u32 s{sC}, s{sC}, 1")
            e(f"  s_and_b32 s{sC}, s{sC}, 7")
    def dma(c, spec):
        for i in range(4):
            dma_piece(c, spec, i)

    def addr_setup():
        e(f"  v_and_b32 v{t0}, 31, v{vLane}")
        e(f"  v_lshrrev_b32 v{t1}, 5, v{vLane}          ; h")
        e(f"  v_bfe_u32 v{t2}, v{vLane}, 1, 3           ; (row>>1)&7")
        e(f"  v_xor_b32 v{t1}, v{t1}, v{t2}")
        e(f"  v_lshlrev_b32 v{t1}, 4, v{t1}")
        e(f"  v_lshl_add_u32 v{t0}, v{t0}, 7, v{t1}")
        e(f"  s_lshl_b32 s{sOff}, s{sTT}, 12")
        e(f"  v_add_u32 v{t0}, s{sOff}, v{t0}")
        for sp in range(4):
            e(f"  v_xor_b32 v{vXA+sp}, {sp*32}, v{t0}")
            e(f"  v_add_u32 v{vXA+4+sp}, {2*STG}, v{vXA+sp}")
        e(f"  v_lshrrev_b32 v{t0}, 5, v{vLane}          ; h")
        e(f"  v_bfe_u32 v{t1}, v{vLane}, 2, 2           ; r")
        e(f"  v_lshl_add_u32 v{t0}, v{t0}, 3, v{t1}     ; 8h+r")
        e(f"  v_bfe_u32 v{t2}, v{vLane}, 4, 1           ; g%2")
        e(f"  v_and_b32 v{t3}, 3, v{vLane}              ; c")
        e(f"  v_lshl_add_u32 v{t2}, v{t2}, 2, v{t3}     ; nc")
        e(f"  v_lshlrev_b32 v{t2}, 3, v{t2}             ; nc*8")
        e(f"  v_lshl_add_u32 v{vSA}, v{t0}, 6, v{t2}")
        e(f"  v_add_u32 v{vSA}, 32768, v{vSA}")
        e(f"  v_add_u32 v{vSA+1}, {2*STG}, v{vSA}")
        e(f"  v_lshl_add_u32 v{t0}, v{t0}, 8, v{t2}     ; k*256 + nc*8")
        e(f"  s_lshl_b32 s{sOff}, s{sCG}, 1")
        e(f"  v_xor_b32 v{t1}, s{sOff}, v{t1}           ; (2cg) ^ r")
        e(f"  v_lshl_add_u32 v{t0}, v{t1}, 6, v{t0}")
        e(f"  v_add_u32 v{vWA}, 16384, v{t0}")
        e(f"  v_xor_b32 v{vWA+1}, 64, v{vWA}")
        e(f"  v_add_u32 v{vWA+2}, {2*STG}, v{vWA}")
        e(f"  v_add_u32 v{vWA+3}, {2*STG}, v{vWA+1}")

    def reads(c, sp, spec):
        st = c % 4
        so = (st % 2) * STG
        hi = st // 2
        rs = 64 * (c % 2)
        e(f"  ds_read_b128 {vr(vXF+rs+4*sp,4)}, v{vXA+sp+4*hi} offset:{so}")
        for ct in range(2):
            for u in range(2):
                e(f"  ds_read_b64_tr_b16 {vr(vWF+rs+sp*8+ct*4+u*2,2)}, v{vWA+2*hi+ct} offset:{so+(16*sp+4*u)*256}")
        if spec:
            for u in range(2):
                e(f"  ds_read_b64_tr_b16 {vr(vSF+rs+sp*4+u*2,2)}, v{vSA+hi} offset:{so+(16*sp+4*u)*64}")

    def mainloop(orient, spec, dspec):
        n = 5 if dspec else 4
        for c in range(4):
            dma(c, dspec)
        addr_setup()
        e(f"  s_waitcnt vmcnt({3*n})")
        e("  s_barrier")
        if "p" in DBG:
            e(f"  s_memtime s[66:67]")
            e("  s_waitcnt lgkmcnt(0)")
        for sp in range(4):
            reads(0, sp, spec)
        for c in range(8):
            if c < 7:
                ng = min(c + 3, 7) - (c + 1)
                e(f"  s_waitcnt vmcnt({ng*n}) lgkmcnt(0)")
                e("  s_barrier")
                if "p" in DBG and c in (0,3,6):
                    e(f"  s_memtime s[{68+2*(0,3,6).index(c)}:{69+2*(0,3,6).index(c)}]")
                    e("  s_waitcnt lgkmcnt(0)")
            else:
                e("  s_waitcnt lgkmcnt(0)")
            rs = 64 * (c % 2)
            for sp in range(4):
                if c < 7:
                    reads(c + 1, sp, spec)
                xf = vXF + rs + 4 * sp
                first = (c == 0 and sp == 0)
                for ct in range(2):
                    wf = vWF + rs + sp * 8 + ct * 4
                    acc = vAcc + 16 * ct
                    cc = "0" if first else vr(acc, 16)
                    if orient == 'T':
                        e(f"  v_mfma_f32_32x32x16_bf16 {vr(acc,16)}, {vr(wf,4)}, {vr(xf,4)}, {cc}")
                    else:
                        e(f"  v_mfma_f32_32x32x16_bf16 {vr(acc,16)}, {vr(xf,4)}, {vr(wf,4)}, {cc}")
                if spec:
                    acc = vAcc + 32
                    sf = vSF + rs + 4 * sp
                    cc = "0" if first else vr(acc, 16)
                    if spec == 'T':
                        e(f"  v_mfma_f32_32x32x16_bf16 {vr(acc,16)}, {vr(sf,4)}, {vr(xf,4)}, {cc}")
                    else:
                        e(f"  v_mfma_f32_32x32x16_bf16 {vr(acc,16)}, {vr(xf,4)}, {vr(sf,4)}, {cc}")
                if c + 4 <= 7:
                    dma_piece(c + 4, dspec, sp)
        e("  s_nop 15")
        if "p" in DBG:
            e("  s_memtime s[74:75]")
            e("  s_waitcnt lgkmcnt(0)")

    def v_store_addr():
        e(f"  v_and_b32 v{t0}, 3, v{vLane}")
        e(f"  v_and_b32 v{t1}, 4, v{vLane}")
        e(f"  v_lshl_or_b32 v{t0}, v{t1}, 1, v{t0}")
        e(f"  v_and_b32 v{t1}, 8, v{vLane}")
        e(f"  v_lshrrev_b32 v{t1}, 1, v{t1}")
        e(f"  v_or_b32 v{t0}, v{t0}, v{t1}              ; m")
        e(f"  v_lshlrev_b32 v{t0}, 4, v{t0}")
        e(f"  v_lshrrev_b32 v{t1}, 5, v{vLane}          ; half")
        e(f"  v_lshl_add_u32 v{t0}, v{t1}, 9, v{t0}")
        e(f"  v_bfe_u32 v{t1}, v{vLane}, 4, 1           ; subhead")
        e(f"  v_lshl_add_u32 v{vSt}, v{t1}, 17, v{t0}")

    def spec_epilogue(kind):
        A = vAcc + 32
        e(f"  s_lshl_b32 s{sOff}, s{sQt}, 11")
        if kind == 'T':
            e(f"  s_add_u32 s{sOff}, s{sOff}, {KV_OFF + 32*131072}")
            e(f"  v_lshlrev_b32 v{t2}, 4, v{vLane}")
            for j in range(4):
                e(f"  v_cvt_pk_bf16_f32 v{vOut+16+j}, v{A+2*j}, v{A+2*j+1}")
            e(f"  buffer_store_dwordx4 {vr(vOut+16,4)}, v{t2}, {sr(rWS,4)}, s{sOff} offen")
        else:
            e(f"  s_add_u32 s{sOff}, s{sOff}, {KV_OFF + 31*131072}")
            v_store_addr()
            for j in range(8):
                e(f"  v_cvt_pk_bf16_f32 v{vOut+16+j}, v{A+2*j}, v{A+2*j+1}")
            e(f"  v_and_b32 v{t0}, 16, v{vLane}")
            e(f"  v_cmp_ne_u32 vcc, 0, v{t0}")
            e(f"  s_and_saveexec_b64 {sr(sEx,2)}, vcc")
            for j in range(2):
                e(f"  buffer_store_dwordx4 {vr(vOut+16+j*4,4)}, v{vSt}, {sr(rWS,4)}, s{sOff} offen offset:{1024+j*256}")
            e(f"  s_mov_b64 exec, {sr(sEx,2)}")

    def variants(o):
        e(f"  s_cmp_ge_u32 s{sSpec}, 8")
        e(f"  s_cbranch_scc1 proj_{o}_plain")
        e(f"  s_cmp_lg_u32 s{sSpec}, s{sWid}")
        e(f"  s_cbranch_scc1 proj_{o}_none")
        e(f"  s_cmp_eq_u32 s{sCG}, 0")
        e(f"  s_cbranch_scc1 proj_{o}_T")
        e(f"proj_{o}_N:")
        mainloop(o, 'N', True)
        spec_epilogue('N')
        e(f"  s_branch proj_{o}_epi")
        e(f"proj_{o}_T:")
        mainloop(o, 'T', True)
        spec_epilogue('T')
        e(f"  s_branch proj_{o}_epi")
        e(f"proj_{o}_none:")
        mainloop(o, None, True)
        e(f"  s_branch proj_{o}_epi")
        e(f"proj_{o}_plain:")
        mainloop(o, None, False)
    e(f"  s_cmp_ge_u32 s{sNB}, 12")
    e("  s_cbranch_scc1 proj_v_sel")
    variants('T')
    e("proj_T_epi:")
    e(f"  s_mov_b32 s{sT1}, {f32bits(SCALE)}")
    e(f"  s_cmp_lt_u32 s{sNB}, 8")
    e(f"  s_cselect_b32 s{sT1}, s{sT1}, 1.0")
    e(f"  s_lshl_b32 s{sT2}, s{sNB}, 3")
    e(f"  s_lshl_b32 s{sT0}, s{sCG}, 2")
    e(f"  s_add_u32 s{sT2}, s{sT2}, s{sT0}")
    e(f"  s_lshl_b32 s{sT2}, s{sT2}, 6")
    e(f"  s_add_u32 s{sT2}, s{sT2}, s{sQt}")
    e(f"  s_lshl_b32 s{sOff}, s{sT2}, 10             ; Q dest")
    e(f"  s_mov_b32 s{sCol}, 65536")
    e(f"  s_cmp_lt_u32 s{sNB}, 8")
    e(f"  s_cbranch_scc1 proj_qk_store")
    e(f"  s_sub_u32 s{sT2}, s{sT2}, {64*64}")
    e(f"  s_lshl_b32 s{sOff}, s{sT2}, 11")
    e(f"  s_add_u32 s{sOff}, s{sOff}, {KV_OFF}")
    e(f"  s_mov_b32 s{sCol}, 131072")
    e("proj_qk_store:")
    e(f"  v_lshlrev_b32 v{vSt}, 4, v{vLane}")
    for hh in range(4):
        for i in range(8):
            e(f"  v_mul_f32 v{vAcc+hh*8+i}, s{sT1}, v{vAcc+hh*8+i}")
        for j in range(4):
            e(f"  v_cvt_pk_bf16_f32 v{vOut+hh*4+j}, v{vAcc+hh*8+2*j}, v{vAcc+hh*8+2*j+1}")
        e(f"  buffer_store_dwordx4 {vr(vOut+hh*4,4)}, v{vSt}, {sr(rWS,4)}, s{sOff} offen")
        if hh < 3:
            e(f"  s_add_u32 s{sOff}, s{sOff}, s{sCol}")
    if "p" in DBG:
        e("  s_waitcnt vmcnt(0)")
        e("  s_memtime s[76:77]")
        e("  s_waitcnt lgkmcnt(0)")
        for i in range(7):
            e(f"  s_sub_u32 s{66+2*i}, s{66+2*i}, s64")
            e(f"  v_mov_b32 v{4+i}, s{66+2*i}")
        e("  v_mov_b32 v11, 0")
        srd(84, 80, 256)
        e(f"  s_lshl_b32 s64, s{sWid}, 5")
        e("  v_mov_b32 v12, s64")
        e("  s_cmp_lg_u32 s2, 40")
        e("  s_cbranch_scc1 proj_done")
        e("  buffer_store_dwordx4 v[4:7], v12, s[84:87], 0 offen")
        e("  buffer_store_dwordx4 v[8:11], v12, s[84:87], 0 offen offset:16")
    e("  s_endpgm")
    e("proj_v_sel:")
    variants('N')
    e("proj_N_epi:")
    v_store_addr()
    e(f"  s_sub_u32 s{sT2}, s{sNB}, 12")
    e(f"  s_lshl_b32 s{sT2}, s{sT2}, 3")
    e(f"  s_lshl_b32 s{sT0}, s{sCG}, 2")
    e(f"  s_add_u32 s{sT2}, s{sT2}, s{sT0}")
    e(f"  s_lshl_b32 s{sT2}, s{sT2}, 6")
    e(f"  s_add_u32 s{sT2}, s{sT2}, s{sQt}")
    e(f"  s_lshl_b32 s{sOff}, s{sT2}, 11")
    e(f"  s_add_u32 s{sOff}, s{sOff}, {KV_OFF+1024}")
    for ct in range(2):
        for j in range(8):
            e(f"  v_cvt_pk_bf16_f32 v{vOut+ct*8+j}, v{vAcc+ct*16+2*j}, v{vAcc+ct*16+2*j+1}")
        for j in range(2):
            e(f"  buffer_store_dwordx4 {vr(vOut+ct*8+j*4,4)}, v{vSt}, {sr(rWS,4)}, s{sOff} offen offset:{j*256}")
        if ct == 0:
            e(f"  s_add_u32 s{sOff}, s{sOff}, {2*131072}")
    e("proj_done:")
    e("  s_endpgm")
    return kernel_desc("proj_kernel", NV, 64 if "p" not in DBG else 96)

def gen_attn():
    kernel_start("attn_kernel")
    sWS = 4; rWS = 8
    sWid, sHB, sBr, sHead, sQt, sT0, sT1, sIt, sThr, sInf, sFlag, sOff = 12, 13, 14, 15, 16, 17, 18, 19, 20, 21, 22, 23
    sMask = 24
    vLane, vAddr, vG, t0, t1, t2, t3 = 1, 2, 3, 4, 5, 6, 7
    vK = 8
    vV = 16
    vQ = [32, 36]
    vP = [40, 56]
    vO = [72, 88]
    vC = [104, 120]
    vS = [136, 168]
    vX = 200
    NV = 216
    e("  s_cmp_ge_u32 s2, 256")
    e("  s_cbranch_scc1 attn_done")
    e("  s_load_dwordx2 s[4:5], s[0:1], 88")
    e("  s_load_dwordx2 s[6:7], s[0:1], 0")
    e("  s_load_dwordx2 s[28:29], s[0:1], 64")
    e("  s_load_dwordx2 s[56:57], s[0:1], 32")
    e("  s_load_dwordx2 s[58:59], s[0:1], 56")
    if "t" in DBG:
        e("  s_load_dwordx2 s[40:41], s[0:1], 80")
        e("  s_memtime s[32:33]")
        e("  s_memrealtime s[34:35]")
    e(f"  v_and_b32 v{vLane}, 63, v0")
    e(f"  v_lshrrev_b32 v{t0}, 6, v0")
    e("  s_nop 0")
    e(f"  v_readfirstlane_b32 s{sWid}, v{t0}")
    e(f"  s_and_b32 s{sT0}, s2, 7")
    e(f"  s_lshr_b32 s{sT1}, s2, 3")
    e(f"  s_lshr_b32 s{sHB}, s{sT1}, 2")
    e(f"  s_lshl_b32 s{sHB}, s{sHB}, 3")
    e(f"  s_add_u32 s{sHB}, s{sHB}, s{sT0}")
    e(f"  s_and_b32 s{sT1}, s{sT1}, 3")
    e(f"  s_lshl_b32 s{sQt}, s{sT1}, 4")
    e(f"  s_lshl_b32 s{sT0}, s{sWid}, 1")
    e(f"  s_add_u32 s{sQt}, s{sQt}, s{sT0}")
    e(f"  s_lshr_b32 s{sBr}, s{sHB}, 5")
    e(f"  s_and_b32 s{sHead}, s{sHB}, 31")
    e("  s_mov_b32 s24, 0x0000ffff")
    e("  s_mov_b32 s25, 0x0000ffff")
    e(f"  s_mov_b32 s{sThr}, {hex(f32bits(2.0**THR))}")
    e(f"  s_mov_b32 s{sInf}, 0x7f800000")
    e(f"  s_mov_b32 s{sFlag}, 0")
    e(f"  v_lshlrev_b32 v{vAddr}, 4, v{vLane}        ; lane*16")
    e(f"  s_cmp_eq_u32 s{sBr}, 1")
    e(f"  s_cselect_b32 s{sT0}, s{sHead}, 32")
    e(f"  s_lshl_b32 s{sT0}, s{sT0}, 17")
    e(f"  s_add_u32 s{sT0}, s{sT0}, {KV_OFF}")
    e(f"  s_lshl_b32 s{sT1}, s{sWid}, 11")
    e(f"  s_add_u32 s{sT0}, s{sT0}, s{sT1}")
    e(f"  s_lshl_b32 s{sOff}, s{sHB}, 6")
    e(f"  s_add_u32 s{sOff}, s{sOff}, s{sQt}")
    e(f"  s_lshl_b32 s{sOff}, s{sOff}, 10")
    e(f"  s_mov_b32 m0, s{sT1}")
    e("  s_waitcnt lgkmcnt(0)")
    srd(rWS, sWS, WS_BYTES)
    e(f"  buffer_load_dwordx4 v{vAddr}, {sr(rWS,4)}, s{sT0} offen lds")
    e(f"  buffer_load_dwordx4 v{vAddr}, {sr(rWS,4)}, s{sT0} offen offset:1024 lds")
    e(f"  buffer_load_dwordx4 {vr(vQ[0],4)}, v{vAddr}, {sr(rWS,4)}, s{sOff} offen")
    e(f"  buffer_load_dwordx4 {vr(vQ[1],4)}, v{vAddr}, {sr(rWS,4)}, s{sOff} offen offset:1024")
    rXg, rGw = 48, 52
    srd(rXg, 6, 2097152)
    srd(rGw, 28, 1024)
    e("  s_barrier")
    def kvdma(c):
        e(f"  s_add_u32 s{sT0}, s{sT0}, 16384")
        e(f"  s_add_u32 m0, s{sT1}, {c*16384}")
        e("  s_nop 0")
        e(f"  buffer_load_dwordx4 v{vAddr}, {sr(rWS,4)}, s{sT0} offen lds")
        e(f"  buffer_load_dwordx4 v{vAddr}, {sr(rWS,4)}, s{sT0} offen offset:1024 lds")
    kvdma(1)
    e(f"  v_and_b32 v{t0}, 31, v{vLane}")
    e(f"  v_and_b32 v{t1}, 27, v{t0}")
    e(f"  v_mov_b32 v{t2}, 0x3f803f80")
    e(f"  v_cmp_eq_u32 vcc, 16, v{t1}")
    e("  s_nop 1")
    e(f"  v_cndmask_b32 v{t2}, 0, v{t2}, vcc")
    for i in range(16):
        e(f"  v_mov_b32 v{vV+i}, v{t2}")
    for z in range(2):
        for i in range(16):
            e(f"  v_mov_b32 v{vO[z]+i}, 0")
        for i in range(8):
            e(f"  v_mov_b32 v{vP[z]+8+i}, 0")
    e("  s_waitcnt vmcnt(2)")
    e("  s_barrier")

    def kread(buf, off):
        e(f"  ds_read_b128 {vr(vK+4*buf,4)}, v{vAddr} offset:{off}")
    def vread(buf, off):
        e(f"  s_mov_b64 exec, {sr(sMask,2)}")
        e(f"  ds_read_b128 {vr(vV+8*buf,4)}, v{vAddr} offset:{off+1024}")
        e(f"  ds_read_b128 {vr(vV+8*buf+4,4)}, v{vAddr} offset:{off+1024+256}")
        e("  s_mov_b64 exec, -1")
    def rowmax(src, dst, tmp):
        e(f"  v_max3_f32 v{dst}, v{src}, v{src+1}, v{src+2}")
        for i in range(3, 15, 2):
            e(f"  v_max3_f32 v{dst}, v{dst}, v{src+i}, v{src+i+1}")
        e(f"  v_max_f32 v{dst}, v{dst}, v{src+15}")
        e(f"  v_mov_b32 v{tmp}, v{dst}")
        e("  s_nop 1")
        e(f"  v_permlane32_swap_b32 v{dst}, v{tmp}")
        e(f"  v_max_f32 v{dst}, v{dst}, v{tmp}")

    kread(0, 0)
    kread(1, 2048)
    e("  s_waitcnt lgkmcnt(0)")
    for z in range(2):
        e(f"  v_mfma_f32_32x32x16_bf16 {vr(vS[z],16)}, {vr(vK,4)}, {vr(vQ[z],4)}, 0")
    for c in range(2, 8):
        kvdma(c)
    for z in range(2):
        rowmax(vS[z], t0, t1)
        e(f"  v_sub_f32 v{t0}, {hex(f32bits(-float(HEAD)))}, v{t0}")
        for i in range(16):
            e(f"  v_mov_b32 v{vC[z]+i}, v{t0}")
        e("  s_nop 1")
        e(f"  v_mfma_f32_32x32x16_bf16 {vr(vS[z],16)}, {vr(vK,4)}, {vr(vQ[z],4)}, {vr(vC[z],16)}")
    e(f"  s_mov_b32 s{sIt}, 0")
    if "t" in DBG:
        e("  s_memtime s[44:45]")
        e("  s_waitcnt lgkmcnt(0)")
    e(f"  s_cmp_ge_u32 s{sWid}, 4")
    e(f"  s_cbranch_scc1 attn_loop1")
    for j in range(2):
        e(".p2align 6")
        e(f"attn_loop{j}:")
        for u in range(8):
            b = u % 2
            Vp = vV + 8 * (1 - b)
            if "P" not in DBG:
                PR = os.environ.get("PRIO", "f")
                if PR == "a": pr = (u + j) % 2
                elif PR == "b": pr = 0 if j == 0 else (u % 2)
                elif PR == "c": pr = 0 if j == 0 else (1 if u % 4 != 3 else 0)
                elif PR == "d": pr = 0 if j == 0 else (1 if (u // 2) % 2 else 0)
                elif PR == "e": pr = 0 if j == 0 else (1 if u % 4 == 0 else 0)
                elif PR == "f": pr = 0 if j == 0 else (1 if u != 7 else 0)
                elif PR == "g": pr = j
                elif PR == "h": pr = (1 if u == 0 else 0) if j == 0 else (1 if u != 7 else 0)
                e(f"  s_setprio {pr}")
            if u == 4:
                e(f"  s_cmp_lg_u32 s{sIt}, 0")
                e(f"  s_cbranch_scc1 attn_nobar{j}")
                e("  s_waitcnt vmcnt(0)")
                e("  s_barrier")
                e(f"  v_lshlrev_b32 v{t0}, 4, v{vLane}")
                e(f"  s_and_b32 s{sT0}, s2, 0xf8")
                e(f"  s_add_u32 s{sT0}, s{sT0}, s{sWid}          ; slice 0..255")
                e(f"  s_cmp_lt_u32 s{sT0}, 128")
                e("  s_cselect_b32 s30, s56, s58")
                e("  s_cselect_b32 s31, s57, s59")
                srd(60, 30, 512 * 1024)
                e(f"  s_and_b32 s{sT0}, s{sT0}, 127")
                e(f"  s_lshl_b32 s{sT0}, s{sT0}, 12")
                for i in range(4):
                    e(f"  buffer_load_dwordx4 {vr(vX,4)}, v{t0}, s[60:63], s{sT0} offen offset:{i*1024}")
                if j == 0:
                    e(f"  s_lshl_b32 s{sOff}, s2, 3")
                    e(f"  s_lshl_b32 s{sT0}, s{sWid}, 1")
                    e(f"  s_add_u32 s{sOff}, s{sOff}, s{sT0}")
                    e(f"  s_lshl_b32 s{sT0}, s{sOff}, 10")
                    e(f"  buffer_load_dwordx4 {vr(vX+4,4)}, v{t0}, {sr(rXg,4)}, s{sT0} offen")
                    e(f"  buffer_load_dwordx4 {vr(vX+8,4)}, v{t0}, {sr(rXg,4)}, s{sT0} offen offset:1024")
                    e(f"  buffer_load_dwordx4 {vr(vX+12,4)}, v{t0}, {sr(rGw,4)}, 0 offen")
                e(f"attn_nobar{j}:")
            e("  s_waitcnt lgkmcnt(2)")
            mf = []
            for z in range(2):
                mf.append(f"  v_mfma_f32_32x32x16_bf16 {vr(vS[z]+16*(1-b),16)}, {vr(vK+4*(1-b),4)}, {vr(vQ[z],4)}, {vr(vC[z],16)}")
            for z in range(2):
                Pp = vP[z] + 8 * (1 - b)
                mf.append(f"  v_mfma_f32_32x32x16_bf16 {vr(vO[z],16)}, {vr(Vp,4)}, {vr(Pp,4)}, {vr(vO[z],16)}")
                mf.append(f"  v_mfma_f32_32x32x16_bf16 {vr(vO[z],16)}, {vr(Vp+4,4)}, {vr(Pp+4,4)}, {vr(vO[z],16)}")
            va = []
            for z in range(2):
                S = vS[z] + 16 * b
                for i in range(16):
                    va.append(f"  v_exp_f32 v{S+i}, v{S+i}")
                for i in range(8):
                    va.append(f"  v_cvt_pk_bf16_f32 v{vP[z]+8*b+i}, v{S+2*i}, v{S+2*i+1}")
            pos = [0, 5, 11, 17, 27, 33]
            for i, v in enumerate(va):
                while pos and pos[0] == i:
                    k = 6 - len(pos)
                    if k == 2:
                        e("  s_waitcnt lgkmcnt(3)")
                    e(mf[k])
                    if k == 1:
                        if "L" not in DBG:
                            kread(b, (u + 2) * 2048)
                            vread(b, u * 2048)
                    pos.pop(0)
                e(v)
            if u == 7:
                e(f"  v_cmp_ngt_f32 vcc, s{sThr}, v{vO[0]+8}")
                e(f"  v_cmp_ngt_f32 s[26:27], s{sThr}, v{vO[1]+8}")
                e(f"  v_add_u32 v{vAddr}, 16384, v{vAddr}")
                e(f"  s_add_u32 s{sIt}, s{sIt}, 1")
                e("  s_or_b64 vcc, vcc, s[26:27]")
                e(f"  s_cbranch_vccnz attn_rare{j}")
                e(f"attn_rare_ret{j}:")
        e(f"  s_cmp_lt_u32 s{sIt}, 8")
        e(f"  s_cbranch_scc1 attn_loop{j}")
        if j < 1:
            e("  s_branch attn_tail")
    e("attn_tail:")
    e("  s_setprio 0")
    e("  s_waitcnt lgkmcnt(0)")
    for z in range(2):
        e(f"  v_mfma_f32_32x32x16_bf16 {vr(vO[z],16)}, {vr(vV+8,4)}, {vr(vP[z]+8,4)}, {vr(vO[z],16)}")
        e(f"  v_mfma_f32_32x32x16_bf16 {vr(vO[z],16)}, {vr(vV+12,4)}, {vr(vP[z]+12,4)}, {vr(vO[z],16)}")
    e("  s_nop 15")
    e(f"  v_mov_b32 v{t1}, 0x207")
    e(f"  s_mov_b64 {sr(26,2)}, 0")
    for z in range(2):
        for i in range(9):
            e(f"  v_cmp_class_f32 vcc, v{vO[z]+i}, v{t1}")
            e(f"  s_or_b64 {sr(26,2)}, {sr(26,2)}, vcc")
    e(f"  s_cmp_lg_u64 {sr(26,2)}, 0")
    e(f"  s_cselect_b32 s{sT0}, 1, 0")
    e(f"  s_or_b32 s{sFlag}, s{sFlag}, s{sT0}")
    e(f"  s_cmp_lg_u32 s{sFlag}, 0")
    e("  s_cbranch_scc1 attn_fallback")
    e("attn_epilogue:")
    e(f"  s_lshl_b32 s{sT0}, s{sBr}, 6")
    e(f"  s_add_u32 s{sT0}, s{sT0}, s{sQt}")
    e(f"  s_lshl_b32 s{sT0}, s{sT0}, 5")
    e(f"  s_add_u32 s{sT0}, s{sT0}, s{sHead}")
    e(f"  s_lshl_b32 s{sT0}, s{sT0}, 10")
    e(f"  s_add_u32 s{sT0}, s{sT0}, {OF_OFF}")
    e(f"  v_lshlrev_b32 v{t1}, 4, v{vLane}")
    for z in range(2):
        e(f"  v_rcp_f32 v{t0}, v{vO[z]+8}")
        e("  s_nop 0")
        for i in range(8):
            e(f"  v_mul_f32 v{vO[z]+i}, v{vO[z]+i}, v{t0}")
        for i in range(4):
            e(f"  v_cvt_pk_bf16_f32 v{vP[z]+i}, v{vO[z]+2*i}, v{vO[z]+2*i+1}")
        e(f"  buffer_store_dwordx4 {vr(vP[z],4)}, v{t1}, {sr(rWS,4)}, s{sT0} offen")
        if z == 0:
            e(f"  s_add_u32 s{sT0}, s{sT0}, 32768")
    e(f"  s_cmp_ge_u32 s{sWid}, 4")
    e("  s_cbranch_scc1 attn_nogate")
    e("  s_waitcnt vmcnt(2)")
    e(f"  v_mov_b32 v{t0}, 0")
    e(f"  v_mov_b32 v{t2}, 0")
    for i in range(4):
        e(f"  v_dot2_f32_bf16 v{t0}, v{vX+4+i}, v{vX+12+i}, v{t0}")
        e(f"  v_dot2_f32_bf16 v{t2}, v{vX+8+i}, v{vX+12+i}, v{t2}")
    e("  s_nop 2")
    for m in (0x041F, 0x081F, 0x101F, 0x201F, 0x401F):
        e(f"  ds_swizzle_b32 v{t1}, v{t0} offset:{hex(m)}")
        e(f"  ds_swizzle_b32 v{t3}, v{t2} offset:{hex(m)}")
        e("  s_waitcnt lgkmcnt(0)")
        e(f"  v_add_f32 v{t0}, v{t0}, v{t1}")
        e(f"  v_add_f32 v{t2}, v{t2}, v{t3}")
    e("  s_nop 1")
    e(f"  v_permlane32_swap_b32 v{t0}, v{t2}")
    e(f"  v_add_f32 v{t0}, v{t0}, v{t2}")
    e(f"  v_cvt_pk_bf16_f32 v{t0}, v{t0}, v{t0}")
    e(f"  v_lshlrev_b32 v{t0}, 16, v{t0}")
    e(f"  v_mul_f32 v{t0}, {hex(f32bits(-1.4426950408889634))}, v{t0}")
    e(f"  v_exp_f32 v{t0}, v{t0}")
    e("  s_nop 0")
    e(f"  v_add_f32 v{t0}, 1.0, v{t0}")
    e(f"  v_rcp_f32 v{t0}, v{t0}")
    e("  s_nop 0")
    e(f"  v_cvt_pk_bf16_f32 v{t0}, v{t0}, v{t0}")
    e(f"  v_lshlrev_b32 v{t0}, 16, v{t0}")
    e(f"  s_lshl_b32 s{sOff}, s{sOff}, 2")
    e(f"  s_add_u32 s{sOff}, s{sOff}, {G_OFF}")
    e(f"  v_lshrrev_b32 v{t1}, 5, v{vLane}")
    e(f"  v_lshlrev_b32 v{t1}, 2, v{t1}")
    e("  s_mov_b32 exec_lo, 1")
    e("  s_mov_b32 exec_hi, 1")
    e(f"  buffer_store_dword v{t0}, v{t1}, {sr(rWS,4)}, s{sOff} offen")
    e("  s_mov_b64 exec, -1")
    e("attn_nogate:")
    if "t" in DBG:
        e("  s_memtime s[36:37]")
        e("  s_memrealtime s[38:39]")
        e("  s_waitcnt lgkmcnt(0)")
        e("  s_sub_u32 s36, s36, s32")
        e("  s_sub_u32 s38, s38, s34")
        e("  s_sub_u32 s37, s44, s32")
        srd(28, 40, 256)
        e("  v_mov_b32 v4, s36")
        e("  v_mov_b32 v5, s38")
        e("  v_mov_b32 v6, s37")
        e("  v_mov_b32 v7, 0")
        e(f"  s_lshl_b32 s36, s{sWid}, 4")
        e("  v_mov_b32 v8, s36")
        e("  s_cmp_lg_u32 s2, 100")
        e("  s_cbranch_scc1 attn_done")
        e("  buffer_store_dwordx4 v[4:7], v8, s[28:31], 0 offen")
    e("attn_done:")
    e("  s_endpgm")

    e("attn_rare0:")
    e(f"  s_mov_b32 s{sT1}, 0")
    e("  s_branch attn_rare")
    e("attn_rare1:")
    e(f"  s_mov_b32 s{sT1}, 1")
    e("attn_rare:")
    e(f"  v_cmp_ngt_f32 vcc, s{sInf}, v{vO[0]+8}")
    e(f"  v_cmp_ngt_f32 s[26:27], s{sInf}, v{vO[1]+8}")
    e("  s_or_b64 vcc, vcc, s[26:27]")
    e("  s_cbranch_vccz attn_rare_ok")
    e(f"  s_mov_b32 s{sFlag}, 1")
    e("  s_branch attn_rare_back")
    e("attn_rare_ok:")
    for z in range(2):
        e(f"  v_frexp_exp_i32_f32 v{t0}, v{vO[z]+8}")
        e(f"  v_add_u32 v{t0}, {HEAD}, v{t0}")
        e(f"  v_sub_u32 v{t1}, 0, v{t0}")
        e(f"  v_cvt_f32_i32 v{t0}, v{t0}")
        for i in range(9):
            e(f"  v_ldexp_f32 v{vO[z]+i}, v{vO[z]+i}, v{t1}")
        for i in range(8):
            e(f"  v_lshlrev_b32 v{t2}, 16, v{vP[z]+8+i}")
            e(f"  v_and_b32 v{t3}, 0xffff0000, v{vP[z]+8+i}")
            e(f"  v_ldexp_f32 v{t2}, v{t2}, v{t1}")
            e(f"  v_ldexp_f32 v{t3}, v{t3}, v{t1}")
            e(f"  v_cvt_pk_bf16_f32 v{vP[z]+8+i}, v{t2}, v{t3}")
        for i in range(16):
            e(f"  v_sub_f32 v{vS[z]+i}, v{vS[z]+i}, v{t0}")
        for i in range(16):
            e(f"  v_sub_f32 v{vC[z]+i}, v{vC[z]+i}, v{t0}")
    e("attn_rare_back:")
    e(f"  s_cmp_eq_u32 s{sT1}, 0")
    e(f"  s_cbranch_scc1 attn_rare_ret0")
    e("  s_branch attn_rare_ret1")

    e("attn_fallback:")
    for z in range(2):
        e(f"  v_lshlrev_b32 v{vAddr}, 4, v{vLane}")
        for i in range(16):
            e(f"  v_mov_b32 v{vO[z]+i}, 0")
        e(f"  v_mov_b32 v{vG}, 0xff7fffff")
        e(f"  s_mov_b32 s{sIt}, 0")
        e(f"attn_fb_loop{z}:")
        kread(0, 0)
        vread(0, 0)
        e("  s_waitcnt lgkmcnt(0)")
        S = vS[z]
        e(f"  v_mfma_f32_32x32x16_bf16 {vr(S,16)}, {vr(vK,4)}, {vr(vQ[z],4)}, 0")
        e("  s_nop 15")
        e("  s_nop 3")
        rowmax(S, t0, t1)
        e(f"  v_max_f32 v{t0}, v{t0}, v{vG}             ; m_new")
        e(f"  v_sub_f32 v{t1}, v{vG}, v{t0}")
        e(f"  v_exp_f32 v{t1}, v{t1}                    ; alpha")
        e(f"  v_mov_b32 v{vG}, v{t0}")
        for i in range(16):
            e(f"  v_sub_f32 v{S+i}, v{S+i}, v{t0}")
        for i in range(16):
            e(f"  v_exp_f32 v{S+i}, v{S+i}")
        for i in range(9):
            e(f"  v_mul_f32 v{vO[z]+i}, v{vO[z]+i}, v{t1}")
        for i in range(8):
            e(f"  v_cvt_pk_bf16_f32 v{vP[z]+i}, v{S+2*i}, v{S+2*i+1}")
        e("  s_nop 1")
        e(f"  v_mfma_f32_32x32x16_bf16 {vr(vO[z],16)}, {vr(vV,4)}, {vr(vP[z],4)}, {vr(vO[z],16)}")
        e(f"  v_mfma_f32_32x32x16_bf16 {vr(vO[z],16)}, {vr(vV+4,4)}, {vr(vP[z]+4,4)}, {vr(vO[z],16)}")
        e(f"  v_add_u32 v{vAddr}, 2048, v{vAddr}")
        e("  s_nop 15")
        e("  s_nop 3")
        e(f"  s_add_u32 s{sIt}, s{sIt}, 1")
        e(f"  s_cmp_lt_u32 s{sIt}, 64")
        e(f"  s_cbranch_scc1 attn_fb_loop{z}")
    e("  s_branch attn_epilogue")
    return kernel_desc("attn_kernel", NV, 64)

def gen_outp():
    kernel_start("outp_kernel")
    sWA, sWB, sOut, sWS = 4, 6, 8, 10
    rW, rOut, rWS = 12, 20, 24
    sWid, sNB, sTBk, sBr, sTT, sCT, sT0, sT1, sQt, sWo, sM, sOo = 28, 29, 30, 31, 32, 33, 34, 35, 36, 37, 38, 39
    vLane, vWo, vA0, vA1, vG, vOa, t0, t1, t2, t3 = 1, 2, 3, 4, 5, 6, 7, 8, 9, 10
    vWF = 12
    vAcc = 76
    vB = 92
    vOF = 108
    NV = 236
    e("  s_cmp_ge_u32 s2, 256")
    e("  s_cbranch_scc1 outp_done")
    e("  s_load_dwordx2 s[4:5], s[0:1], 32")
    e("  s_load_dwordx2 s[6:7], s[0:1], 56")
    e("  s_load_dwordx2 s[8:9], s[0:1], 72")
    e("  s_load_dwordx2 s[10:11], s[0:1], 88")
    e(f"  v_and_b32 v{vLane}, 63, v0")
    e(f"  v_lshrrev_b32 v{t0}, 6, v0")
    e("  s_nop 0")
    e(f"  v_readfirstlane_b32 s{sWid}, v{t0}")
    e(f"  s_and_b32 s{sT0}, s2, 7")
    e(f"  s_lshl_b32 s{sT0}, s{sT0}, 2")
    e(f"  s_bfe_u32 s{sT1}, s2, 0x20003")
    e(f"  s_add_u32 s{sTBk}, s{sT0}, s{sT1}")
    e(f"  s_lshr_b32 s{sNB}, s2, 5")
    e(f"  s_lshr_b32 s{sBr}, s{sWid}, 2")
    e(f"  s_bfe_u32 s{sTT}, s{sWid}, 0x10001")
    e(f"  s_and_b32 s{sCT}, s{sWid}, 1")
    e(f"  s_lshl_b32 s{sQt}, s{sTBk}, 1")
    e(f"  s_add_u32 s{sQt}, s{sQt}, s{sTT}")
    e(f"  v_lshrrev_b32 v{t0}, 3, v{vLane}          ; l/8")
    e(f"  v_and_b32 v{t1}, 7, v{vLane}")
    e(f"  v_bfe_u32 v{t2}, v{vLane}, 4, 1           ; (row>>1)&1")
    e(f"  v_lshlrev_b32 v{t2}, 2, v{t2}")
    e(f"  v_xor_b32 v{t1}, v{t1}, v{t2}")
    e(f"  v_lshlrev_b32 v{t1}, 4, v{t1}")
    e(f"  v_lshl_add_u32 v{vWo}, v{t0}, 10, v{t1}")
    e(f"  v_lshlrev_b32 v{vOa}, 4, v{vLane}")
    e("  s_waitcnt lgkmcnt(0)")
    e(f"  s_cmp_eq_u32 s{sBr}, 0")
    e(f"  s_cselect_b32 s{sT0}, s{sWA}, s{sWB}")
    e(f"  s_cselect_b32 s{sT1}, s{sWA+1}, s{sWB+1}")
    srd(rW, sT0, 512 * 1024)
    srd(rOut, sOut, 2097152)
    srd(rWS, sWS, WS_BYTES)
    e(f"  s_and_b32 s{sT0}, s{sWid}, 3")
    e(f"  s_lshl_b32 s{sWo}, s{sT0}, 15              ; q*32 rows * 1024")
    e(f"  s_lshl_b32 s{sT1}, s{sNB}, 7")
    e(f"  s_add_u32 s{sWo}, s{sWo}, s{sT1}")
    e(f"  s_lshl_b32 s{sM}, s{sT0}, 12               ; q*32 rows * 128")
    e(f"  s_lshl_b32 s{sT1}, s{sBr}, 16")
    e(f"  s_add_u32 s{sM}, s{sM}, s{sT1}")
    e(f"  s_lshl_b32 s{sOo}, s{sBr}, 6")
    e(f"  s_add_u32 s{sOo}, s{sOo}, s{sQt}")
    e(f"  s_lshl_b32 s{sOo}, s{sOo}, 15")
    e(f"  s_add_u32 s{sOo}, s{sOo}, {OF_OFF}")
    for c in range(4):
        for i in range(4):
            e(f"  s_add_u32 m0, s{sM}, {c*16384 + i*1024}")
            e(f"  s_add_u32 s{sT0}, s{sWo}, {c*131072 + i*8192}")
            e(f"  buffer_load_dwordx4 v{vWo}, {sr(rW,4)}, s{sT0} offen lds")
        for s_ in range(8 * c, 8 * c + 8):
            e(f"  buffer_load_dwordx4 {vr(vOF+4*s_,4)}, v{vOa}, {sr(rWS,4)}, s{sOo} offen offset:{(s_%4)*1024}")
            if s_ % 4 == 3:
                e(f"  s_add_u32 s{sOo}, s{sOo}, 4096")
    e(f"  v_and_b32 v{t0}, 31, v{vLane}")
    e(f"  v_lshlrev_b32 v{t0}, 2, v{t0}")
    e(f"  s_lshl_b32 s{sT0}, s{sQt}, 7")
    e(f"  s_add_u32 s{sT0}, s{sT0}, {G_OFF}")
    e(f"  buffer_load_dword v{vG}, v{t0}, {sr(rWS,4)}, s{sT0} offen")
    tr_addr(vA0, vA1, vLane, t0, t1, t2, t3, True)
    e(f"  s_lshl_b32 s{sT0}, s{sCT}, 6")
    e(f"  v_xor_b32 v{vA0}, s{sT0}, v{vA0}")
    e(f"  s_lshl_b32 s{sT0}, s{sBr}, 16")
    e(f"  v_add_u32 v{vA0}, s{sT0}, v{vA0}")
    e(f"  v_add_u32 v{vA1}, 32768, v{vA0}")
    def wread(s_):
        rs = 32 * ((s_ // 8) % 2) + 4 * (s_ % 8)
        for u in range(2):
            e(f"  ds_read_b64_tr_b16 {vr(vWF+rs+u*2,2)}, v{vA0 if s_ < 16 else vA1} offset:{(s_%16)*2048+u*512}")
    e(f"  s_waitcnt vmcnt({3*12+1+8})")
    e("  s_barrier")
    for s_ in range(8):
        wread(s_)
    for c in range(4):
        if c < 3:
            e(f"  s_waitcnt vmcnt({(2-c)*12+1+8}) lgkmcnt(0)")
            e("  s_barrier")
        else:
            e("  s_waitcnt vmcnt(0) lgkmcnt(0)")
        for k in range(8):
            s_ = 8 * c + k
            if c < 3:
                wread(s_ + 8)
            cc = "0" if s_ == 0 else vr(vAcc, 16)
            rs = 32 * (c % 2) + 4 * k
            e(f"  v_mfma_f32_32x32x16_bf16 {vr(vAcc,16)}, {vr(vWF+rs,4)}, {vr(vOF+4*s_,4)}, {cc}")
    e("  s_nop 15")
    e(f"  s_and_b32 s{sT0}, s{sWid}, 3")
    e(f"  s_lshl_b32 s{sT0}, s{sT0}, 12")
    e(f"  s_add_u32 s{sT0}, s{sT0}, 131072")
    e(f"  v_add_u32 v{t0}, s{sT0}, v{vOa}")
    e(f"  s_cmp_eq_u32 s{sBr}, 0")
    e("  s_cbranch_scc1 outp_a")
    for q in range(4):
        e(f"  ds_write_b128 v{t0}, {vr(vAcc+4*q,4)} offset:{q*1024}")
    e("  s_waitcnt lgkmcnt(0)")
    e("  s_barrier")
    e("  s_endpgm")
    e("outp_a:")
    vOm = t1
    e(f"  v_sub_f32 v{vOm}, 1.0, v{vG}")
    e(f"  v_cvt_pk_bf16_f32 v{vOm}, v{vOm}, v{vOm}")
    e(f"  v_lshlrev_b32 v{vOm}, 16, v{vOm}")
    e(f"  s_mov_b32 s{sT1}, 0xffff0000")
    def round_pair(x0, x1, tmp):
        e(f"  v_cvt_pk_bf16_f32 v{tmp}, v{x0}, v{x1}")
        e(f"  v_lshlrev_b32 v{x0}, 16, v{tmp}")
        e(f"  v_and_b32 v{x1}, s{sT1}, v{tmp}")
    for i in range(0, 16, 2):
        round_pair(vAcc + i, vAcc + i + 1, t2)
        e(f"  v_mul_f32 v{vAcc+i}, v{vG}, v{vAcc+i}")
        e(f"  v_mul_f32 v{vAcc+i+1}, v{vG}, v{vAcc+i+1}")
        round_pair(vAcc + i, vAcc + i + 1, t2)
    e("  s_barrier")
    for q in range(4):
        e(f"  ds_read_b128 {vr(vB+4*q,4)}, v{t0} offset:{q*1024}")
    e(f"  v_and_b32 v{t0}, 31, v{vLane}")
    e(f"  v_lshlrev_b32 v{t0}, 10, v{t0}")
    e(f"  v_lshrrev_b32 v{t2}, 5, v{vLane}")
    e(f"  v_lshl_add_u32 v{t0}, v{t2}, 5, v{t0}")
    e(f"  s_lshl_b32 s{sT0}, s{sQt}, 15")
    e(f"  s_lshl_b32 s{sWo}, s{sNB}, 7")
    e(f"  s_add_u32 s{sT0}, s{sT0}, s{sWo}")
    e(f"  s_lshl_b32 s{sWo}, s{sCT}, 6")
    e(f"  s_add_u32 s{sT0}, s{sT0}, s{sWo}")
    e("  s_waitcnt lgkmcnt(0)")
    for i in range(0, 16, 2):
        round_pair(vB + i, vB + i + 1, t2)
        e(f"  v_mul_f32 v{vB+i}, v{vOm}, v{vB+i}")
        e(f"  v_mul_f32 v{vB+i+1}, v{vOm}, v{vB+i+1}")
        round_pair(vB + i, vB + i + 1, t2)
        e(f"  v_add_f32 v{vAcc+i}, v{vAcc+i}, v{vB+i}")
        e(f"  v_add_f32 v{vAcc+i+1}, v{vAcc+i+1}, v{vB+i+1}")
        e(f"  v_cvt_pk_bf16_f32 v{vOF+i//2}, v{vAcc+i}, v{vAcc+i+1}")
        if i == 6:
            e(f"  buffer_store_dwordx4 {vr(vOF,4)}, v{t0}, {sr(rOut,4)}, s{sT0} offen")
    e(f"  buffer_store_dwordx4 {vr(vOF+4,4)}, v{t0}, {sr(rOut,4)}, s{sT0} offen offset:16")
    e("outp_done:")
    e("  s_endpgm")
    return kernel_desc("outp_kernel", NV, 48)

descs = []
descs.append(gen_proj())
descs.append(gen_attn())
descs.append(gen_outp())
if "r" in DBG:
    import re
    L4 = []
    kidx = -1
    for ln in L:
        st = ln.strip()
        if st.endswith("_kernel:"):
            kidx += 1
            B = 250
            L4.append(ln)
            L4.append("  s_memrealtime s[90:91]")
            L4.append("  s_load_dwordx2 s[92:93], s[0:1], 88")
            L4.append(f"  v_mov_b32 v{B}, v0")
            continue
        if st == "s_endpgm":
            L4.append("  s_waitcnt vmcnt(0) lgkmcnt(0)")
            L4.append("  s_memrealtime s[94:95]")
            L4.append("  s_mov_b32 s96, s92")
            L4.append("  s_and_b32 s97, s93, 0xffff")
            L4.append("  s_mov_b32 s98, 268435456")
            L4.append("  s_mov_b32 s99, 0x00020000")
            L4.append("  s_waitcnt lgkmcnt(0)")
            L4.append(f"  v_mov_b32 v{B+2}, s90")
            L4.append(f"  v_mov_b32 v{B+3}, s94")
            L4.append(f"  v_lshrrev_b32 v{B+1}, 6, v{B}")
            L4.append(f"  v_lshlrev_b32 v{B+1}, 3, v{B+1}")
            L4.append(f"  s_lshl_b32 s90, s2, 7")
            L4.append(f"  s_add_u32 s90, s90, {(20<<20) + kidx*65536}")
            L4.append("  s_mov_b64 exec, 1")
            L4.append(f"  buffer_store_dwordx2 v[{B+2}:{B+3}], v{B+1}, s[96:99], s90 offen")
        L4.append(ln)
    L[:] = L4
    def fix(d):
        n = 256
        d = re.sub(r"next_free_vgpr \d+", f"next_free_vgpr {n}", d)
        d = re.sub(r"accum_offset \d+", f"accum_offset {n}", d)
        return re.sub(r"next_free_sgpr \d+", "next_free_sgpr 102", d)
    descs[:] = [fix(d) for d in descs]
L3 = []
for ln in L:
    if ln.strip().startswith("buffer_store_dwordx4") and ("s[28:31]" in ln or "s[8:11]" in ln) and "v[4:7], v8" not in ln:
        ln = ln + " sc0 sc1"
    L3.append(ln)
L[:] = L3
STF = os.environ.get("STF", "")
if STF:
    L2 = []
    for ln in L:
        if ln.strip().startswith("buffer_store_dwordx4"):
            if STF == "skip":
                continue
            ln = ln + " " + STF
        L2.append(ln)
    L[:] = L2
text = HEADER + "\n".join(L) + "\n" + '.section .rodata,"a"\n' + "".join(descs)
open(OUT, "w").write(text)
print("wrote", OUT, len(text), "bytes")
```

```python
import sys, struct, os
DBG = os.environ.get("DBG","")

OUT = sys.argv[1] if len(sys.argv) > 1 else "gated_mix__grouped_kv_mqa__mha_block__prompt.s"

def f32bits(x):
    return struct.unpack("<I", struct.pack("<f", x))[0]

QF_OFF = 0
KV_OFF = 4 << 20
OF_OFF = 12 << 20
G_OFF  = 16 << 20
WS_BYTES = 268435456
SCALE = 0.25 * 1.4426950408889634
THR = int(os.environ.get("THR", "64"))
HEAD = int(os.environ.get("HEAD", "40"))

FUSED = os.environ.get("FUSED", "0") == "1"
KNAME = "gated_mix__grouped_kv_mqa__mha_block__prompt_kernel"
L = []
def e(s=""):
    L.append(s)
def vr(b, n=1):
    return f"v{b}" if n == 1 else f"v[{b}:{b+n-1}]"
def sr(b, n=1):
    return f"s{b}" if n == 1 else f"s[{b}:{b+n-1}]"

def srd(dst, base, nbytes):
    e(f"  s_mov_b32 s{dst}, s{base}")
    e(f"  s_and_b32 s{dst+1}, s{base+1}, 0xffff")
    e(f"  s_mov_b32 s{dst+2}, {nbytes}")
    e(f"  s_mov_b32 s{dst+3}, 0x00020000")

HEADER = """; Kernarg layout for this problem (96 bytes, ptrs only, base s[0:1]):
%LAUNCH%
.amdgcn_target "amdgcn-amd-amdhsa--gfx950"
.text
"""

def kernel_start(name):
    if FUSED:
        if name != "proj_kernel":
            e(f"{name}_phase:")
            return
        name = KNAME
    e(f".globl {name}")
    e(".p2align 8")
    e(f".type {name},@function")
    e(f"{name}:")

def kernel_desc(name, nvgpr, nsgpr):
    acc = (nvgpr + 3) // 4 * 4
    return f""".p2align 6
.amdhsa_kernel {name}
  .amdhsa_next_free_vgpr {nvgpr}
  .amdhsa_next_free_sgpr {nsgpr}
  .amdhsa_accum_offset {acc}
  .amdhsa_group_segment_fixed_size 0
  .amdhsa_kernarg_size 96
  .amdhsa_user_sgpr_count 2
  .amdhsa_user_sgpr_kernarg_segment_ptr 1
  .amdhsa_system_sgpr_workgroup_id_x 1
.end_amdhsa_kernel
"""

def stamp(i):
    if "R" in DBG:
        e("  s_memrealtime s[80:81]")
        e("  s_waitcnt lgkmcnt(0)")
        e(f"  s_mov_b32 s{82+i}, s80")
def sync_arrive(tag, base, sidx):
    stamp(1 if tag == "sy1" else 4)
    e("  s_waitcnt vmcnt(0) lgkmcnt(0)")
    stamp(2 if tag == "sy1" else 5)
    e("  s_barrier")
    e("  s_load_dwordx2 s[70:71], s[0:1], 80")
    e("  v_lshrrev_b32 v2, 6, v0")
    e("  v_and_b32 v1, 63, v0")
    e("  v_readfirstlane_b32 s76, v2")
    e("  s_waitcnt lgkmcnt(0)")
    srd(72, 70, 256)
    e("  s_cmp_lg_u32 s76, 0")
    e(f"  s_cbranch_scc1 {tag}_arrived")
    e(f"  s_lshl_b32 s77, s{sidx}, 2")
    e(f"  s_add_u32 s77, s77, {base}")
    e("  v_mov_b32 v2, 0")
    e("  v_mov_b32 v3, 1")
    e("  s_mov_b64 exec, 1")
    e("  buffer_atomic_add v3, v2, s[72:75], s77 offen sc1")
    e("  s_mov_b64 exec, -1")
    e(f"{tag}_arrived:")
def sync_wait(tag, base):
    e("  s_cmp_lg_u32 s76, 0")
    e(f"  s_cbranch_scc1 {tag}_go")
    e("  v_lshlrev_b32 v2, 2, v1")
    e("  s_mov_b32 s77, 0")
    e("  s_mov_b64 exec, 0xffff")
    e(f"{tag}_poll:")
    e(f"  buffer_load_dword v3, v2, s[72:75], 0 offen offset:{base} sc1")
    e("  s_waitcnt vmcnt(0)")
    e("  v_cmp_ne_u32 vcc, 16, v3")
    e(f"  s_cbranch_vccz {tag}_done")
    e("  s_sleep 1")
    e("  s_add_u32 s77, s77, 1")
    e("  s_cmp_lt_u32 s77, 0x400000")
    e(f"  s_cbranch_scc1 {tag}_poll")
    e(f"{tag}_done:")
    e("  s_mov_b64 exec, -1")
    e(f"{tag}_go:")
    e("  s_barrier")
    stamp(3 if tag == "sy1" else 6)

def tr_addr(vA0, vA1, vlane, t0, t1, t2, t3, perm):
    e(f"  v_lshrrev_b32 v{t0}, 4, v{vlane}          ; g")
    e(f"  v_and_b32 v{t1}, 1, v{t0}                 ; g%2")
    e(f"  v_lshrrev_b32 v{t0}, 1, v{t0}             ; h")
    e(f"  v_bfe_u32 v{t2}, v{vlane}, 2, 2           ; r")
    e(f"  v_lshl_add_u32 v{t0}, v{t0}, 3, v{t2}     ; 8h + r")
    e(f"  v_lshlrev_b32 v{t0}, 7, v{t0}             ; *128")
    e(f"  v_and_b32 v{t3}, 3, v{vlane}              ; c")
    e(f"  v_lshl_add_u32 v{t1}, v{t1}, 2, v{t3}     ; mc=(g%2)*4+c")
    if perm:
        e(f"  v_and_b32 v{t3}, 1, v{t1}")
        e(f"  v_lshrrev_b32 v{t1}, 1, v{t1}")
        e(f"  v_lshl_add_u32 v{t1}, v{t3}, 2, v{t1}     ; nc = 4*(mc%2)+mc/2")
    e(f"  v_and_b32 v{t3}, 1, v{t1}")
    e(f"  v_lshl_add_u32 v{t0}, v{t3}, 3, v{t0}     ; + (nc%2)*8")
    e(f"  v_lshrrev_b32 v{t1}, 1, v{t1}")
    e(f"  v_lshrrev_b32 v{t2}, 1, v{t2}             ; (r>>1)&1")
    e(f"  v_lshlrev_b32 v{t2}, 2, v{t2}")
    e(f"  v_xor_b32 v{t1}, v{t1}, v{t2}")
    e(f"  v_lshl_add_u32 v{vA0}, v{t1}, 4, v{t0}")
    e(f"  v_xor_b32 v{vA1}, 64, v{vA0}")

def gen_proj():
    kernel_start("proj_kernel")
    STG = 36864
    sX, sWQ, sWK, sWV, sWQKV, sWS = 4, 6, 8, 10, 12, 16
    rX, rW, rWS, rS = 20, 24, 28, 32
    sNB, sTB, sT0, sT1, sT2, sPitch, sCol, sWid = 40, 41, 42, 43, 44, 45, 46, 47
    sEx = 48
    sOff, sTT, sCG, sSpec, sXo, sWo, sM, sQt = 50, 51, 52, 53, 54, 55, 56, 57
    sC, sSo, sMS = 58, 59, 60
    sSMask = 36
    e("  s_cmp_ge_u32 s2, 256")
    e("  s_cbranch_scc1 proj_done" if not FUSED else "  s_cbranch_scc1 outp_done")
    stamp(0)
    e("  s_load_dwordx4 s[4:7], s[0:1], 0")
    e("  s_load_dwordx4 s[8:11], s[0:1], 16")
    e("  s_load_dwordx2 s[12:13], s[0:1], 48")
    e("  s_load_dwordx2 s[16:17], s[0:1], 88")
    if "p" in DBG:
        e("  s_load_dwordx2 s[80:81], s[0:1], 80")
        e("  s_memtime s[64:65]")
    e(f"  s_and_b32 s{sT0}, s2, 3")
    e(f"  s_lshl_b32 s{sT0}, s{sT0}, 2")
    e(f"  s_bfe_u32 s{sT1}, s2, 0x20003")
    e(f"  s_add_u32 s{sTB}, s{sT0}, s{sT1}")
    e(f"  s_bfe_u32 s{sT0}, s2, 0x10002")
    e(f"  s_lshl_b32 s{sT0}, s{sT0}, 3")
    e(f"  s_lshr_b32 s{sT1}, s2, 5")
    e(f"  s_add_u32 s{sNB}, s{sT0}, s{sT1}")
    vLane = 1; vXo0 = 2; vXo1 = 3; vWo = 4; vSt = 5; vSo = 6
    t0, t1, t2, t3 = 8, 9, 10, 11
    vXA = 12
    vWA = 20
    vSA = 24
    vXF = 28
    vWF = 44
    vSF = 76
    vAcc = 156
    vOut = 28
    NV = 204
    e(f"  v_and_b32 v{vLane}, 63, v0")
    e(f"  v_lshrrev_b32 v{t0}, 6, v0")
    e("  s_nop 0")
    e(f"  v_readfirstlane_b32 s{sWid}, v{t0}")
    e(f"  s_sub_u32 s{sSpec}, s{sNB}, s{sTB}")
    e(f"  s_and_b32 s{sSpec}, s{sSpec}, 15")
    e(f"  s_and_b32 s{sTT}, s{sWid}, 3")
    e(f"  s_lshr_b32 s{sCG}, s{sWid}, 2")
    e(f"  s_lshl_b32 s{sQt}, s{sTB}, 2")
    e(f"  s_add_u32 s{sQt}, s{sQt}, s{sTT}")
    e(f"  v_lshrrev_b32 v{t0}, 3, v{vLane}          ; l/8")
    e(f"  v_lshrrev_b32 v{t1}, 4, v{vLane}          ; l/16")
    e(f"  v_and_b32 v{t2}, 7, v{vLane}")
    if "z" not in DBG:
        e(f"  v_xor_b32 v{t2}, v{t2}, v{t1}")
    e(f"  v_lshlrev_b32 v{t2}, 4, v{t2}")
    e(f"  v_lshl_add_u32 v{vXo0}, v{t0}, 10, v{t2}")
    e(f"  v_xor_b32 v{vXo1}, 64, v{vXo0}")
    e(f"  v_add_u32 v{vXo1}, 8192, v{vXo1}")
    e(f"  v_lshrrev_b32 v{t0}, 2, v{vLane}")
    e(f"  v_and_b32 v{t2}, 1, v{vLane}")
    e(f"  v_lshlrev_b32 v{t2}, 4, v{t2}")
    e(f"  v_lshl_add_u32 v{vSo}, v{t0}, 5, v{t2}")
    e(f"  v_and_b32 v{t2}, 15, v{vLane}")
    e(f"  v_lshlrev_b32 v{t3}, 2, v{t1}")
    if "z" not in DBG:
        e(f"  v_xor_b32 v{t2}, v{t2}, v{t3}")
    e(f"  v_lshlrev_b32 v{t2}, 4, v{t2}")
    e("  s_waitcnt lgkmcnt(0)")
    if "p" in DBG:
        e("  s_memtime s[78:79]")
        e("  s_waitcnt lgkmcnt(0)")
    srd(rX, sX, 2097152)
    srd(rWS, sWS, WS_BYTES)
    e(f"  s_cmp_lt_u32 s{sNB}, 4")
    e("  s_cbranch_scc1 proj_wq")
    srd(rW, sWQKV, 512 * 3072)
    e(f"  s_sub_u32 s{sCol}, s{sNB}, 4")
    e(f"  s_lshl_b32 s{sCol}, s{sCol}, 8")
    e(f"  s_mov_b32 s{sPitch}, 3072")
    e("  s_branch proj_wcommon")
    e("proj_wq:")
    srd(rW, sWQ, 512 * 1024)
    e(f"  s_lshl_b32 s{sCol}, s{sNB}, 8")
    e(f"  s_mov_b32 s{sPitch}, 1024")
    e("proj_wcommon:")
    e(f"  v_mul_lo_u32 v{vWo}, v{t1}, s{sPitch}")
    e(f"  v_add_u32 v{vWo}, v{vWo}, v{t2}")
    e(f"  s_lshl_b32 s{sXo}, s{sTB}, 17")
    e(f"  s_lshl_b32 s{sT0}, s{sWid}, 14")
    e(f"  s_add_u32 s{sXo}, s{sXo}, s{sT0}")
    e(f"  s_lshl_b32 s{sT0}, s{sWid}, 3")
    e(f"  s_mul_i32 s{sWo}, s{sT0}, s{sPitch}")
    e(f"  s_add_u32 s{sWo}, s{sWo}, s{sCol}")
    e(f"  s_lshl_b32 s{sM}, s{sWid}, 11")
    e(f"  s_lshl_b32 s{sT2}, s{sPitch}, 2            ; 4*pitch")
    e(f"  s_lshl_b32 s{sPitch}, s{sPitch}, 6")
    e(f"  s_mov_b32 s{sC}, 0")
    e(f"  s_bitcmp1_b32 s{sWid}, 0")
    e(f"  s_cselect_b32 s{sT0}, s{sWV}, s{sWK}")
    e(f"  s_cselect_b32 s{sT1}, s{sWV+1}, s{sWK+1}")
    e(f"  s_mov_b32 s{sSMask}, 0x33333333")
    e(f"  s_cselect_b32 s{sSMask}, 0xcccccccc, s{sSMask}")
    e(f"  s_mov_b32 s{sSMask+1}, s{sSMask}")
    srd(rS, sT0, 512 * 32)
    e(f"  s_lshr_b32 s{sT0}, s{sWid}, 1")
    e(f"  s_lshl_b32 s{sSo}, s{sT0}, 9               ; 16 rows * 32B")
    e(f"  s_lshl_b32 s{sMS}, s{sT0}, 10")

    def dma_piece(c, spec, i):
        st = (c % 4) * STG
        if i == 0:
            e(f"  s_lshl_b32 s{sT0}, s{sC}, 7")
            e(f"  s_add_u32 s{sT0}, s{sT0}, s{sXo}")
            e(f"  s_add_u32 m0, s{sM}, {st}")
            e(f"  s_mul_i32 s{sT1}, s{sC}, s{sPitch}")
            e(f"  buffer_load_dwordx4 v{vXo0}, {sr(rX,4)}, s{sT0} offen lds")
        elif i == 1:
            e(f"  s_add_u32 m0, s{sM}, {st+1024}")
            e(f"  s_add_u32 s{sT1}, s{sT1}, s{sWo}")
            e(f"  buffer_load_dwordx4 v{vXo1}, {sr(rX,4)}, s{sT0} offen lds")
        elif i == 2:
            e(f"  s_add_u32 m0, s{sM}, {st+16384}")
            e(f"  s_add_u32 s{sT0}, s{sT1}, s{sT2}")
            e(f"  buffer_load_dwordx4 v{vWo}, {sr(rW,4)}, s{sT1} offen lds")
        else:
            e(f"  s_add_u32 m0, s{sM}, {st+16384+1024}")
            e(f"  s_lshl_b32 s{sT1}, s{sC}, 11")
            e(f"  buffer_load_dwordx4 v{vWo}, {sr(rW,4)}, s{sT0} offen lds")
            if spec:
                e(f"  s_add_u32 m0, s{sMS}, {st+32768}")
                e(f"  s_add_u32 s{sT1}, s{sT1}, s{sSo}")
                e(f"  s_mov_b64 exec, {sr(sSMask,2)}")
                e(f"  buffer_load_dwordx4 v{vSo}, {sr(rS,4)}, s{sT1} offen lds")
                e("  s_mov_b64 exec, -1")
            e(f"  s_add_u32 s{sC}, s{sC}, 1")
            e(f"  s_and_b32 s{sC}, s{sC}, 7")
    def dma(c, spec):
        for i in range(4):
            dma_piece(c, spec, i)

    def addr_setup():
        e(f"  v_and_b32 v{t0}, 31, v{vLane}")
        e(f"  v_lshrrev_b32 v{t1}, 5, v{vLane}          ; h")
        e(f"  v_bfe_u32 v{t2}, v{vLane}, 1, 3           ; (row>>1)&7")
        e(f"  v_xor_b32 v{t1}, v{t1}, v{t2}")
        e(f"  v_lshlrev_b32 v{t1}, 4, v{t1}")
        e(f"  v_lshl_add_u32 v{t0}, v{t0}, 7, v{t1}")
        e(f"  s_lshl_b32 s{sOff}, s{sTT}, 12")
        e(f"  v_add_u32 v{t0}, s{sOff}, v{t0}")
        for sp in range(4):
            e(f"  v_xor_b32 v{vXA+sp}, {sp*32}, v{t0}")
            e(f"  v_add_u32 v{vXA+4+sp}, {2*STG}, v{vXA+sp}")
        e(f"  v_lshrrev_b32 v{t0}, 5, v{vLane}          ; h")
        e(f"  v_bfe_u32 v{t1}, v{vLane}, 2, 2           ; r")
        e(f"  v_lshl_add_u32 v{t0}, v{t0}, 3, v{t1}     ; 8h+r")
        e(f"  v_bfe_u32 v{t2}, v{vLane}, 4, 1           ; g%2")
        e(f"  v_and_b32 v{t3}, 3, v{vLane}              ; c")
        e(f"  v_lshl_add_u32 v{t2}, v{t2}, 2, v{t3}     ; nc")
        e(f"  v_lshlrev_b32 v{t2}, 3, v{t2}             ; nc*8")
        e(f"  v_lshl_add_u32 v{vSA}, v{t0}, 6, v{t2}")
        e(f"  v_add_u32 v{vSA}, 32768, v{vSA}")
        e(f"  v_add_u32 v{vSA+1}, {2*STG}, v{vSA}")
        e(f"  v_lshl_add_u32 v{t0}, v{t0}, 8, v{t2}     ; k*256 + nc*8")
        e(f"  s_lshl_b32 s{sOff}, s{sCG}, 1")
        e(f"  v_xor_b32 v{t1}, s{sOff}, v{t1}           ; (2cg) ^ r")
        e(f"  v_lshl_add_u32 v{t0}, v{t1}, 6, v{t0}")
        e(f"  v_add_u32 v{vWA}, 16384, v{t0}")
        e(f"  v_xor_b32 v{vWA+1}, 64, v{vWA}")
        e(f"  v_add_u32 v{vWA+2}, {2*STG}, v{vWA}")
        e(f"  v_add_u32 v{vWA+3}, {2*STG}, v{vWA+1}")

    def reads(c, sp, spec):
        st = c % 4
        so = (st % 2) * STG
        hi = st // 2
        rs = 64 * (c % 2)
        e(f"  ds_read_b128 {vr(vXF+rs+4*sp,4)}, v{vXA+sp+4*hi} offset:{so}")
        for ct in range(2):
            for u in range(2):
                e(f"  ds_read_b64_tr_b16 {vr(vWF+rs+sp*8+ct*4+u*2,2)}, v{vWA+2*hi+ct} offset:{so+(16*sp+4*u)*256}")
        if spec:
            for u in range(2):
                e(f"  ds_read_b64_tr_b16 {vr(vSF+rs+sp*4+u*2,2)}, v{vSA+hi} offset:{so+(16*sp+4*u)*64}")

    def mainloop(orient, spec, dspec):
        n = 5 if dspec else 4
        for c in range(4):
            dma(c, dspec)
        addr_setup()
        e(f"  s_waitcnt vmcnt({3*n})")
        e("  s_barrier")
        if "p" in DBG:
            e(f"  s_memtime s[66:67]")
            e("  s_waitcnt lgkmcnt(0)")
        for sp in range(4):
            reads(0, sp, spec)
        for c in range(8):
            if c < 7:
                ng = min(c + 3, 7) - (c + 1)
                e(f"  s_waitcnt vmcnt({ng*n}) lgkmcnt(0)")
                e("  s_barrier")
                if "p" in DBG and c in (0,3,6):
                    e(f"  s_memtime s[{68+2*(0,3,6).index(c)}:{69+2*(0,3,6).index(c)}]")
                    e("  s_waitcnt lgkmcnt(0)")
            else:
                e("  s_waitcnt lgkmcnt(0)")
            rs = 64 * (c % 2)
            for sp in range(4):
                if c < 7:
                    reads(c + 1, sp, spec)
                xf = vXF + rs + 4 * sp
                first = (c == 0 and sp == 0)
                for ct in range(2):
                    wf = vWF + rs + sp * 8 + ct * 4
                    acc = vAcc + 16 * ct
                    cc = "0" if first else vr(acc, 16)
                    if orient == 'T':
                        e(f"  v_mfma_f32_32x32x16_bf16 {vr(acc,16)}, {vr(wf,4)}, {vr(xf,4)}, {cc}")
                    else:
                        e(f"  v_mfma_f32_32x32x16_bf16 {vr(acc,16)}, {vr(xf,4)}, {vr(wf,4)}, {cc}")
                if spec:
                    acc = vAcc + 32
                    sf = vSF + rs + 4 * sp
                    cc = "0" if first else vr(acc, 16)
                    if spec == 'T':
                        e(f"  v_mfma_f32_32x32x16_bf16 {vr(acc,16)}, {vr(sf,4)}, {vr(xf,4)}, {cc}")
                    else:
                        e(f"  v_mfma_f32_32x32x16_bf16 {vr(acc,16)}, {vr(xf,4)}, {vr(sf,4)}, {cc}")
                if c + 4 <= 7:
                    dma_piece(c + 4, dspec, sp)
        e("  s_nop 15")
        if "p" in DBG:
            e("  s_memtime s[74:75]")
            e("  s_waitcnt lgkmcnt(0)")

    def v_store_addr():
        e(f"  v_and_b32 v{t0}, 3, v{vLane}")
        e(f"  v_and_b32 v{t1}, 4, v{vLane}")
        e(f"  v_lshl_or_b32 v{t0}, v{t1}, 1, v{t0}")
        e(f"  v_and_b32 v{t1}, 8, v{vLane}")
        e(f"  v_lshrrev_b32 v{t1}, 1, v{t1}")
        e(f"  v_or_b32 v{t0}, v{t0}, v{t1}              ; m")
        e(f"  v_lshlrev_b32 v{t0}, 4, v{t0}")
        e(f"  v_lshrrev_b32 v{t1}, 5, v{vLane}          ; half")
        e(f"  v_lshl_add_u32 v{t0}, v{t1}, 9, v{t0}")
        e(f"  v_bfe_u32 v{t1}, v{vLane}, 4, 1           ; subhead")
        e(f"  v_lshl_add_u32 v{vSt}, v{t1}, 17, v{t0}")

    def spec_epilogue(kind):
        A = vAcc + 32
        e(f"  s_lshl_b32 s{sOff}, s{sQt}, 11")
        if kind == 'T':
            e(f"  s_add_u32 s{sOff}, s{sOff}, {KV_OFF + 32*131072}")
            e(f"  v_lshlrev_b32 v{t2}, 4, v{vLane}")
            for j in range(4):
                e(f"  v_cvt_pk_bf16_f32 v{vOut+16+j}, v{A+2*j}, v{A+2*j+1}")
            e(f"  buffer_store_dwordx4 {vr(vOut+16,4)}, v{t2}, {sr(rWS,4)}, s{sOff} offen")
        else:
            e(f"  s_add_u32 s{sOff}, s{sOff}, {KV_OFF + 31*131072}")
            v_store_addr()
            for j in range(8):
                e(f"  v_cvt_pk_bf16_f32 v{vOut+16+j}, v{A+2*j}, v{A+2*j+1}")
            e(f"  v_and_b32 v{t0}, 16, v{vLane}")
            e(f"  v_cmp_ne_u32 vcc, 0, v{t0}")
            e(f"  s_and_saveexec_b64 {sr(sEx,2)}, vcc")
            for j in range(2):
                e(f"  buffer_store_dwordx4 {vr(vOut+16+j*4,4)}, v{vSt}, {sr(rWS,4)}, s{sOff} offen offset:{1024+j*256}")
            e(f"  s_mov_b64 exec, {sr(sEx,2)}")

    def variants(o):
        e(f"  s_cmp_ge_u32 s{sSpec}, 8")
        e(f"  s_cbranch_scc1 proj_{o}_plain")
        e(f"  s_cmp_lg_u32 s{sSpec}, s{sWid}")
        e(f"  s_cbranch_scc1 proj_{o}_none")
        e(f"  s_cmp_eq_u32 s{sCG}, 0")
        e(f"  s_cbranch_scc1 proj_{o}_T")
        e(f"proj_{o}_N:")
        mainloop(o, 'N', True)
        spec_epilogue('N')
        e(f"  s_branch proj_{o}_epi")
        e(f"proj_{o}_T:")
        mainloop(o, 'T', True)
        spec_epilogue('T')
        e(f"  s_branch proj_{o}_epi")
        e(f"proj_{o}_none:")
        mainloop(o, None, True)
        e(f"  s_branch proj_{o}_epi")
        e(f"proj_{o}_plain:")
        mainloop(o, None, False)
    e(f"  s_cmp_ge_u32 s{sNB}, 12")
    e("  s_cbranch_scc1 proj_v_sel")
    variants('T')
    e("proj_T_epi:")
    e(f"  s_mov_b32 s{sT1}, {f32bits(SCALE)}")
    e(f"  s_cmp_lt_u32 s{sNB}, 8")
    e(f"  s_cselect_b32 s{sT1}, s{sT1}, 1.0")
    e(f"  s_lshl_b32 s{sT2}, s{sNB}, 3")
    e(f"  s_lshl_b32 s{sT0}, s{sCG}, 2")
    e(f"  s_add_u32 s{sT2}, s{sT2}, s{sT0}")
    e(f"  s_lshl_b32 s{sT2}, s{sT2}, 6")
    e(f"  s_add_u32 s{sT2}, s{sT2}, s{sQt}")
    e(f"  s_lshl_b32 s{sOff}, s{sT2}, 10             ; Q dest")
    e(f"  s_mov_b32 s{sCol}, 65536")
    e(f"  s_cmp_lt_u32 s{sNB}, 8")
    e(f"  s_cbranch_scc1 proj_qk_store")
    e(f"  s_sub_u32 s{sT2}, s{sT2}, {64*64}")
    e(f"  s_lshl_b32 s{sOff}, s{sT2}, 11")
    e(f"  s_add_u32 s{sOff}, s{sOff}, {KV_OFF}")
    e(f"  s_mov_b32 s{sCol}, 131072")
    e("proj_qk_store:")
    e(f"  v_lshlrev_b32 v{vSt}, 4, v{vLane}")
    for hh in range(4):
        for i in range(8):
            e(f"  v_mul_f32 v{vAcc+hh*8+i}, s{sT1}, v{vAcc+hh*8+i}")
        for j in range(4):
            e(f"  v_cvt_pk_bf16_f32 v{vOut+hh*4+j}, v{vAcc+hh*8+2*j}, v{vAcc+hh*8+2*j+1}")
        e(f"  buffer_store_dwordx4 {vr(vOut+hh*4,4)}, v{vSt}, {sr(rWS,4)}, s{sOff} offen")
        if hh < 3:
            e(f"  s_add_u32 s{sOff}, s{sOff}, s{sCol}")
    if "p" in DBG:
        e("  s_waitcnt vmcnt(0)")
        e("  s_memtime s[76:77]")
        e("  s_waitcnt lgkmcnt(0)")
        for i in range(7):
            e(f"  s_sub_u32 s{66+2*i}, s{66+2*i}, s64")
            e(f"  v_mov_b32 v{4+i}, s{66+2*i}")
        e("  v_mov_b32 v11, 0")
        srd(84, 80, 256)
        e(f"  s_lshl_b32 s64, s{sWid}, 5")
        e("  v_mov_b32 v12, s64")
        e("  s_cmp_lg_u32 s2, 40")
        e("  s_cbranch_scc1 proj_done")
        e("  buffer_store_dwordx4 v[4:7], v12, s[84:87], 0 offen")
        e("  buffer_store_dwordx4 v[8:11], v12, s[84:87], 0 offen offset:16")
    e("  s_endpgm" if not FUSED else "  s_branch proj_fin")
    e("proj_v_sel:")
    variants('N')
    e("proj_N_epi:")
    v_store_addr()
    e(f"  s_sub_u32 s{sT2}, s{sNB}, 12")
    e(f"  s_lshl_b32 s{sT2}, s{sT2}, 3")
    e(f"  s_lshl_b32 s{sT0}, s{sCG}, 2")
    e(f"  s_add_u32 s{sT2}, s{sT2}, s{sT0}")
    e(f"  s_lshl_b32 s{sT2}, s{sT2}, 6")
    e(f"  s_add_u32 s{sT2}, s{sT2}, s{sQt}")
    e(f"  s_lshl_b32 s{sOff}, s{sT2}, 11")
    e(f"  s_add_u32 s{sOff}, s{sOff}, {KV_OFF+1024}")
    for ct in range(2):
        for j in range(8):
            e(f"  v_cvt_pk_bf16_f32 v{vOut+ct*8+j}, v{vAcc+ct*16+2*j}, v{vAcc+ct*16+2*j+1}")
        for j in range(2):
            e(f"  buffer_store_dwordx4 {vr(vOut+ct*8+j*4,4)}, v{vSt}, {sr(rWS,4)}, s{sOff} offen offset:{j*256}")
        if ct == 0:
            e(f"  s_add_u32 s{sOff}, s{sOff}, {2*131072}")
    if FUSED:
        e("proj_fin:")
        sync_arrive("sy1", 0, sNB)
        sync_wait("sy1", 0)
        return ""
    e("proj_done:")
    e("  s_endpgm")
    return kernel_desc("proj_kernel", NV, 64 if "p" not in DBG else 96)

def gen_attn():
    kernel_start("attn_kernel")
    sWS = 4; rWS = 8
    sWid, sHB, sBr, sHead, sQt, sT0, sT1, sIt, sThr, sInf, sFlag, sOff = 12, 13, 14, 15, 16, 17, 18, 19, 20, 21, 22, 23
    sMask = 24
    vLane, vAddr, vG, t0, t1, t2, t3 = 1, 2, 3, 4, 5, 6, 7
    vK = 8
    vV = 16
    vQ = [32, 36]
    vP = [40, 56]
    vO = [72, 88]
    vC = [104, 120]
    vS = [136, 168]
    vX = 200
    vPr = 216
    sPr = 46
    NV = 220
    if not FUSED:
        e("  s_cmp_ge_u32 s2, 256")
        e("  s_cbranch_scc1 attn_done")
    e("  s_load_dwordx2 s[4:5], s[0:1], 88")
    e("  s_load_dwordx2 s[6:7], s[0:1], 0")
    e("  s_load_dwordx2 s[28:29], s[0:1], 64")
    e("  s_load_dwordx2 s[56:57], s[0:1], 32")
    e("  s_load_dwordx2 s[58:59], s[0:1], 56")
    if "t" in DBG:
        e("  s_load_dwordx2 s[40:41], s[0:1], 80")
        e("  s_memtime s[32:33]")
        e("  s_memrealtime s[34:35]")
    e(f"  v_and_b32 v{vLane}, 63, v0")
    e(f"  v_lshrrev_b32 v{t0}, 6, v0")
    e("  s_nop 0")
    e(f"  v_readfirstlane_b32 s{sWid}, v{t0}")
    e(f"  s_and_b32 s{sT0}, s2, 7")
    e(f"  s_lshr_b32 s{sT1}, s2, 3")
    e(f"  s_lshr_b32 s{sHB}, s{sT1}, 2")
    e(f"  s_lshl_b32 s{sHB}, s{sHB}, 3")
    e(f"  s_add_u32 s{sHB}, s{sHB}, s{sT0}")
    e(f"  s_and_b32 s{sT1}, s{sT1}, 3")
    e(f"  s_lshl_b32 s{sQt}, s{sT1}, 4")
    e(f"  s_lshl_b32 s{sT0}, s{sWid}, 1")
    e(f"  s_add_u32 s{sQt}, s{sQt}, s{sT0}")
    e(f"  s_lshr_b32 s{sBr}, s{sHB}, 5")
    e(f"  s_and_b32 s{sHead}, s{sHB}, 31")
    e("  s_mov_b32 s24, 0x0000ffff")
    e("  s_mov_b32 s25, 0x0000ffff")
    e(f"  s_mov_b32 s{sThr}, {hex(f32bits(2.0**THR))}")
    e(f"  s_mov_b32 s{sInf}, 0x7f800000")
    e(f"  s_mov_b32 s{sFlag}, 0")
    e(f"  v_lshlrev_b32 v{vAddr}, 4, v{vLane}        ; lane*16")
    e(f"  s_cmp_eq_u32 s{sBr}, 1")
    e(f"  s_cselect_b32 s{sT0}, s{sHead}, 32")
    e(f"  s_lshl_b32 s{sT0}, s{sT0}, 17")
    e(f"  s_add_u32 s{sT0}, s{sT0}, {KV_OFF}")
    e(f"  s_lshl_b32 s{sT1}, s{sWid}, 11")
    e(f"  s_add_u32 s{sT0}, s{sT0}, s{sT1}")
    e(f"  s_lshl_b32 s{sOff}, s{sHB}, 6")
    e(f"  s_add_u32 s{sOff}, s{sOff}, s{sQt}")
    e(f"  s_lshl_b32 s{sOff}, s{sOff}, 10")
    e(f"  s_mov_b32 m0, s{sT1}")
    e("  s_waitcnt lgkmcnt(0)")
    srd(rWS, sWS, WS_BYTES)
    e(f"  buffer_load_dwordx4 v{vAddr}, {sr(rWS,4)}, s{sT0} offen lds")
    e(f"  buffer_load_dwordx4 v{vAddr}, {sr(rWS,4)}, s{sT0} offen offset:1024 lds")
    e(f"  buffer_load_dwordx4 {vr(vQ[0],4)}, v{vAddr}, {sr(rWS,4)}, s{sOff} offen")
    e(f"  buffer_load_dwordx4 {vr(vQ[1],4)}, v{vAddr}, {sr(rWS,4)}, s{sOff} offen offset:1024")
    rXg, rGw = 48, 52
    srd(rXg, 6, 2097152)
    srd(rGw, 28, 1024)
    e("  s_barrier")
    def kvdma(c):
        e(f"  s_add_u32 s{sT0}, s{sT0}, 16384")
        e(f"  s_add_u32 m0, s{sT1}, {c*16384}")
        e("  s_nop 0")
        e(f"  buffer_load_dwordx4 v{vAddr}, {sr(rWS,4)}, s{sT0} offen lds")
        e(f"  buffer_load_dwordx4 v{vAddr}, {sr(rWS,4)}, s{sT0} offen offset:1024 lds")
    kvdma(1)
    e(f"  v_and_b32 v{t0}, 31, v{vLane}")
    e(f"  v_and_b32 v{t1}, 27, v{t0}")
    e(f"  v_mov_b32 v{t2}, 0x3f803f80")
    e(f"  v_cmp_eq_u32 vcc, 16, v{t1}")
    e("  s_nop 1")
    e(f"  v_cndmask_b32 v{t2}, 0, v{t2}, vcc")
    for i in range(16):
        e(f"  v_mov_b32 v{vV+i}, v{t2}")
    for z in range(2):
        for i in range(16):
            e(f"  v_mov_b32 v{vO[z]+i}, 0")
        for i in range(8):
            e(f"  v_mov_b32 v{vP[z]+8+i}, 0")
    e(f"  s_lshl_b32 s{sPr}, s{sWid}, 2")
    e(f"  s_add_u32 s{sPr}, s{sPr}, 135168")
    e(f"  v_mov_b32 v{vPr}, s{sPr}")
    e(f"  v_xor_b32 v{vPr+1}, 16, v{vPr}")
    e(f"  v_mov_b32 v{vPr+2}, 0")
    e(f"  ds_write_b32 v{vPr}, v{vPr+2}")
    e("  s_waitcnt vmcnt(2) lgkmcnt(0)")
    e("  s_barrier")

    def kread(buf, off):
        e(f"  ds_read_b128 {vr(vK+4*buf,4)}, v{vAddr} offset:{off}")
    def vread(buf, off):
        e(f"  s_mov_b64 exec, {sr(sMask,2)}")
        e(f"  ds_read_b128 {vr(vV+8*buf,4)}, v{vAddr} offset:{off+1024}")
        e(f"  ds_read_b128 {vr(vV+8*buf+4,4)}, v{vAddr} offset:{off+1024+256}")
        e("  s_mov_b64 exec, -1")
    def rowmax(src, dst, tmp):
        e(f"  v_max3_f32 v{dst}, v{src}, v{src+1}, v{src+2}")
        for i in range(3, 15, 2):
            e(f"  v_max3_f32 v{dst}, v{dst}, v{src+i}, v{src+i+1}")
        e(f"  v_max_f32 v{dst}, v{dst}, v{src+15}")
        e(f"  v_mov_b32 v{tmp}, v{dst}")
        e("  s_nop 1")
        e(f"  v_permlane32_swap_b32 v{dst}, v{tmp}")
        e(f"  v_max_f32 v{dst}, v{dst}, v{tmp}")

    kread(0, 0)
    kread(1, 2048)
    e("  s_waitcnt lgkmcnt(0)")
    for z in range(2):
        e(f"  v_mfma_f32_32x32x16_bf16 {vr(vS[z],16)}, {vr(vK,4)}, {vr(vQ[z],4)}, 0")
    kvdma(2)
    for z in range(2):
        rowmax(vS[z], t0, t1)
        e(f"  v_sub_f32 v{t0}, {hex(f32bits(-float(HEAD)))}, v{t0}")
        for i in range(16):
            e(f"  v_mov_b32 v{vC[z]+i}, v{t0}")
        e("  s_nop 1")
        e(f"  v_mfma_f32_32x32x16_bf16 {vr(vS[z],16)}, {vr(vK,4)}, {vr(vQ[z],4)}, {vr(vC[z],16)}")
    e(f"  s_mov_b32 s{sIt}, 0")
    if "t" in DBG:
        e("  s_memtime s[44:45]")
        e("  s_waitcnt lgkmcnt(0)")
    e(f"  s_cmp_ge_u32 s{sWid}, 4")
    e(f"  s_cbranch_scc1 attn_loop1")
    for j in range(2):
        e(".p2align 6")
        e(f"attn_loop{j}:")
        for u in range(8):
            b = u % 2
            Vp = vV + 8 * (1 - b)
            if u in (0, 1, 2, 3, 4):
                e(f"  s_cmp_lg_u32 s{sIt}, 0")
                e(f"  s_cbranch_scc1 attn_nodma{j}_{u}")
                kvdma(3 + u)
                e(f"attn_nodma{j}_{u}:")
            if u == 5:
                e(f"  s_cmp_lg_u32 s{sIt}, 0")
                e(f"  s_cbranch_scc1 attn_nobarA{j}")
                e("  s_waitcnt vmcnt(10)")
                e("  s_barrier")
                e(f"attn_nobarA{j}:")
            if u == 6:
                e(f"  s_cmp_lg_u32 s{sIt}, 1")
                e(f"  s_cbranch_scc1 attn_nobar{j}")
                e("  s_waitcnt vmcnt(0)")
                e("  s_barrier")
                e(f"  v_lshlrev_b32 v{t0}, 4, v{vLane}")
                e(f"  s_and_b32 s{sT0}, s2, 0xf8")
                e(f"  s_add_u32 s{sT0}, s{sT0}, s{sWid}          ; slice 0..255")
                e(f"  s_cmp_lt_u32 s{sT0}, 128")
                e("  s_cselect_b32 s30, s56, s58")
                e("  s_cselect_b32 s31, s57, s59")
                srd(60, 30, 512 * 1024)
                e(f"  s_and_b32 s{sT0}, s{sT0}, 127")
                e(f"  s_lshl_b32 s{sT0}, s{sT0}, 12")
                for i in range(4):
                    e(f"  buffer_load_dwordx4 {vr(vX,4)}, v{t0}, s[60:63], s{sT0} offen offset:{i*1024}")
                if j == 0:
                    e(f"  s_lshl_b32 s{sOff}, s2, 3")
                    e(f"  s_lshl_b32 s{sT0}, s{sWid}, 1")
                    e(f"  s_add_u32 s{sOff}, s{sOff}, s{sT0}")
                    e(f"  s_lshl_b32 s{sT0}, s{sOff}, 10")
                    e(f"  buffer_load_dwordx4 {vr(vX+4,4)}, v{t0}, {sr(rXg,4)}, s{sT0} offen")
                    e(f"  buffer_load_dwordx4 {vr(vX+8,4)}, v{t0}, {sr(rXg,4)}, s{sT0} offen offset:1024")
                    e(f"  buffer_load_dwordx4 {vr(vX+12,4)}, v{t0}, {sr(rGw,4)}, 0 offen")
                e(f"attn_nobar{j}:")
            e("  s_waitcnt lgkmcnt(2)")
            if u == 0:
                e(f"  v_readfirstlane_b32 s{sPr}, v{vPr+2}")
                e(f"  s_cmp_eq_u32 s{sIt}, s{sPr}")
                e(f"  s_cbranch_scc1 attn_ptie{j}")
                e(f"  s_cmp_gt_u32 s{sIt}, s{sPr}")
                e(f"  s_cbranch_scc1 attn_plow{j}")
                e("  s_setprio 2")
                e(f"  s_branch attn_pdone{j}")
                e(f"attn_plow{j}:")
                e("  s_setprio 0")
                e(f"  s_branch attn_pdone{j}")
                e(f"attn_ptie{j}:")
                e(f"  s_setprio {j}")
                e(f"attn_pdone{j}:")
            mf = []
            for z in range(2):
                mf.append(f"  v_mfma_f32_32x32x16_bf16 {vr(vS[z]+16*(1-b),16)}, {vr(vK+4*(1-b),4)}, {vr(vQ[z],4)}, {vr(vC[z],16)}")
            for z in range(2):
                Pp = vP[z] + 8 * (1 - b)
                mf.append(f"  v_mfma_f32_32x32x16_bf16 {vr(vO[z],16)}, {vr(Vp,4)}, {vr(Pp,4)}, {vr(vO[z],16)}")
                mf.append(f"  v_mfma_f32_32x32x16_bf16 {vr(vO[z],16)}, {vr(Vp+4,4)}, {vr(Pp+4,4)}, {vr(vO[z],16)}")
            va = []
            for z in range(2):
                S = vS[z] + 16 * b
                for i in range(16):
                    va.append(f"  v_exp_f32 v{S+i}, v{S+i}")
                for i in range(8):
                    va.append(f"  v_cvt_pk_bf16_f32 v{vP[z]+8*b+i}, v{S+2*i}, v{S+2*i+1}")
            pos = [0, 5, 11, 17, 27, 33]
            for i, v in enumerate(va):
                while pos and pos[0] == i:
                    k = 6 - len(pos)
                    if k == 2:
                        e("  s_waitcnt lgkmcnt(3)")
                    e(mf[k])
                    if k == 1:
                        if u == 7:
                            e(f"  s_add_u32 s{sPr}, s{sIt}, 1")
                            e(f"  v_mov_b32 v{vPr+3}, s{sPr}")
                            e(f"  ds_write_b32 v{vPr}, v{vPr+3}")
                            e(f"  ds_read_b32 v{vPr+2}, v{vPr+1}")
                        if "L" not in DBG:
                            kread(b, (u + 2) * 2048)
                            vread(b, u * 2048)
                    pos.pop(0)
                e(v)
            if u == 7:
                e(f"  v_cmp_ngt_f32 vcc, s{sThr}, v{vO[0]+8}")
                e(f"  v_cmp_ngt_f32 s[26:27], s{sThr}, v{vO[1]+8}")
                e(f"  v_add_u32 v{vAddr}, 16384, v{vAddr}")
                e(f"  s_add_u32 s{sIt}, s{sIt}, 1")
                e("  s_or_b64 vcc, vcc, s[26:27]")
                e(f"  s_cbranch_vccnz attn_rare{j}")
                e(f"attn_rare_ret{j}:")
        e(f"  s_cmp_lt_u32 s{sIt}, 8")
        e(f"  s_cbranch_scc1 attn_loop{j}")
        if j < 1:
            e("  s_branch attn_tail")
    e("attn_tail:")
    e("  s_setprio 0")
    e("  s_waitcnt lgkmcnt(0)")
    for z in range(2):
        e(f"  v_mfma_f32_32x32x16_bf16 {vr(vO[z],16)}, {vr(vV+8,4)}, {vr(vP[z]+8,4)}, {vr(vO[z],16)}")
        e(f"  v_mfma_f32_32x32x16_bf16 {vr(vO[z],16)}, {vr(vV+12,4)}, {vr(vP[z]+12,4)}, {vr(vO[z],16)}")
    e("  s_nop 15")
    e(f"  v_mov_b32 v{t1}, 0x207")
    e(f"  s_mov_b64 {sr(26,2)}, 0")
    for z in range(2):
        for i in range(9):
            e(f"  v_cmp_class_f32 vcc, v{vO[z]+i}, v{t1}")
            e(f"  s_or_b64 {sr(26,2)}, {sr(26,2)}, vcc")
    e(f"  s_cmp_lg_u64 {sr(26,2)}, 0")
    e(f"  s_cselect_b32 s{sT0}, 1, 0")
    e(f"  s_or_b32 s{sFlag}, s{sFlag}, s{sT0}")
    e(f"  s_cmp_lg_u32 s{sFlag}, 0")
    e("  s_cbranch_scc1 attn_fallback")
    e("attn_epilogue:")
    e(f"  s_lshl_b32 s{sT0}, s{sBr}, 6")
    e(f"  s_add_u32 s{sT0}, s{sT0}, s{sQt}")
    e(f"  s_lshl_b32 s{sT0}, s{sT0}, 5")
    e(f"  s_add_u32 s{sT0}, s{sT0}, s{sHead}")
    e(f"  s_lshl_b32 s{sT0}, s{sT0}, 10")
    e(f"  s_add_u32 s{sT0}, s{sT0}, {OF_OFF}")
    e(f"  v_lshlrev_b32 v{t1}, 4, v{vLane}")
    for z in range(2):
        e(f"  v_rcp_f32 v{t0}, v{vO[z]+8}")
        e("  s_nop 0")
        for i in range(8):
            e(f"  v_mul_f32 v{vO[z]+i}, v{vO[z]+i}, v{t0}")
        for i in range(4):
            e(f"  v_cvt_pk_bf16_f32 v{vP[z]+i}, v{vO[z]+2*i}, v{vO[z]+2*i+1}")
        e(f"  buffer_store_dwordx4 {vr(vP[z],4)}, v{t1}, {sr(rWS,4)}, s{sT0} offen")
        if z == 0:
            e(f"  s_add_u32 s{sT0}, s{sT0}, 32768")
    e(f"  s_cmp_ge_u32 s{sWid}, 4")
    e("  s_cbranch_scc1 attn_nogate")
    e("  s_waitcnt vmcnt(2)")
    e(f"  v_mov_b32 v{t0}, 0")
    e(f"  v_mov_b32 v{t2}, 0")
    for i in range(4):
        e(f"  v_dot2_f32_bf16 v{t0}, v{vX+4+i}, v{vX+12+i}, v{t0}")
        e(f"  v_dot2_f32_bf16 v{t2}, v{vX+8+i}, v{vX+12+i}, v{t2}")
    e("  s_nop 2")
    for m in (0x041F, 0x081F, 0x101F, 0x201F, 0x401F):
        e(f"  ds_swizzle_b32 v{t1}, v{t0} offset:{hex(m)}")
        e(f"  ds_swizzle_b32 v{t3}, v{t2} offset:{hex(m)}")
        e("  s_waitcnt lgkmcnt(0)")
        e(f"  v_add_f32 v{t0}, v{t0}, v{t1}")
        e(f"  v_add_f32 v{t2}, v{t2}, v{t3}")
    e("  s_nop 1")
    e(f"  v_permlane32_swap_b32 v{t0}, v{t2}")
    e(f"  v_add_f32 v{t0}, v{t0}, v{t2}")
    e(f"  v_cvt_pk_bf16_f32 v{t0}, v{t0}, v{t0}")
    e(f"  v_lshlrev_b32 v{t0}, 16, v{t0}")
    e(f"  v_mul_f32 v{t0}, {hex(f32bits(-1.4426950408889634))}, v{t0}")
    e(f"  v_exp_f32 v{t0}, v{t0}")
    e("  s_nop 0")
    e(f"  v_add_f32 v{t0}, 1.0, v{t0}")
    e(f"  v_rcp_f32 v{t0}, v{t0}")
    e("  s_nop 0")
    e(f"  v_cvt_pk_bf16_f32 v{t0}, v{t0}, v{t0}")
    e(f"  v_lshlrev_b32 v{t0}, 16, v{t0}")
    e(f"  s_lshl_b32 s{sOff}, s{sOff}, 2")
    e(f"  s_add_u32 s{sOff}, s{sOff}, {G_OFF}")
    e(f"  v_lshrrev_b32 v{t1}, 5, v{vLane}")
    e(f"  v_lshlrev_b32 v{t1}, 2, v{t1}")
    e("  s_mov_b32 exec_lo, 1")
    e("  s_mov_b32 exec_hi, 1")
    e(f"  buffer_store_dword v{t0}, v{t1}, {sr(rWS,4)}, s{sOff} offen sc0 sc1")
    e("  s_mov_b64 exec, -1")
    e("attn_nogate:")
    if "t" in DBG:
        e("  s_memtime s[36:37]")
        e("  s_memrealtime s[38:39]")
        e("  s_waitcnt lgkmcnt(0)")
        e("  s_sub_u32 s36, s36, s32")
        e("  s_sub_u32 s38, s38, s34")
        e("  s_sub_u32 s37, s44, s32")
        srd(28, 40, 256)
        e("  v_mov_b32 v4, s36")
        e("  v_mov_b32 v5, s38")
        e("  v_mov_b32 v6, s37")
        e("  v_mov_b32 v7, 0")
        e(f"  s_lshl_b32 s36, s{sWid}, 4")
        e("  v_mov_b32 v8, s36")
        e("  s_cmp_lg_u32 s2, 100")
        e("  s_cbranch_scc1 attn_done")
        e("  buffer_store_dwordx4 v[4:7], v8, s[28:31], 0 offen")
    e("attn_done:")
    e("  s_endpgm" if not FUSED else "  s_branch outp_kernel_phase")

    e("attn_rare0:")
    e(f"  s_mov_b32 s{sT1}, 0")
    e("  s_branch attn_rare")
    e("attn_rare1:")
    e(f"  s_mov_b32 s{sT1}, 1")
    e("attn_rare:")
    e(f"  v_cmp_ngt_f32 vcc, s{sInf}, v{vO[0]+8}")
    e(f"  v_cmp_ngt_f32 s[26:27], s{sInf}, v{vO[1]+8}")
    e("  s_or_b64 vcc, vcc, s[26:27]")
    e("  s_cbranch_vccz attn_rare_ok")
    e(f"  s_mov_b32 s{sFlag}, 1")
    e("  s_branch attn_rare_back")
    e("attn_rare_ok:")
    for z in range(2):
        e(f"  v_frexp_exp_i32_f32 v{t0}, v{vO[z]+8}")
        e(f"  v_add_u32 v{t0}, {HEAD}, v{t0}")
        e(f"  v_sub_u32 v{t1}, 0, v{t0}")
        e(f"  v_cvt_f32_i32 v{t0}, v{t0}")
        for i in range(9):
            e(f"  v_ldexp_f32 v{vO[z]+i}, v{vO[z]+i}, v{t1}")
        for i in range(8):
            e(f"  v_lshlrev_b32 v{t2}, 16, v{vP[z]+8+i}")
            e(f"  v_and_b32 v{t3}, 0xffff0000, v{vP[z]+8+i}")
            e(f"  v_ldexp_f32 v{t2}, v{t2}, v{t1}")
            e(f"  v_ldexp_f32 v{t3}, v{t3}, v{t1}")
            e(f"  v_cvt_pk_bf16_f32 v{vP[z]+8+i}, v{t2}, v{t3}")
        for i in range(16):
            e(f"  v_sub_f32 v{vS[z]+i}, v{vS[z]+i}, v{t0}")
        for i in range(16):
            e(f"  v_sub_f32 v{vC[z]+i}, v{vC[z]+i}, v{t0}")
    e("attn_rare_back:")
    e(f"  s_cmp_eq_u32 s{sT1}, 0")
    e(f"  s_cbranch_scc1 attn_rare_ret0")
    e("  s_branch attn_rare_ret1")

    e("attn_fallback:")
    for z in range(2):
        e(f"  v_lshlrev_b32 v{vAddr}, 4, v{vLane}")
        for i in range(16):
            e(f"  v_mov_b32 v{vO[z]+i}, 0")
        e(f"  v_mov_b32 v{vG}, 0xff7fffff")
        e(f"  s_mov_b32 s{sIt}, 0")
        e(f"attn_fb_loop{z}:")
        kread(0, 0)
        vread(0, 0)
        e("  s_waitcnt lgkmcnt(0)")
        S = vS[z]
        e(f"  v_mfma_f32_32x32x16_bf16 {vr(S,16)}, {vr(vK,4)}, {vr(vQ[z],4)}, 0")
        e("  s_nop 15")
        e("  s_nop 3")
        rowmax(S, t0, t1)
        e(f"  v_max_f32 v{t0}, v{t0}, v{vG}             ; m_new")
        e(f"  v_sub_f32 v{t1}, v{vG}, v{t0}")
        e(f"  v_exp_f32 v{t1}, v{t1}                    ; alpha")
        e(f"  v_mov_b32 v{vG}, v{t0}")
        for i in range(16):
            e(f"  v_sub_f32 v{S+i}, v{S+i}, v{t0}")
        for i in range(16):
            e(f"  v_exp_f32 v{S+i}, v{S+i}")
        for i in range(9):
            e(f"  v_mul_f32 v{vO[z]+i}, v{vO[z]+i}, v{t1}")
        for i in range(8):
            e(f"  v_cvt_pk_bf16_f32 v{vP[z]+i}, v{S+2*i}, v{S+2*i+1}")
        e("  s_nop 1")
        e(f"  v_mfma_f32_32x32x16_bf16 {vr(vO[z],16)}, {vr(vV,4)}, {vr(vP[z],4)}, {vr(vO[z],16)}")
        e(f"  v_mfma_f32_32x32x16_bf16 {vr(vO[z],16)}, {vr(vV+4,4)}, {vr(vP[z]+4,4)}, {vr(vO[z],16)}")
        e(f"  v_add_u32 v{vAddr}, 2048, v{vAddr}")
        e("  s_nop 15")
        e("  s_nop 3")
        e(f"  s_add_u32 s{sIt}, s{sIt}, 1")
        e(f"  s_cmp_lt_u32 s{sIt}, 64")
        e(f"  s_cbranch_scc1 attn_fb_loop{z}")
    e("  s_branch attn_epilogue")
    return kernel_desc("attn_kernel", NV, 64) if not FUSED else ""

def gen_outp():
    kernel_start("outp_kernel")
    sWA, sWB, sOut, sWS = 4, 6, 8, 10
    rW, rOut, rWS = 12, 20, 24
    sWid, sNB, sTBk, sBr, sTT, sCT, sT0, sT1, sQt, sWo, sM, sOo = 28, 29, 30, 31, 32, 33, 34, 35, 36, 37, 38, 39
    vLane, vWo, vA0, vA1, vG, vOa, t0, t1, t2, t3 = 1, 2, 3, 4, 5, 6, 7, 8, 9, 10
    vWF = 12
    vAcc = 76
    vB = 92
    vOF = 108
    NV = 236
    if FUSED:
        e("  s_and_b32 s78, s2, 15")
        sync_arrive("sy2", 64, 78)
    else:
        e("  s_cmp_ge_u32 s2, 256")
        e("  s_cbranch_scc1 outp_done")
    e("  s_load_dwordx2 s[4:5], s[0:1], 32")
    e("  s_load_dwordx2 s[6:7], s[0:1], 56")
    e("  s_load_dwordx2 s[8:9], s[0:1], 72")
    e("  s_load_dwordx2 s[10:11], s[0:1], 88")
    e(f"  v_and_b32 v{vLane}, 63, v0")
    e(f"  v_lshrrev_b32 v{t0}, 6, v0")
    e("  s_nop 0")
    e(f"  v_readfirstlane_b32 s{sWid}, v{t0}")
    e(f"  s_and_b32 s{sT0}, s2, 7")
    e(f"  s_lshl_b32 s{sT0}, s{sT0}, 2")
    e(f"  s_bfe_u32 s{sT1}, s2, 0x20003")
    e(f"  s_add_u32 s{sTBk}, s{sT0}, s{sT1}")
    e(f"  s_lshr_b32 s{sNB}, s2, 5")
    e(f"  s_lshr_b32 s{sBr}, s{sWid}, 2")
    e(f"  s_bfe_u32 s{sTT}, s{sWid}, 0x10001")
    e(f"  s_and_b32 s{sCT}, s{sWid}, 1")
    e(f"  s_lshl_b32 s{sQt}, s{sTBk}, 1")
    e(f"  s_add_u32 s{sQt}, s{sQt}, s{sTT}")
    e(f"  v_lshrrev_b32 v{t0}, 3, v{vLane}          ; l/8")
    e(f"  v_and_b32 v{t1}, 7, v{vLane}")
    e(f"  v_bfe_u32 v{t2}, v{vLane}, 4, 1           ; (row>>1)&1")
    e(f"  v_lshlrev_b32 v{t2}, 2, v{t2}")
    e(f"  v_xor_b32 v{t1}, v{t1}, v{t2}")
    e(f"  v_lshlrev_b32 v{t1}, 4, v{t1}")
    e(f"  v_lshl_add_u32 v{vWo}, v{t0}, 10, v{t1}")
    e(f"  v_lshlrev_b32 v{vOa}, 4, v{vLane}")
    e("  s_waitcnt lgkmcnt(0)")
    e(f"  s_cmp_eq_u32 s{sBr}, 0")
    e(f"  s_cselect_b32 s{sT0}, s{sWA}, s{sWB}")
    e(f"  s_cselect_b32 s{sT1}, s{sWA+1}, s{sWB+1}")
    srd(rW, sT0, 512 * 1024)
    srd(rOut, sOut, 2097152)
    srd(rWS, sWS, WS_BYTES)
    e(f"  s_and_b32 s{sT0}, s{sWid}, 3")
    e(f"  s_lshl_b32 s{sWo}, s{sT0}, 15              ; q*32 rows * 1024")
    e(f"  s_lshl_b32 s{sT1}, s{sNB}, 7")
    e(f"  s_add_u32 s{sWo}, s{sWo}, s{sT1}")
    e(f"  s_lshl_b32 s{sM}, s{sT0}, 12               ; q*32 rows * 128")
    e(f"  s_lshl_b32 s{sT1}, s{sBr}, 16")
    e(f"  s_add_u32 s{sM}, s{sM}, s{sT1}")
    e(f"  s_lshl_b32 s{sOo}, s{sBr}, 6")
    e(f"  s_add_u32 s{sOo}, s{sOo}, s{sQt}")
    e(f"  s_lshl_b32 s{sOo}, s{sOo}, 15")
    e(f"  s_add_u32 s{sOo}, s{sOo}, {OF_OFF}")
    def wdma(c):
        for i in range(4):
            e(f"  s_add_u32 m0, s{sM}, {c*16384 + i*1024}")
            e(f"  s_add_u32 s{sT0}, s{sWo}, {c*131072 + i*8192}")
            e(f"  buffer_load_dwordx4 v{vWo}, {sr(rW,4)}, s{sT0} offen lds")
    if FUSED:
        for c in range(4):
            wdma(c)
        e(f"  v_mov_b32 v{vWF}, v{vWo}")
        sync_wait("sy2", 64)
        e(f"  v_mov_b32 v{vWo}, v{vWF}")
    for c in range(4):
        if not FUSED:
            wdma(c)
        for s_ in range(8 * c, 8 * c + 8):
            e(f"  buffer_load_dwordx4 {vr(vOF+4*s_,4)}, v{vOa}, {sr(rWS,4)}, s{sOo} offen offset:{(s_%4)*1024}")
            if s_ % 4 == 3:
                e(f"  s_add_u32 s{sOo}, s{sOo}, 4096")
    e(f"  v_and_b32 v{t0}, 31, v{vLane}")
    e(f"  v_lshlrev_b32 v{t0}, 2, v{t0}")
    e(f"  s_lshl_b32 s{sT0}, s{sQt}, 7")
    e(f"  s_add_u32 s{sT0}, s{sT0}, {G_OFF}")
    e(f"  buffer_load_dword v{vG}, v{t0}, {sr(rWS,4)}, s{sT0} offen")
    tr_addr(vA0, vA1, vLane, t0, t1, t2, t3, True)
    e(f"  s_lshl_b32 s{sT0}, s{sCT}, 6")
    e(f"  v_xor_b32 v{vA0}, s{sT0}, v{vA0}")
    e(f"  s_lshl_b32 s{sT0}, s{sBr}, 16")
    e(f"  v_add_u32 v{vA0}, s{sT0}, v{vA0}")
    e(f"  v_add_u32 v{vA1}, 32768, v{vA0}")
    def wread(s_):
        rs = 32 * ((s_ // 8) % 2) + 4 * (s_ % 8)
        for u in range(2):
            e(f"  ds_read_b64_tr_b16 {vr(vWF+rs+u*2,2)}, v{vA0 if s_ < 16 else vA1} offset:{(s_%16)*2048+u*512}")
    e(f"  s_waitcnt vmcnt({3*12+1+8 if not FUSED else 33})")
    e("  s_barrier")
    for s_ in range(8):
        wread(s_)
    for c in range(4):
        if c < 3:
            e(f"  s_waitcnt vmcnt({(2-c)*12+1+8 if not FUSED else (3-c)*8+1}) lgkmcnt(0)")
            if not FUSED:
                e("  s_barrier")
        else:
            e("  s_waitcnt vmcnt(0) lgkmcnt(0)")
        for k in range(8):
            s_ = 8 * c + k
            if c < 3:
                wread(s_ + 8)
            cc = "0" if s_ == 0 else vr(vAcc, 16)
            rs = 32 * (c % 2) + 4 * k
            e(f"  v_mfma_f32_32x32x16_bf16 {vr(vAcc,16)}, {vr(vWF+rs,4)}, {vr(vOF+4*s_,4)}, {cc}")
    e("  s_nop 15")
    e(f"  s_and_b32 s{sT0}, s{sWid}, 3")
    e(f"  s_lshl_b32 s{sT0}, s{sT0}, 12")
    e(f"  s_add_u32 s{sT0}, s{sT0}, 131072")
    e(f"  v_add_u32 v{t0}, s{sT0}, v{vOa}")
    e(f"  s_cmp_eq_u32 s{sBr}, 0")
    e("  s_cbranch_scc1 outp_a")
    for q in range(4):
        e(f"  ds_write_b128 v{t0}, {vr(vAcc+4*q,4)} offset:{q*1024}")
    e("  s_waitcnt lgkmcnt(0)")
    e("  s_barrier")
    e("  s_endpgm")
    e("outp_a:")
    vOm = t1
    e(f"  v_sub_f32 v{vOm}, 1.0, v{vG}")
    e(f"  v_cvt_pk_bf16_f32 v{vOm}, v{vOm}, v{vOm}")
    e(f"  v_lshlrev_b32 v{vOm}, 16, v{vOm}")
    e(f"  s_mov_b32 s{sT1}, 0xffff0000")
    def round_pair(x0, x1, tmp):
        e(f"  v_cvt_pk_bf16_f32 v{tmp}, v{x0}, v{x1}")
        e(f"  v_lshlrev_b32 v{x0}, 16, v{tmp}")
        e(f"  v_and_b32 v{x1}, s{sT1}, v{tmp}")
    for i in range(0, 16, 2):
        round_pair(vAcc + i, vAcc + i + 1, t2)
        e(f"  v_mul_f32 v{vAcc+i}, v{vG}, v{vAcc+i}")
        e(f"  v_mul_f32 v{vAcc+i+1}, v{vG}, v{vAcc+i+1}")
        round_pair(vAcc + i, vAcc + i + 1, t2)
    e("  s_barrier")
    for q in range(4):
        e(f"  ds_read_b128 {vr(vB+4*q,4)}, v{t0} offset:{q*1024}")
    e(f"  v_and_b32 v{t0}, 31, v{vLane}")
    e(f"  v_lshlrev_b32 v{t0}, 10, v{t0}")
    e(f"  v_lshrrev_b32 v{t2}, 5, v{vLane}")
    e(f"  v_lshl_add_u32 v{t0}, v{t2}, 5, v{t0}")
    e(f"  s_lshl_b32 s{sT0}, s{sQt}, 15")
    e(f"  s_lshl_b32 s{sWo}, s{sNB}, 7")
    e(f"  s_add_u32 s{sT0}, s{sT0}, s{sWo}")
    e(f"  s_lshl_b32 s{sWo}, s{sCT}, 6")
    e(f"  s_add_u32 s{sT0}, s{sT0}, s{sWo}")
    e("  s_waitcnt lgkmcnt(0)")
    for i in range(0, 16, 2):
        round_pair(vB + i, vB + i + 1, t2)
        e(f"  v_mul_f32 v{vB+i}, v{vOm}, v{vB+i}")
        e(f"  v_mul_f32 v{vB+i+1}, v{vOm}, v{vB+i+1}")
        round_pair(vB + i, vB + i + 1, t2)
        e(f"  v_add_f32 v{vAcc+i}, v{vAcc+i}, v{vB+i}")
        e(f"  v_add_f32 v{vAcc+i+1}, v{vAcc+i+1}, v{vB+i+1}")
        e(f"  v_cvt_pk_bf16_f32 v{vOF+i//2}, v{vAcc+i}, v{vAcc+i+1}")
        if i == 6:
            e(f"  buffer_store_dwordx4 {vr(vOF,4)}, v{t0}, {sr(rOut,4)}, s{sT0} offen")
    e(f"  buffer_store_dwordx4 {vr(vOF+4,4)}, v{t0}, {sr(rOut,4)}, s{sT0} offen offset:16")
    if "R" in DBG:
        e("  s_waitcnt vmcnt(0)")
        stamp(7)
        for i in range(8):
            e(f"  v_mov_b32 v{20+i}, s{82+i}")
        e(f"  s_lshl_b32 s80, s2, 5")
        e(f"  s_add_u32 s80, s80, {20<<20}")
        e("  v_mov_b32 v28, 0")
        e(f"  s_cmp_lg_u32 s{sWid}, 0")
        e("  s_cbranch_scc1 outp_done")
        e("  s_mov_b64 exec, 1")
        e(f"  buffer_store_dwordx4 v[20:23], v28, {sr(rWS,4)}, s80 offen")
        e(f"  buffer_store_dwordx4 v[24:27], v28, {sr(rWS,4)}, s80 offen offset:16")
    e("outp_done:")
    e("  s_endpgm")
    return kernel_desc("outp_kernel", NV, 48) if not FUSED else kernel_desc(KNAME, 240, 96)

descs = []
descs.append(gen_proj())
descs.append(gen_attn())
descs.append(gen_outp())
if "r" in DBG:
    import re
    L4 = []
    kidx = -1
    for ln in L:
        st = ln.strip()
        if st.endswith("_kernel:"):
            kidx += 1
            B = 250
            L4.append(ln)
            L4.append("  s_memrealtime s[90:91]")
            L4.append("  s_load_dwordx2 s[92:93], s[0:1], 88")
            L4.append(f"  v_mov_b32 v{B}, v0")
            continue
        if st == "s_endpgm":
            L4.append("  s_waitcnt vmcnt(0) lgkmcnt(0)")
            L4.append("  s_memrealtime s[94:95]")
            L4.append("  s_mov_b32 s96, s92")
            L4.append("  s_and_b32 s97, s93, 0xffff")
            L4.append("  s_mov_b32 s98, 268435456")
            L4.append("  s_mov_b32 s99, 0x00020000")
            L4.append("  s_waitcnt lgkmcnt(0)")
            L4.append(f"  v_mov_b32 v{B+2}, s90")
            L4.append(f"  v_mov_b32 v{B+3}, s94")
            L4.append(f"  v_lshrrev_b32 v{B+1}, 6, v{B}")
            L4.append(f"  v_lshlrev_b32 v{B+1}, 3, v{B+1}")
            L4.append(f"  s_lshl_b32 s90, s2, 7")
            L4.append(f"  s_add_u32 s90, s90, {(20<<20) + kidx*65536}")
            L4.append("  s_mov_b64 exec, 1")
            L4.append(f"  buffer_store_dwordx2 v[{B+2}:{B+3}], v{B+1}, s[96:99], s90 offen")
        L4.append(ln)
    L[:] = L4
    def fix(d):
        n = 256
        d = re.sub(r"next_free_vgpr \d+", f"next_free_vgpr {n}", d)
        d = re.sub(r"accum_offset \d+", f"accum_offset {n}", d)
        return re.sub(r"next_free_sgpr \d+", "next_free_sgpr 102", d)
    descs[:] = [fix(d) for d in descs]
L3 = []
for ln in L:
    if ln.strip().startswith("buffer_store_dwordx4") and ("s[28:31]" in ln or "s[8:11]" in ln) and "v[4:7], v8" not in ln:
        ln = ln + " sc0 sc1"
    L3.append(ln)
L[:] = L3
STF = os.environ.get("STF", "")
if STF:
    L2 = []
    for ln in L:
        if ln.strip().startswith("buffer_store_dwordx4"):
            if STF == "skip":
                continue
            ln = ln + " " + STF
        L2.append(ln)
    L[:] = L2
if FUSED:
    LAUNCH = """; One launch, three phases (projections -> attention -> output projection + gate mix); the phases hand
; @launch grid=(256,1,1) block=(512,1,1) lds=147456"""
else:
    LAUNCH = """; Three launches: projections -> attention (both branches) -> output projection + gate mix.
; @launch kernel=proj_kernel grid=(256,1,1) block=(512,1,1) lds=147456
; @launch kernel=attn_kernel grid=(256,1,1) block=(512,1,1) lds=135232
; @launch kernel=outp_kernel grid=(256,1,1) block=(512,1,1) lds=147456"""
text = HEADER.replace("%LAUNCH%", LAUNCH) + "\n".join(L) + "\n" + '.section .rodata,"a"\n' + "".join(descs)
open(OUT, "w").write(text)
print("wrote", OUT, len(text), "bytes")
```

```python
import sys, struct, os
DBG = os.environ.get("DBG","")

OUT = sys.argv[1] if len(sys.argv) > 1 else "gated_mix__grouped_kv_mqa__mha_block__prompt.s"

def f32bits(x):
    return struct.unpack("<I", struct.pack("<f", x))[0]

QF_OFF = 0
KV_OFF = 4 << 20
OF_OFF = 12 << 20
G_OFF  = 16 << 20
WS_BYTES = 268435456
SCALE = 0.25 * 1.4426950408889634
THR = int(os.environ.get("THR", "64"))
HEAD = int(os.environ.get("HEAD", "40"))

FUSED = os.environ.get("FUSED", "0") == "1"
KNAME = "gated_mix__grouped_kv_mqa__mha_block__prompt_kernel"
L = []
def e(s=""):
    L.append(s)
def vr(b, n=1):
    return f"v{b}" if n == 1 else f"v[{b}:{b+n-1}]"
def sr(b, n=1):
    return f"s{b}" if n == 1 else f"s[{b}:{b+n-1}]"

def srd(dst, base, nbytes):
    e(f"  s_mov_b32 s{dst}, s{base}")
    e(f"  s_and_b32 s{dst+1}, s{base+1}, 0xffff")
    e(f"  s_mov_b32 s{dst+2}, {nbytes}")
    e(f"  s_mov_b32 s{dst+3}, 0x00020000")

HEADER = """; Kernarg layout for this problem (96 bytes, ptrs only, base s[0:1]):
%LAUNCH%
.amdgcn_target "amdgcn-amd-amdhsa--gfx950"
.text
"""

def kernel_start(name):
    if FUSED:
        if name != "proj_kernel":
            e(f"{name}_phase:")
            return
        name = KNAME
    e(f".globl {name}")
    e(".p2align 8")
    e(f".type {name},@function")
    e(f"{name}:")

def kernel_desc(name, nvgpr, nsgpr):
    acc = (nvgpr + 3) // 4 * 4
    return f""".p2align 6
.amdhsa_kernel {name}
  .amdhsa_next_free_vgpr {nvgpr}
  .amdhsa_next_free_sgpr {nsgpr}
  .amdhsa_accum_offset {acc}
  .amdhsa_group_segment_fixed_size 0
  .amdhsa_kernarg_size 96
  .amdhsa_user_sgpr_count 2
  .amdhsa_user_sgpr_kernarg_segment_ptr 1
  .amdhsa_system_sgpr_workgroup_id_x 1
.end_amdhsa_kernel
"""

def stamp(i):
    if "R" in DBG:
        e("  s_memrealtime s[80:81]")
        e("  s_waitcnt lgkmcnt(0)")
        e(f"  s_mov_b32 s{82+i}, s80")
def sync_arrive(tag, base, sidx):
    stamp(1 if tag == "sy1" else 4)
    e("  s_waitcnt vmcnt(0) lgkmcnt(0)")
    stamp(2 if tag == "sy1" else 5)
    e("  s_barrier")
    e("  s_load_dwordx2 s[70:71], s[0:1], 80")
    e("  v_lshrrev_b32 v2, 6, v0")
    e("  v_and_b32 v1, 63, v0")
    e("  v_readfirstlane_b32 s76, v2")
    e("  s_waitcnt lgkmcnt(0)")
    srd(72, 70, 256)
    e("  s_cmp_lg_u32 s76, 0")
    e(f"  s_cbranch_scc1 {tag}_arrived")
    e(f"  s_lshl_b32 s77, s{sidx}, 2")
    e(f"  s_add_u32 s77, s77, {base}")
    e("  v_mov_b32 v2, 0")
    e("  v_mov_b32 v3, 1")
    e("  s_mov_b64 exec, 1")
    e("  buffer_atomic_add v3, v2, s[72:75], s77 offen sc1")
    e("  s_mov_b64 exec, -1")
    e(f"{tag}_arrived:")
def sync_wait(tag, base):
    e("  s_cmp_lg_u32 s76, 0")
    e(f"  s_cbranch_scc1 {tag}_go")
    e("  v_lshlrev_b32 v2, 2, v1")
    e("  s_mov_b32 s77, 0")
    e("  s_mov_b64 exec, 0xffff")
    e(f"{tag}_poll:")
    e(f"  buffer_load_dword v3, v2, s[72:75], 0 offen offset:{base} sc1")
    e("  s_waitcnt vmcnt(0)")
    e("  v_cmp_ne_u32 vcc, 16, v3")
    e(f"  s_cbranch_vccz {tag}_done")
    e("  s_sleep 1")
    e("  s_add_u32 s77, s77, 1")
    e("  s_cmp_lt_u32 s77, 0x400000")
    e(f"  s_cbranch_scc1 {tag}_poll")
    e(f"{tag}_done:")
    e("  s_mov_b64 exec, -1")
    e(f"{tag}_go:")
    e("  s_barrier")
    stamp(3 if tag == "sy1" else 6)

def tr_addr(vA0, vA1, vlane, t0, t1, t2, t3, perm):
    e(f"  v_lshrrev_b32 v{t0}, 4, v{vlane}          ; g")
    e(f"  v_and_b32 v{t1}, 1, v{t0}                 ; g%2")
    e(f"  v_lshrrev_b32 v{t0}, 1, v{t0}             ; h")
    e(f"  v_bfe_u32 v{t2}, v{vlane}, 2, 2           ; r")
    e(f"  v_lshl_add_u32 v{t0}, v{t0}, 3, v{t2}     ; 8h + r")
    e(f"  v_lshlrev_b32 v{t0}, 7, v{t0}             ; *128")
    e(f"  v_and_b32 v{t3}, 3, v{vlane}              ; c")
    e(f"  v_lshl_add_u32 v{t1}, v{t1}, 2, v{t3}     ; mc=(g%2)*4+c")
    if perm:
        e(f"  v_and_b32 v{t3}, 1, v{t1}")
        e(f"  v_lshrrev_b32 v{t1}, 1, v{t1}")
        e(f"  v_lshl_add_u32 v{t1}, v{t3}, 2, v{t1}     ; nc = 4*(mc%2)+mc/2")
    e(f"  v_and_b32 v{t3}, 1, v{t1}")
    e(f"  v_lshl_add_u32 v{t0}, v{t3}, 3, v{t0}     ; + (nc%2)*8")
    e(f"  v_lshrrev_b32 v{t1}, 1, v{t1}")
    e(f"  v_lshrrev_b32 v{t2}, 1, v{t2}             ; (r>>1)&1")
    e(f"  v_lshlrev_b32 v{t2}, 2, v{t2}")
    e(f"  v_xor_b32 v{t1}, v{t1}, v{t2}")
    e(f"  v_lshl_add_u32 v{vA0}, v{t1}, 4, v{t0}")
    e(f"  v_xor_b32 v{vA1}, 64, v{vA0}")

def gen_proj():
    kernel_start("proj_kernel")
    STG = 36864
    sX, sWQ, sWK, sWV, sWQKV, sWS = 4, 6, 8, 10, 12, 16
    rX, rW, rWS, rS = 20, 24, 28, 32
    sNB, sTB, sT0, sT1, sT2, sPitch, sCol, sWid = 40, 41, 42, 43, 44, 45, 46, 47
    sEx = 48
    sOff, sTT, sCG, sSpec, sXo, sWo, sM, sQt = 50, 51, 52, 53, 54, 55, 56, 57
    sC, sSo, sMS = 58, 59, 60
    sSMask = 36
    e("  s_cmp_ge_u32 s2, 256")
    e("  s_cbranch_scc1 proj_done" if not FUSED else "  s_cbranch_scc1 outp_done")
    stamp(0)
    e("  s_load_dwordx4 s[4:7], s[0:1], 0")
    e("  s_load_dwordx4 s[8:11], s[0:1], 16")
    e("  s_load_dwordx2 s[12:13], s[0:1], 48")
    e("  s_load_dwordx2 s[16:17], s[0:1], 88")
    if "p" in DBG:
        e("  s_load_dwordx2 s[80:81], s[0:1], 80")
        e("  s_memtime s[64:65]")
    e(f"  s_and_b32 s{sT0}, s2, 3")
    e(f"  s_lshl_b32 s{sT0}, s{sT0}, 2")
    e(f"  s_bfe_u32 s{sT1}, s2, 0x20003")
    e(f"  s_add_u32 s{sTB}, s{sT0}, s{sT1}")
    e(f"  s_bfe_u32 s{sT0}, s2, 0x10002")
    e(f"  s_lshl_b32 s{sT0}, s{sT0}, 3")
    e(f"  s_lshr_b32 s{sT1}, s2, 5")
    e(f"  s_add_u32 s{sNB}, s{sT0}, s{sT1}")
    vLane = 1; vXo0 = 2; vXo1 = 3; vWo = 4; vSt = 5; vSo = 6
    t0, t1, t2, t3 = 8, 9, 10, 11
    vXA = 12
    vWA = 20
    vSA = 24
    vXF = 28
    vWF = 44
    vSF = 76
    vAcc = 156
    vOut = 28
    NV = 204
    e(f"  v_and_b32 v{vLane}, 63, v0")
    e(f"  v_lshrrev_b32 v{t0}, 6, v0")
    e("  s_nop 0")
    e(f"  v_readfirstlane_b32 s{sWid}, v{t0}")
    e(f"  s_sub_u32 s{sSpec}, s{sNB}, s{sTB}")
    e(f"  s_and_b32 s{sSpec}, s{sSpec}, 15")
    e(f"  s_and_b32 s{sTT}, s{sWid}, 3")
    e(f"  s_lshr_b32 s{sCG}, s{sWid}, 2")
    e(f"  s_lshl_b32 s{sQt}, s{sTB}, 2")
    e(f"  s_add_u32 s{sQt}, s{sQt}, s{sTT}")
    e(f"  v_lshrrev_b32 v{t0}, 3, v{vLane}          ; l/8")
    e(f"  v_lshrrev_b32 v{t1}, 4, v{vLane}          ; l/16")
    e(f"  v_and_b32 v{t2}, 7, v{vLane}")
    if "z" not in DBG:
        e(f"  v_xor_b32 v{t2}, v{t2}, v{t1}")
    e(f"  v_lshlrev_b32 v{t2}, 4, v{t2}")
    e(f"  v_lshl_add_u32 v{vXo0}, v{t0}, 10, v{t2}")
    e(f"  v_xor_b32 v{vXo1}, 64, v{vXo0}")
    e(f"  v_add_u32 v{vXo1}, 8192, v{vXo1}")
    e(f"  v_lshrrev_b32 v{t0}, 2, v{vLane}")
    e(f"  v_and_b32 v{t2}, 1, v{vLane}")
    e(f"  v_lshlrev_b32 v{t2}, 4, v{t2}")
    e(f"  v_lshl_add_u32 v{vSo}, v{t0}, 5, v{t2}")
    e(f"  v_and_b32 v{t2}, 15, v{vLane}")
    e(f"  v_lshlrev_b32 v{t3}, 2, v{t1}")
    if "z" not in DBG:
        e(f"  v_xor_b32 v{t2}, v{t2}, v{t3}")
    e(f"  v_lshlrev_b32 v{t2}, 4, v{t2}")
    e("  s_waitcnt lgkmcnt(0)")
    if "p" in DBG:
        e("  s_memtime s[78:79]")
        e("  s_waitcnt lgkmcnt(0)")
    srd(rX, sX, 2097152)
    srd(rWS, sWS, WS_BYTES)
    e(f"  s_cmp_lt_u32 s{sNB}, 4")
    e("  s_cbranch_scc1 proj_wq")
    srd(rW, sWQKV, 512 * 3072)
    e(f"  s_sub_u32 s{sCol}, s{sNB}, 4")
    e(f"  s_lshl_b32 s{sCol}, s{sCol}, 8")
    e(f"  s_mov_b32 s{sPitch}, 3072")
    e("  s_branch proj_wcommon")
    e("proj_wq:")
    srd(rW, sWQ, 512 * 1024)
    e(f"  s_lshl_b32 s{sCol}, s{sNB}, 8")
    e(f"  s_mov_b32 s{sPitch}, 1024")
    e("proj_wcommon:")
    e(f"  v_mul_lo_u32 v{vWo}, v{t1}, s{sPitch}")
    e(f"  v_add_u32 v{vWo}, v{vWo}, v{t2}")
    e(f"  s_lshl_b32 s{sXo}, s{sTB}, 17")
    e(f"  s_lshl_b32 s{sT0}, s{sWid}, 14")
    e(f"  s_add_u32 s{sXo}, s{sXo}, s{sT0}")
    e(f"  s_lshl_b32 s{sT0}, s{sWid}, 3")
    e(f"  s_mul_i32 s{sWo}, s{sT0}, s{sPitch}")
    e(f"  s_add_u32 s{sWo}, s{sWo}, s{sCol}")
    e(f"  s_lshl_b32 s{sM}, s{sWid}, 11")
    e(f"  s_lshl_b32 s{sT2}, s{sPitch}, 2            ; 4*pitch")
    e(f"  s_lshl_b32 s{sPitch}, s{sPitch}, 6")
    e(f"  s_mov_b32 s{sC}, 0")
    e(f"  s_bitcmp1_b32 s{sWid}, 0")
    e(f"  s_cselect_b32 s{sT0}, s{sWV}, s{sWK}")
    e(f"  s_cselect_b32 s{sT1}, s{sWV+1}, s{sWK+1}")
    e(f"  s_mov_b32 s{sSMask}, 0x33333333")
    e(f"  s_cselect_b32 s{sSMask}, 0xcccccccc, s{sSMask}")
    e(f"  s_mov_b32 s{sSMask+1}, s{sSMask}")
    srd(rS, sT0, 512 * 32)
    e(f"  s_lshr_b32 s{sT0}, s{sWid}, 1")
    e(f"  s_lshl_b32 s{sSo}, s{sT0}, 9               ; 16 rows * 32B")
    e(f"  s_lshl_b32 s{sMS}, s{sT0}, 10")

    def dma_piece(c, spec, i):
        st = (c % 4) * STG
        if i == 0:
            e(f"  s_lshl_b32 s{sT0}, s{sC}, 7")
            e(f"  s_add_u32 s{sT0}, s{sT0}, s{sXo}")
            e(f"  s_add_u32 m0, s{sM}, {st}")
            e(f"  s_mul_i32 s{sT1}, s{sC}, s{sPitch}")
            e(f"  buffer_load_dwordx4 v{vXo0}, {sr(rX,4)}, s{sT0} offen lds")
        elif i == 1:
            e(f"  s_add_u32 m0, s{sM}, {st+1024}")
            e(f"  s_add_u32 s{sT1}, s{sT1}, s{sWo}")
            e(f"  buffer_load_dwordx4 v{vXo1}, {sr(rX,4)}, s{sT0} offen lds")
        elif i == 2:
            e(f"  s_add_u32 m0, s{sM}, {st+16384}")
            e(f"  s_add_u32 s{sT0}, s{sT1}, s{sT2}")
            e(f"  buffer_load_dwordx4 v{vWo}, {sr(rW,4)}, s{sT1} offen lds")
        else:
            e(f"  s_add_u32 m0, s{sM}, {st+16384+1024}")
            e(f"  s_lshl_b32 s{sT1}, s{sC}, 11")
            e(f"  buffer_load_dwordx4 v{vWo}, {sr(rW,4)}, s{sT0} offen lds")
            if spec:
                e(f"  s_add_u32 m0, s{sMS}, {st+32768}")
                e(f"  s_add_u32 s{sT1}, s{sT1}, s{sSo}")
                e(f"  s_mov_b64 exec, {sr(sSMask,2)}")
                e(f"  buffer_load_dwordx4 v{vSo}, {sr(rS,4)}, s{sT1} offen lds")
                e("  s_mov_b64 exec, -1")
            e(f"  s_add_u32 s{sC}, s{sC}, 1")
            e(f"  s_and_b32 s{sC}, s{sC}, 7")
    def dma(c, spec):
        for i in range(4):
            dma_piece(c, spec, i)

    def addr_setup():
        e(f"  v_and_b32 v{t0}, 31, v{vLane}")
        e(f"  v_lshrrev_b32 v{t1}, 5, v{vLane}          ; h")
        e(f"  v_bfe_u32 v{t2}, v{vLane}, 1, 3           ; (row>>1)&7")
        e(f"  v_xor_b32 v{t1}, v{t1}, v{t2}")
        e(f"  v_lshlrev_b32 v{t1}, 4, v{t1}")
        e(f"  v_lshl_add_u32 v{t0}, v{t0}, 7, v{t1}")
        e(f"  s_lshl_b32 s{sOff}, s{sTT}, 12")
        e(f"  v_add_u32 v{t0}, s{sOff}, v{t0}")
        for sp in range(4):
            e(f"  v_xor_b32 v{vXA+sp}, {sp*32}, v{t0}")
            e(f"  v_add_u32 v{vXA+4+sp}, {2*STG}, v{vXA+sp}")
        e(f"  v_lshrrev_b32 v{t0}, 5, v{vLane}          ; h")
        e(f"  v_bfe_u32 v{t1}, v{vLane}, 2, 2           ; r")
        e(f"  v_lshl_add_u32 v{t0}, v{t0}, 3, v{t1}     ; 8h+r")
        e(f"  v_bfe_u32 v{t2}, v{vLane}, 4, 1           ; g%2")
        e(f"  v_and_b32 v{t3}, 3, v{vLane}              ; c")
        e(f"  v_lshl_add_u32 v{t2}, v{t2}, 2, v{t3}     ; nc")
        e(f"  v_lshlrev_b32 v{t2}, 3, v{t2}             ; nc*8")
        e(f"  v_lshl_add_u32 v{vSA}, v{t0}, 6, v{t2}")
        e(f"  v_add_u32 v{vSA}, 32768, v{vSA}")
        e(f"  v_add_u32 v{vSA+1}, {2*STG}, v{vSA}")
        e(f"  v_lshl_add_u32 v{t0}, v{t0}, 8, v{t2}     ; k*256 + nc*8")
        e(f"  s_lshl_b32 s{sOff}, s{sCG}, 1")
        e(f"  v_xor_b32 v{t1}, s{sOff}, v{t1}           ; (2cg) ^ r")
        e(f"  v_lshl_add_u32 v{t0}, v{t1}, 6, v{t0}")
        e(f"  v_add_u32 v{vWA}, 16384, v{t0}")
        e(f"  v_xor_b32 v{vWA+1}, 64, v{vWA}")
        e(f"  v_add_u32 v{vWA+2}, {2*STG}, v{vWA}")
        e(f"  v_add_u32 v{vWA+3}, {2*STG}, v{vWA+1}")

    def reads(c, sp, spec):
        st = c % 4
        so = (st % 2) * STG
        hi = st // 2
        rs = 64 * (c % 2)
        e(f"  ds_read_b128 {vr(vXF+rs+4*sp,4)}, v{vXA+sp+4*hi} offset:{so}")
        for ct in range(2):
            for u in range(2):
                e(f"  ds_read_b64_tr_b16 {vr(vWF+rs+sp*8+ct*4+u*2,2)}, v{vWA+2*hi+ct} offset:{so+(16*sp+4*u)*256}")
        if spec:
            for u in range(2):
                e(f"  ds_read_b64_tr_b16 {vr(vSF+rs+sp*4+u*2,2)}, v{vSA+hi} offset:{so+(16*sp+4*u)*64}")

    def mainloop(orient, spec, dspec):
        n = 5 if dspec else 4
        for c in range(2):
            dma(c, dspec)
        addr_setup()
        e(f"  s_waitcnt vmcnt({n})")
        e("  s_barrier")
        if "p" in DBG:
            e(f"  s_memtime s[66:67]")
            e("  s_waitcnt lgkmcnt(0)")
        for sp in range(4):
            reads(0, sp, spec)
        for c in range(2, 4):
            dma(c, dspec)
        for c in range(8):
            if c < 7:
                ng = min(c + 3, 7) - (c + 1)
                e(f"  s_waitcnt vmcnt({ng*n}) lgkmcnt(0)")
                e("  s_barrier")
                if "p" in DBG and c in (0,3,6):
                    e(f"  s_memtime s[{68+2*(0,3,6).index(c)}:{69+2*(0,3,6).index(c)}]")
                    e("  s_waitcnt lgkmcnt(0)")
            else:
                e("  s_waitcnt lgkmcnt(0)")
            rs = 64 * (c % 2)
            for sp in range(4):
                if c < 7:
                    reads(c + 1, sp, spec)
                xf = vXF + rs + 4 * sp
                first = (c == 0 and sp == 0)
                for ct in range(2):
                    wf = vWF + rs + sp * 8 + ct * 4
                    acc = vAcc + 16 * ct
                    cc = "0" if first else vr(acc, 16)
                    if orient == 'T':
                        e(f"  v_mfma_f32_32x32x16_bf16 {vr(acc,16)}, {vr(wf,4)}, {vr(xf,4)}, {cc}")
                    else:
                        e(f"  v_mfma_f32_32x32x16_bf16 {vr(acc,16)}, {vr(xf,4)}, {vr(wf,4)}, {cc}")
                if spec:
                    acc = vAcc + 32
                    sf = vSF + rs + 4 * sp
                    cc = "0" if first else vr(acc, 16)
                    if spec == 'T':
                        e(f"  v_mfma_f32_32x32x16_bf16 {vr(acc,16)}, {vr(sf,4)}, {vr(xf,4)}, {cc}")
                    else:
                        e(f"  v_mfma_f32_32x32x16_bf16 {vr(acc,16)}, {vr(xf,4)}, {vr(sf,4)}, {cc}")
                if c + 4 <= 7:
                    dma_piece(c + 4, dspec, sp)
        e("  s_nop 15")
        if "p" in DBG:
            e("  s_memtime s[74:75]")
            e("  s_waitcnt lgkmcnt(0)")

    def v_store_addr():
        e(f"  v_and_b32 v{t0}, 3, v{vLane}")
        e(f"  v_and_b32 v{t1}, 4, v{vLane}")
        e(f"  v_lshl_or_b32 v{t0}, v{t1}, 1, v{t0}")
        e(f"  v_and_b32 v{t1}, 8, v{vLane}")
        e(f"  v_lshrrev_b32 v{t1}, 1, v{t1}")
        e(f"  v_or_b32 v{t0}, v{t0}, v{t1}              ; m")
        e(f"  v_lshlrev_b32 v{t0}, 4, v{t0}")
        e(f"  v_lshrrev_b32 v{t1}, 5, v{vLane}          ; half")
        e(f"  v_lshl_add_u32 v{t0}, v{t1}, 9, v{t0}")
        e(f"  v_bfe_u32 v{t1}, v{vLane}, 4, 1           ; subhead")
        e(f"  v_lshl_add_u32 v{vSt}, v{t1}, 17, v{t0}")

    def spec_epilogue(kind):
        A = vAcc + 32
        e(f"  s_lshl_b32 s{sOff}, s{sQt}, 11")
        if kind == 'T':
            e(f"  s_add_u32 s{sOff}, s{sOff}, {KV_OFF + 32*131072}")
            e(f"  v_lshlrev_b32 v{t2}, 4, v{vLane}")
            for j in range(4):
                e(f"  v_cvt_pk_bf16_f32 v{vOut+16+j}, v{A+2*j}, v{A+2*j+1}")
            e(f"  buffer_store_dwordx4 {vr(vOut+16,4)}, v{t2}, {sr(rWS,4)}, s{sOff} offen")
        else:
            e(f"  s_add_u32 s{sOff}, s{sOff}, {KV_OFF + 31*131072}")
            v_store_addr()
            for j in range(8):
                e(f"  v_cvt_pk_bf16_f32 v{vOut+16+j}, v{A+2*j}, v{A+2*j+1}")
            e(f"  v_and_b32 v{t0}, 16, v{vLane}")
            e(f"  v_cmp_ne_u32 vcc, 0, v{t0}")
            e(f"  s_and_saveexec_b64 {sr(sEx,2)}, vcc")
            for j in range(2):
                e(f"  buffer_store_dwordx4 {vr(vOut+16+j*4,4)}, v{vSt}, {sr(rWS,4)}, s{sOff} offen offset:{1024+j*256}")
            e(f"  s_mov_b64 exec, {sr(sEx,2)}")

    def variants(o):
        e(f"  s_cmp_ge_u32 s{sSpec}, 8")
        e(f"  s_cbranch_scc1 proj_{o}_plain")
        e(f"  s_cmp_lg_u32 s{sSpec}, s{sWid}")
        e(f"  s_cbranch_scc1 proj_{o}_none")
        e(f"  s_cmp_eq_u32 s{sCG}, 0")
        e(f"  s_cbranch_scc1 proj_{o}_T")
        e(f"proj_{o}_N:")
        mainloop(o, 'N', True)
        spec_epilogue('N')
        e(f"  s_branch proj_{o}_epi")
        e(f"proj_{o}_T:")
        mainloop(o, 'T', True)
        spec_epilogue('T')
        e(f"  s_branch proj_{o}_epi")
        e(f"proj_{o}_none:")
        mainloop(o, None, True)
        e(f"  s_branch proj_{o}_epi")
        e(f"proj_{o}_plain:")
        mainloop(o, None, False)
    e(f"  s_cmp_ge_u32 s{sNB}, 12")
    e("  s_cbranch_scc1 proj_v_sel")
    variants('T')
    e("proj_T_epi:")
    e(f"  s_mov_b32 s{sT1}, {f32bits(SCALE)}")
    e(f"  s_cmp_lt_u32 s{sNB}, 8")
    e(f"  s_cselect_b32 s{sT1}, s{sT1}, 1.0")
    e(f"  s_lshl_b32 s{sT2}, s{sNB}, 3")
    e(f"  s_lshl_b32 s{sT0}, s{sCG}, 2")
    e(f"  s_add_u32 s{sT2}, s{sT2}, s{sT0}")
    e(f"  s_lshl_b32 s{sT2}, s{sT2}, 6")
    e(f"  s_add_u32 s{sT2}, s{sT2}, s{sQt}")
    e(f"  s_lshl_b32 s{sOff}, s{sT2}, 10             ; Q dest")
    e(f"  s_mov_b32 s{sCol}, 65536")
    e(f"  s_cmp_lt_u32 s{sNB}, 8")
    e(f"  s_cbranch_scc1 proj_qk_store")
    e(f"  s_sub_u32 s{sT2}, s{sT2}, {64*64}")
    e(f"  s_lshl_b32 s{sOff}, s{sT2}, 11")
    e(f"  s_add_u32 s{sOff}, s{sOff}, {KV_OFF}")
    e(f"  s_mov_b32 s{sCol}, 131072")
    e("proj_qk_store:")
    e(f"  v_lshlrev_b32 v{vSt}, 4, v{vLane}")
    for hh in range(4):
        for i in range(8):
            e(f"  v_mul_f32 v{vAcc+hh*8+i}, s{sT1}, v{vAcc+hh*8+i}")
        for j in range(4):
            e(f"  v_cvt_pk_bf16_f32 v{vOut+hh*4+j}, v{vAcc+hh*8+2*j}, v{vAcc+hh*8+2*j+1}")
        e(f"  buffer_store_dwordx4 {vr(vOut+hh*4,4)}, v{vSt}, {sr(rWS,4)}, s{sOff} offen")
        if hh < 3:
            e(f"  s_add_u32 s{sOff}, s{sOff}, s{sCol}")
    if "p" in DBG:
        e("  s_waitcnt vmcnt(0)")
        e("  s_memtime s[76:77]")
        e("  s_waitcnt lgkmcnt(0)")
        for i in range(7):
            e(f"  s_sub_u32 s{66+2*i}, s{66+2*i}, s64")
            e(f"  v_mov_b32 v{4+i}, s{66+2*i}")
        e("  v_mov_b32 v11, 0")
        srd(84, 80, 256)
        e(f"  s_lshl_b32 s64, s{sWid}, 5")
        e("  v_mov_b32 v12, s64")
        e("  s_cmp_lg_u32 s2, 40")
        e("  s_cbranch_scc1 proj_done")
        e("  buffer_store_dwordx4 v[4:7], v12, s[84:87], 0 offen")
        e("  buffer_store_dwordx4 v[8:11], v12, s[84:87], 0 offen offset:16")
    e("  s_endpgm" if not FUSED else "  s_branch proj_fin")
    e("proj_v_sel:")
    variants('N')
    e("proj_N_epi:")
    v_store_addr()
    e(f"  s_sub_u32 s{sT2}, s{sNB}, 12")
    e(f"  s_lshl_b32 s{sT2}, s{sT2}, 3")
    e(f"  s_lshl_b32 s{sT0}, s{sCG}, 2")
    e(f"  s_add_u32 s{sT2}, s{sT2}, s{sT0}")
    e(f"  s_lshl_b32 s{sT2}, s{sT2}, 6")
    e(f"  s_add_u32 s{sT2}, s{sT2}, s{sQt}")
    e(f"  s_lshl_b32 s{sOff}, s{sT2}, 11")
    e(f"  s_add_u32 s{sOff}, s{sOff}, {KV_OFF+1024}")
    for ct in range(2):
        for j in range(8):
            e(f"  v_cvt_pk_bf16_f32 v{vOut+ct*8+j}, v{vAcc+ct*16+2*j}, v{vAcc+ct*16+2*j+1}")
        for j in range(2):
            e(f"  buffer_store_dwordx4 {vr(vOut+ct*8+j*4,4)}, v{vSt}, {sr(rWS,4)}, s{sOff} offen offset:{j*256}")
        if ct == 0:
            e(f"  s_add_u32 s{sOff}, s{sOff}, {2*131072}")
    if FUSED:
        e("proj_fin:")
        sync_arrive("sy1", 0, sNB)
        sync_wait("sy1", 0)
        return ""
    e("proj_done:")
    e("  s_endpgm")
    return kernel_desc("proj_kernel", NV, 64 if "p" not in DBG else 96)

def gen_attn():
    kernel_start("attn_kernel")
    sWS = 4; rWS = 8
    sWid, sHB, sBr, sHead, sQt, sT0, sT1, sIt, sThr, sInf, sFlag, sOff = 12, 13, 14, 15, 16, 17, 18, 19, 20, 21, 22, 23
    sMask = 24
    vLane, vAddr, vG, t0, t1, t2, t3 = 1, 2, 3, 4, 5, 6, 7
    vK = 8
    vV = 16
    vQ = [32, 36]
    vP = [40, 56]
    vO = [72, 88]
    vC = [104, 120]
    vS = [136, 168]
    vX = 200
    vPr = 216
    sPr = 46
    NV = 220
    if not FUSED:
        e("  s_cmp_ge_u32 s2, 256")
        e("  s_cbranch_scc1 attn_done")
    e("  s_load_dwordx2 s[4:5], s[0:1], 88")
    e("  s_load_dwordx2 s[6:7], s[0:1], 0")
    e("  s_load_dwordx2 s[28:29], s[0:1], 64")
    e("  s_load_dwordx2 s[56:57], s[0:1], 32")
    e("  s_load_dwordx2 s[58:59], s[0:1], 56")
    if "t" in DBG:
        e("  s_load_dwordx2 s[40:41], s[0:1], 80")
        e("  s_memtime s[32:33]")
        e("  s_memrealtime s[34:35]")
    e(f"  v_and_b32 v{vLane}, 63, v0")
    e(f"  v_lshrrev_b32 v{t0}, 6, v0")
    e("  s_nop 0")
    e(f"  v_readfirstlane_b32 s{sWid}, v{t0}")
    e(f"  s_and_b32 s{sT0}, s2, 7")
    e(f"  s_lshr_b32 s{sT1}, s2, 3")
    e(f"  s_lshr_b32 s{sHB}, s{sT1}, 2")
    e(f"  s_lshl_b32 s{sHB}, s{sHB}, 3")
    e(f"  s_add_u32 s{sHB}, s{sHB}, s{sT0}")
    e(f"  s_and_b32 s{sT1}, s{sT1}, 3")
    e(f"  s_lshl_b32 s{sQt}, s{sT1}, 4")
    e(f"  s_lshl_b32 s{sT0}, s{sWid}, 1")
    e(f"  s_add_u32 s{sQt}, s{sQt}, s{sT0}")
    e(f"  s_lshr_b32 s{sBr}, s{sHB}, 5")
    e(f"  s_and_b32 s{sHead}, s{sHB}, 31")
    e("  s_mov_b32 s24, 0x0000ffff")
    e("  s_mov_b32 s25, 0x0000ffff")
    e(f"  s_mov_b32 s{sThr}, {hex(f32bits(2.0**THR))}")
    e(f"  s_mov_b32 s{sInf}, 0x7f800000")
    e(f"  s_mov_b32 s{sFlag}, 0")
    e(f"  v_lshlrev_b32 v{vAddr}, 4, v{vLane}        ; lane*16")
    e(f"  s_cmp_eq_u32 s{sBr}, 1")
    e(f"  s_cselect_b32 s{sT0}, s{sHead}, 32")
    e(f"  s_lshl_b32 s{sT0}, s{sT0}, 17")
    e(f"  s_add_u32 s{sT0}, s{sT0}, {KV_OFF}")
    e(f"  s_lshl_b32 s{sT1}, s{sWid}, 11")
    e(f"  s_add_u32 s{sT0}, s{sT0}, s{sT1}")
    e(f"  s_lshl_b32 s{sOff}, s{sHB}, 6")
    e(f"  s_add_u32 s{sOff}, s{sOff}, s{sQt}")
    e(f"  s_lshl_b32 s{sOff}, s{sOff}, 10")
    e(f"  s_mov_b32 m0, s{sT1}")
    e("  s_waitcnt lgkmcnt(0)")
    srd(rWS, sWS, WS_BYTES)
    e(f"  buffer_load_dwordx4 v{vAddr}, {sr(rWS,4)}, s{sT0} offen lds")
    e(f"  buffer_load_dwordx4 v{vAddr}, {sr(rWS,4)}, s{sT0} offen offset:1024 lds")
    e(f"  buffer_load_dwordx4 {vr(vQ[0],4)}, v{vAddr}, {sr(rWS,4)}, s{sOff} offen")
    e(f"  buffer_load_dwordx4 {vr(vQ[1],4)}, v{vAddr}, {sr(rWS,4)}, s{sOff} offen offset:1024")
    rXg, rGw = 48, 52
    srd(rXg, 6, 2097152)
    srd(rGw, 28, 1024)
    e("  s_barrier")
    def kvdma(c):
        e(f"  s_add_u32 s{sT0}, s{sT0}, 16384")
        e(f"  s_add_u32 m0, s{sT1}, {c*16384}")
        e("  s_nop 0")
        e(f"  buffer_load_dwordx4 v{vAddr}, {sr(rWS,4)}, s{sT0} offen lds")
        e(f"  buffer_load_dwordx4 v{vAddr}, {sr(rWS,4)}, s{sT0} offen offset:1024 lds")
    kvdma(1)
    e(f"  v_and_b32 v{t0}, 31, v{vLane}")
    e(f"  v_and_b32 v{t1}, 27, v{t0}")
    e(f"  v_mov_b32 v{t2}, 0x3f803f80")
    e(f"  v_cmp_eq_u32 vcc, 16, v{t1}")
    e("  s_nop 1")
    e(f"  v_cndmask_b32 v{t2}, 0, v{t2}, vcc")
    for i in range(16):
        e(f"  v_mov_b32 v{vV+i}, v{t2}")
    for z in range(2):
        for i in range(16):
            e(f"  v_mov_b32 v{vO[z]+i}, 0")
        for i in range(8):
            e(f"  v_mov_b32 v{vP[z]+8+i}, 0")
    e(f"  s_lshl_b32 s{sPr}, s{sWid}, 2")
    e(f"  s_add_u32 s{sPr}, s{sPr}, 135168")
    e(f"  v_mov_b32 v{vPr}, s{sPr}")
    e(f"  v_xor_b32 v{vPr+1}, 16, v{vPr}")
    e(f"  v_mov_b32 v{vPr+2}, 0")
    e(f"  ds_write_b32 v{vPr}, v{vPr+2}")
    e("  s_waitcnt vmcnt(2) lgkmcnt(0)")
    e("  s_barrier")

    def kread(buf, off):
        e(f"  ds_read_b128 {vr(vK+4*buf,4)}, v{vAddr} offset:{off}")
    def vread(buf, off):
        e(f"  s_mov_b64 exec, {sr(sMask,2)}")
        e(f"  ds_read_b128 {vr(vV+8*buf,4)}, v{vAddr} offset:{off+1024}")
        e(f"  ds_read_b128 {vr(vV+8*buf+4,4)}, v{vAddr} offset:{off+1024+256}")
        e("  s_mov_b64 exec, -1")
    def rowmax(src, dst, tmp):
        e(f"  v_max3_f32 v{dst}, v{src}, v{src+1}, v{src+2}")
        for i in range(3, 15, 2):
            e(f"  v_max3_f32 v{dst}, v{dst}, v{src+i}, v{src+i+1}")
        e(f"  v_max_f32 v{dst}, v{dst}, v{src+15}")
        e(f"  v_mov_b32 v{tmp}, v{dst}")
        e("  s_nop 1")
        e(f"  v_permlane32_swap_b32 v{dst}, v{tmp}")
        e(f"  v_max_f32 v{dst}, v{dst}, v{tmp}")

    kread(0, 0)
    kread(1, 2048)
    e("  s_waitcnt lgkmcnt(0)")
    for z in range(2):
        e(f"  v_mfma_f32_32x32x16_bf16 {vr(vS[z],16)}, {vr(vK,4)}, {vr(vQ[z],4)}, 0")
    kvdma(2)
    for z in range(2):
        rowmax(vS[z], t0, t1)
        e(f"  v_sub_f32 v{t0}, {hex(f32bits(-float(HEAD)))}, v{t0}")
        for i in range(16):
            e(f"  v_mov_b32 v{vC[z]+i}, v{t0}")
        e("  s_nop 1")
        e(f"  v_mfma_f32_32x32x16_bf16 {vr(vS[z],16)}, {vr(vK,4)}, {vr(vQ[z],4)}, {vr(vC[z],16)}")
    e(f"  s_mov_b32 s{sIt}, 0")
    if "t" in DBG:
        e("  s_memtime s[44:45]")
        e("  s_waitcnt lgkmcnt(0)")
    e(f"  s_cmp_ge_u32 s{sWid}, 4")
    e(f"  s_cbranch_scc1 attn_loop1")
    for j in range(2):
        e(".p2align 6")
        e(f"attn_loop{j}:")
        for u in range(8):
            b = u % 2
            Vp = vV + 8 * (1 - b)
            if u in (0, 1, 2, 3, 4):
                e(f"  s_cmp_lg_u32 s{sIt}, 0")
                e(f"  s_cbranch_scc1 attn_nodma{j}_{u}")
                kvdma(3 + u)
                e(f"attn_nodma{j}_{u}:")
            if u == 5:
                e(f"  s_cmp_lg_u32 s{sIt}, 0")
                e(f"  s_cbranch_scc1 attn_nobarA{j}")
                e("  s_waitcnt vmcnt(10)")
                e("  s_barrier")
                e(f"attn_nobarA{j}:")
            if u == 6:
                e(f"  s_cmp_lg_u32 s{sIt}, 1")
                e(f"  s_cbranch_scc1 attn_nobar{j}")
                e("  s_waitcnt vmcnt(0)")
                e("  s_barrier")
                e(f"  v_lshlrev_b32 v{t0}, 4, v{vLane}")
                e(f"  s_and_b32 s{sT0}, s2, 0xf8")
                e(f"  s_add_u32 s{sT0}, s{sT0}, s{sWid}          ; slice 0..255")
                e(f"  s_cmp_lt_u32 s{sT0}, 128")
                e("  s_cselect_b32 s30, s56, s58")
                e("  s_cselect_b32 s31, s57, s59")
                srd(60, 30, 512 * 1024)
                e(f"  s_and_b32 s{sT0}, s{sT0}, 127")
                e(f"  s_lshl_b32 s{sT0}, s{sT0}, 12")
                for i in range(4):
                    e(f"  buffer_load_dwordx4 {vr(vX,4)}, v{t0}, s[60:63], s{sT0} offen offset:{i*1024}")
                if j == 0:
                    e(f"  s_lshl_b32 s{sOff}, s2, 3")
                    e(f"  s_lshl_b32 s{sT0}, s{sWid}, 1")
                    e(f"  s_add_u32 s{sOff}, s{sOff}, s{sT0}")
                    e(f"  s_lshl_b32 s{sT0}, s{sOff}, 10")
                    e(f"  buffer_load_dwordx4 {vr(vX+4,4)}, v{t0}, {sr(rXg,4)}, s{sT0} offen")
                    e(f"  buffer_load_dwordx4 {vr(vX+8,4)}, v{t0}, {sr(rXg,4)}, s{sT0} offen offset:1024")
                    e(f"  buffer_load_dwordx4 {vr(vX+12,4)}, v{t0}, {sr(rGw,4)}, 0 offen")
                e(f"attn_nobar{j}:")
            e("  s_waitcnt lgkmcnt(2)")
            if u == 0:
                e(f"  v_readfirstlane_b32 s{sPr}, v{vPr+2}")
                e(f"  s_cmp_eq_u32 s{sIt}, s{sPr}")
                e(f"  s_cbranch_scc1 attn_ptie{j}")
                e(f"  s_cmp_gt_u32 s{sIt}, s{sPr}")
                e(f"  s_cbranch_scc1 attn_plow{j}")
                e("  s_setprio 2")
                e(f"  s_branch attn_pdone{j}")
                e(f"attn_plow{j}:")
                e("  s_setprio 0")
                e(f"  s_branch attn_pdone{j}")
                e(f"attn_ptie{j}:")
                e(f"  s_setprio {j}")
                e(f"attn_pdone{j}:")
            mf = []
            for z in range(2):
                mf.append(f"  v_mfma_f32_32x32x16_bf16 {vr(vS[z]+16*(1-b),16)}, {vr(vK+4*(1-b),4)}, {vr(vQ[z],4)}, {vr(vC[z],16)}")
            for z in range(2):
                Pp = vP[z] + 8 * (1 - b)
                mf.append(f"  v_mfma_f32_32x32x16_bf16 {vr(vO[z],16)}, {vr(Vp,4)}, {vr(Pp,4)}, {vr(vO[z],16)}")
                mf.append(f"  v_mfma_f32_32x32x16_bf16 {vr(vO[z],16)}, {vr(Vp+4,4)}, {vr(Pp+4,4)}, {vr(vO[z],16)}")
            va = []
            for z in range(2):
                S = vS[z] + 16 * b
                for i in range(16):
                    va.append(f"  v_exp_f32 v{S+i}, v{S+i}")
                for i in range(8):
                    va.append(f"  v_cvt_pk_bf16_f32 v{vP[z]+8*b+i}, v{S+2*i}, v{S+2*i+1}")
            pos = [0, 5, 11, 17, 27, 33]
            for i, v in enumerate(va):
                while pos and pos[0] == i:
                    k = 6 - len(pos)
                    if k == 2:
                        e("  s_waitcnt lgkmcnt(3)")
                    e(mf[k])
                    if k == 1:
                        if u == 7:
                            e(f"  s_add_u32 s{sPr}, s{sIt}, 1")
                            e(f"  v_mov_b32 v{vPr+3}, s{sPr}")
                            e(f"  ds_write_b32 v{vPr}, v{vPr+3}")
                            e(f"  ds_read_b32 v{vPr+2}, v{vPr+1}")
                        if "L" not in DBG:
                            kread(b, (u + 2) * 2048)
                            vread(b, u * 2048)
                    pos.pop(0)
                e(v)
            if u == 7:
                e(f"  v_cmp_ngt_f32 vcc, s{sThr}, v{vO[0]+8}")
                e(f"  v_cmp_ngt_f32 s[26:27], s{sThr}, v{vO[1]+8}")
                e(f"  v_add_u32 v{vAddr}, 16384, v{vAddr}")
                e(f"  s_add_u32 s{sIt}, s{sIt}, 1")
                e("  s_or_b64 vcc, vcc, s[26:27]")
                e(f"  s_cbranch_vccnz attn_rare{j}")
                e(f"attn_rare_ret{j}:")
        e(f"  s_cmp_lt_u32 s{sIt}, 8")
        e(f"  s_cbranch_scc1 attn_loop{j}")
        if j < 1:
            e("  s_branch attn_tail")
    e("attn_tail:")
    e("  s_setprio 0")
    e("  s_waitcnt lgkmcnt(0)")
    for z in range(2):
        e(f"  v_mfma_f32_32x32x16_bf16 {vr(vO[z],16)}, {vr(vV+8,4)}, {vr(vP[z]+8,4)}, {vr(vO[z],16)}")
        e(f"  v_mfma_f32_32x32x16_bf16 {vr(vO[z],16)}, {vr(vV+12,4)}, {vr(vP[z]+12,4)}, {vr(vO[z],16)}")
    e("  s_nop 15")
    e(f"  v_mov_b32 v{t1}, 0x207")
    e(f"  s_mov_b64 {sr(26,2)}, 0")
    for z in range(2):
        for i in range(9):
            e(f"  v_cmp_class_f32 vcc, v{vO[z]+i}, v{t1}")
            e(f"  s_or_b64 {sr(26,2)}, {sr(26,2)}, vcc")
    e(f"  s_cmp_lg_u64 {sr(26,2)}, 0")
    e(f"  s_cselect_b32 s{sT0}, 1, 0")
    e(f"  s_or_b32 s{sFlag}, s{sFlag}, s{sT0}")
    e(f"  s_cmp_lg_u32 s{sFlag}, 0")
    e("  s_cbranch_scc1 attn_fallback")
    e("attn_epilogue:")
    e(f"  s_lshl_b32 s{sT0}, s{sBr}, 6")
    e(f"  s_add_u32 s{sT0}, s{sT0}, s{sQt}")
    e(f"  s_lshl_b32 s{sT0}, s{sT0}, 5")
    e(f"  s_add_u32 s{sT0}, s{sT0}, s{sHead}")
    e(f"  s_lshl_b32 s{sT0}, s{sT0}, 10")
    e(f"  s_add_u32 s{sT0}, s{sT0}, {OF_OFF}")
    e(f"  v_lshlrev_b32 v{t1}, 4, v{vLane}")
    for z in range(2):
        e(f"  v_rcp_f32 v{t0}, v{vO[z]+8}")
        e("  s_nop 0")
        for i in range(8):
            e(f"  v_mul_f32 v{vO[z]+i}, v{vO[z]+i}, v{t0}")
        for i in range(4):
            e(f"  v_cvt_pk_bf16_f32 v{vP[z]+i}, v{vO[z]+2*i}, v{vO[z]+2*i+1}")
        e(f"  buffer_store_dwordx4 {vr(vP[z],4)}, v{t1}, {sr(rWS,4)}, s{sT0} offen")
        if z == 0:
            e(f"  s_add_u32 s{sT0}, s{sT0}, 32768")
    e(f"  s_cmp_ge_u32 s{sWid}, 4")
    e("  s_cbranch_scc1 attn_nogate")
    e("  s_waitcnt vmcnt(2)")
    e(f"  v_mov_b32 v{t0}, 0")
    e(f"  v_mov_b32 v{t2}, 0")
    for i in range(4):
        e(f"  v_dot2_f32_bf16 v{t0}, v{vX+4+i}, v{vX+12+i}, v{t0}")
        e(f"  v_dot2_f32_bf16 v{t2}, v{vX+8+i}, v{vX+12+i}, v{t2}")
    e("  s_nop 2")
    for m in (0x041F, 0x081F, 0x101F, 0x201F, 0x401F):
        e(f"  ds_swizzle_b32 v{t1}, v{t0} offset:{hex(m)}")
        e(f"  ds_swizzle_b32 v{t3}, v{t2} offset:{hex(m)}")
        e("  s_waitcnt lgkmcnt(0)")
        e(f"  v_add_f32 v{t0}, v{t0}, v{t1}")
        e(f"  v_add_f32 v{t2}, v{t2}, v{t3}")
    e("  s_nop 1")
    e(f"  v_permlane32_swap_b32 v{t0}, v{t2}")
    e(f"  v_add_f32 v{t0}, v{t0}, v{t2}")
    e(f"  v_cvt_pk_bf16_f32 v{t0}, v{t0}, v{t0}")
    e(f"  v_lshlrev_b32 v{t0}, 16, v{t0}")
    e(f"  v_mul_f32 v{t0}, {hex(f32bits(-1.4426950408889634))}, v{t0}")
    e(f"  v_exp_f32 v{t0}, v{t0}")
    e("  s_nop 0")
    e(f"  v_add_f32 v{t0}, 1.0, v{t0}")
    e(f"  v_rcp_f32 v{t0}, v{t0}")
    e("  s_nop 0")
    e(f"  v_cvt_pk_bf16_f32 v{t0}, v{t0}, v{t0}")
    e(f"  v_lshlrev_b32 v{t0}, 16, v{t0}")
    e(f"  s_lshl_b32 s{sOff}, s{sOff}, 2")
    e(f"  s_add_u32 s{sOff}, s{sOff}, {G_OFF}")
    e(f"  v_lshrrev_b32 v{t1}, 5, v{vLane}")
    e(f"  v_lshlrev_b32 v{t1}, 2, v{t1}")
    e("  s_mov_b32 exec_lo, 1")
    e("  s_mov_b32 exec_hi, 1")
    e(f"  buffer_store_dword v{t0}, v{t1}, {sr(rWS,4)}, s{sOff} offen sc0 sc1")
    e("  s_mov_b64 exec, -1")
    e("attn_nogate:")
    if "t" in DBG:
        e("  s_memtime s[36:37]")
        e("  s_memrealtime s[38:39]")
        e("  s_waitcnt lgkmcnt(0)")
        e("  s_sub_u32 s36, s36, s32")
        e("  s_sub_u32 s38, s38, s34")
        e("  s_sub_u32 s37, s44, s32")
        srd(28, 40, 256)
        e("  v_mov_b32 v4, s36")
        e("  v_mov_b32 v5, s38")
        e("  v_mov_b32 v6, s37")
        e("  v_mov_b32 v7, 0")
        e(f"  s_lshl_b32 s36, s{sWid}, 4")
        e("  v_mov_b32 v8, s36")
        e("  s_cmp_lg_u32 s2, 100")
        e("  s_cbranch_scc1 attn_done")
        e("  buffer_store_dwordx4 v[4:7], v8, s[28:31], 0 offen")
    e("attn_done:")
    e("  s_endpgm" if not FUSED else "  s_branch outp_kernel_phase")

    e("attn_rare0:")
    e(f"  s_mov_b32 s{sT1}, 0")
    e("  s_branch attn_rare")
    e("attn_rare1:")
    e(f"  s_mov_b32 s{sT1}, 1")
    e("attn_rare:")
    e(f"  v_cmp_ngt_f32 vcc, s{sInf}, v{vO[0]+8}")
    e(f"  v_cmp_ngt_f32 s[26:27], s{sInf}, v{vO[1]+8}")
    e("  s_or_b64 vcc, vcc, s[26:27]")
    e("  s_cbranch_vccz attn_rare_ok")
    e(f"  s_mov_b32 s{sFlag}, 1")
    e("  s_branch attn_rare_back")
    e("attn_rare_ok:")
    for z in range(2):
        e(f"  v_frexp_exp_i32_f32 v{t0}, v{vO[z]+8}")
        e(f"  v_add_u32 v{t0}, {HEAD}, v{t0}")
        e(f"  v_sub_u32 v{t1}, 0, v{t0}")
        e(f"  v_cvt_f32_i32 v{t0}, v{t0}")
        for i in range(9):
            e(f"  v_ldexp_f32 v{vO[z]+i}, v{vO[z]+i}, v{t1}")
        for i in range(8):
            e(f"  v_lshlrev_b32 v{t2}, 16, v{vP[z]+8+i}")
            e(f"  v_and_b32 v{t3}, 0xffff0000, v{vP[z]+8+i}")
            e(f"  v_ldexp_f32 v{t2}, v{t2}, v{t1}")
            e(f"  v_ldexp_f32 v{t3}, v{t3}, v{t1}")
            e(f"  v_cvt_pk_bf16_f32 v{vP[z]+8+i}, v{t2}, v{t3}")
        for i in range(16):
            e(f"  v_sub_f32 v{vS[z]+i}, v{vS[z]+i}, v{t0}")
        for i in range(16):
            e(f"  v_sub_f32 v{vC[z]+i}, v{vC[z]+i}, v{t0}")
    e("attn_rare_back:")
    e(f"  s_cmp_eq_u32 s{sT1}, 0")
    e(f"  s_cbranch_scc1 attn_rare_ret0")
    e("  s_branch attn_rare_ret1")

    e("attn_fallback:")
    for z in range(2):
        e(f"  v_lshlrev_b32 v{vAddr}, 4, v{vLane}")
        for i in range(16):
            e(f"  v_mov_b32 v{vO[z]+i}, 0")
        e(f"  v_mov_b32 v{vG}, 0xff7fffff")
        e(f"  s_mov_b32 s{sIt}, 0")
        e(f"attn_fb_loop{z}:")
        kread(0, 0)
        vread(0, 0)
        e("  s_waitcnt lgkmcnt(0)")
        S = vS[z]
        e(f"  v_mfma_f32_32x32x16_bf16 {vr(S,16)}, {vr(vK,4)}, {vr(vQ[z],4)}, 0")
        e("  s_nop 15")
        e("  s_nop 3")
        rowmax(S, t0, t1)
        e(f"  v_max_f32 v{t0}, v{t0}, v{vG}             ; m_new")
        e(f"  v_sub_f32 v{t1}, v{vG}, v{t0}")
        e(f"  v_exp_f32 v{t1}, v{t1}                    ; alpha")
        e(f"  v_mov_b32 v{vG}, v{t0}")
        for i in range(16):
            e(f"  v_sub_f32 v{S+i}, v{S+i}, v{t0}")
        for i in range(16):
            e(f"  v_exp_f32 v{S+i}, v{S+i}")
        for i in range(9):
            e(f"  v_mul_f32 v{vO[z]+i}, v{vO[z]+i}, v{t1}")
        for i in range(8):
            e(f"  v_cvt_pk_bf16_f32 v{vP[z]+i}, v{S+2*i}, v{S+2*i+1}")
        e("  s_nop 1")
        e(f"  v_mfma_f32_32x32x16_bf16 {vr(vO[z],16)}, {vr(vV,4)}, {vr(vP[z],4)}, {vr(vO[z],16)}")
        e(f"  v_mfma_f32_32x32x16_bf16 {vr(vO[z],16)}, {vr(vV+4,4)}, {vr(vP[z]+4,4)}, {vr(vO[z],16)}")
        e(f"  v_add_u32 v{vAddr}, 2048, v{vAddr}")
        e("  s_nop 15")
        e("  s_nop 3")
        e(f"  s_add_u32 s{sIt}, s{sIt}, 1")
        e(f"  s_cmp_lt_u32 s{sIt}, 64")
        e(f"  s_cbranch_scc1 attn_fb_loop{z}")
    e("  s_branch attn_epilogue")
    return kernel_desc("attn_kernel", NV, 64) if not FUSED else ""

def gen_outp():
    kernel_start("outp_kernel")
    sWA, sWB, sOut, sWS = 4, 6, 8, 10
    rW, rOut, rWS = 12, 20, 24
    sWid, sNB, sTBk, sBr, sTT, sKH, sT0, sT1, sQt, sWo, sM, sOo, sQd = 28, 29, 30, 31, 32, 33, 34, 35, 36, 37, 38, 39, 40
    vLane, vWo, vA0, vA1, vG, vOa, t0, t1, t2, t3 = 1, 2, 3, 4, 5, 6, 7, 8, 9, 10
    vWF = 12
    vAcc = 76
    vOF = 108
    vEx = 12
    NV = 172
    e("  s_cmp_ge_u32 s2, 256")
    e("  s_cbranch_scc1 outp_done")
    e("  s_load_dwordx2 s[4:5], s[0:1], 32")
    e("  s_load_dwordx2 s[6:7], s[0:1], 56")
    e("  s_load_dwordx2 s[8:9], s[0:1], 72")
    e("  s_load_dwordx2 s[10:11], s[0:1], 88")
    if "o" in DBG:
        e("  s_load_dwordx2 s[80:81], s[0:1], 80")
        e("  s_memtime s[60:61]")
    e(f"  v_and_b32 v{vLane}, 63, v0")
    e(f"  v_lshrrev_b32 v{t0}, 6, v0")
    e("  s_nop 0")
    e(f"  v_readfirstlane_b32 s{sWid}, v{t0}")
    e(f"  s_and_b32 s{sT0}, s2, 7")
    e(f"  s_lshl_b32 s{sT0}, s{sT0}, 2")
    e(f"  s_bfe_u32 s{sT1}, s2, 0x20003")
    e(f"  s_add_u32 s{sTBk}, s{sT0}, s{sT1}")
    e(f"  s_lshr_b32 s{sNB}, s2, 5")
    e(f"  s_lshr_b32 s{sBr}, s{sWid}, 2")
    e(f"  s_bfe_u32 s{sTT}, s{sWid}, 0x10001")
    e(f"  s_and_b32 s{sKH}, s{sWid}, 1")
    e(f"  s_lshl_b32 s{sQt}, s{sTBk}, 1")
    e(f"  s_add_u32 s{sQt}, s{sQt}, s{sTT}")
    e(f"  s_lshl_b32 s{sQd}, s{sBr}, 1")
    e(f"  s_add_u32 s{sQd}, s{sQd}, s{sKH}")
    e(f"  v_lshrrev_b32 v{t0}, 3, v{vLane}          ; l/8")
    e(f"  v_and_b32 v{t1}, 7, v{vLane}")
    e(f"  v_bfe_u32 v{t2}, v{vLane}, 4, 1           ; (row>>1)&1")
    e(f"  v_lshlrev_b32 v{t2}, 2, v{t2}")
    e(f"  v_xor_b32 v{t1}, v{t1}, v{t2}")
    e(f"  v_lshlrev_b32 v{t1}, 4, v{t1}")
    e(f"  v_lshl_add_u32 v{vWo}, v{t0}, 10, v{t1}")
    e(f"  v_lshlrev_b32 v{vOa}, 4, v{vLane}")
    e("  s_waitcnt lgkmcnt(0)")
    e(f"  s_cmp_eq_u32 s{sBr}, 0")
    e(f"  s_cselect_b32 s{sT0}, s{sWA}, s{sWB}")
    e(f"  s_cselect_b32 s{sT1}, s{sWA+1}, s{sWB+1}")
    srd(rW, sT0, 512 * 1024)
    srd(rOut, sOut, 2097152)
    srd(rWS, sWS, WS_BYTES)
    e(f"  s_and_b32 s{sT0}, s{sWid}, 3")
    e(f"  s_lshl_b32 s{sWo}, s{sT0}, 15              ; q*32 rows * 1024")
    e(f"  s_lshl_b32 s{sT1}, s{sNB}, 7")
    e(f"  s_add_u32 s{sWo}, s{sWo}, s{sT1}")
    e(f"  s_lshl_b32 s{sM}, s{sT0}, 12               ; q*32 rows * 128")
    e(f"  s_lshl_b32 s{sT1}, s{sBr}, 16")
    e(f"  s_add_u32 s{sM}, s{sM}, s{sT1}")
    e(f"  s_lshl_b32 s{sOo}, s{sBr}, 6")
    e(f"  s_add_u32 s{sOo}, s{sOo}, s{sQt}")
    e(f"  s_lshl_b32 s{sOo}, s{sOo}, 15")
    e(f"  s_lshl_b32 s{sT1}, s{sKH}, 14")
    e(f"  s_add_u32 s{sOo}, s{sOo}, s{sT1}")
    e(f"  s_add_u32 s{sOo}, s{sOo}, {OF_OFF}")
    def wdma(c, i):
        e(f"  s_add_u32 m0, s{sM}, {c*16384 + i*1024}")
        e(f"  s_add_u32 s{sT0}, s{sWo}, {c*131072 + i*8192}")
        e(f"  buffer_load_dwordx4 v{vWo}, {sr(rW,4)}, s{sT0} offen lds")
    def oload(k):
        e(f"  buffer_load_dwordx4 {vr(vOF+4*k,4)}, v{vOa}, {sr(rWS,4)}, s{sOo} offen offset:{(k%4)*1024}")
        if k % 4 == 3:
            e(f"  s_add_u32 s{sOo}, s{sOo}, 4096")
    for c in (0, 2):
        for i in range(4):
            wdma(c, i)
    for k in range(8):
        oload(k)
    tr_addr(vA0, vA1, vLane, t0, t1, t2, t3, True)
    e(f"  s_lshl_b32 s{sT0}, s{sBr}, 16")
    e(f"  s_lshl_b32 s{sT1}, s{sKH}, 15")
    e(f"  s_add_u32 s{sT0}, s{sT0}, s{sT1}")
    e(f"  v_add_u32 v{vA0}, s{sT0}, v{vA0}")
    e(f"  v_add_u32 v{vA1}, s{sT0}, v{vA1}")
    def wread(k):
        for ct in range(2):
            for u in range(2):
                e(f"  ds_read_b64_tr_b16 {vr(vWF+8*(k%8)+4*ct+u*2,2)}, v{vA0 if ct == 0 else vA1} offset:{k*2048+u*512}")
    if "o" in DBG:
        e("  s_memtime s[62:63]")
    e("  s_waitcnt vmcnt(8)")
    e("  s_barrier")
    if "o" in DBG:
        e("  s_memtime s[64:65]")
        e("  s_waitcnt lgkmcnt(0)")
    later = [("w", 1, i) for i in range(4)] + [("w", 3, i) for i in range(4)] + [("o", k) for k in range(8, 16)]
    for k in range(4):
        wread(k)
    nlater = 0
    for k in range(8):
        if k + 4 < 8:
            wread(k + 4)
        for _ in range(2):
            it = later[nlater]; nlater += 1
            if it[0] == "w": wdma(it[1], it[2])
            else: oload(it[1])
        rem = 4 * (min(k + 4, 7) - k)
        e(f"  s_waitcnt vmcnt({7-k+nlater}) lgkmcnt({min(rem,15)})")
        for ct in range(2):
            cc = "0" if k == 0 else vr(vAcc + 16 * ct, 16)
            e(f"  v_mfma_f32_32x32x16_bf16 {vr(vAcc+16*ct,16)}, {vr(vWF+8*k+4*ct,4)}, {vr(vOF+4*k,4)}, {cc}")
    e(f"  v_and_b32 v{t0}, 31, v{vLane}")
    e(f"  v_lshlrev_b32 v{t0}, 2, v{t0}")
    e(f"  s_lshl_b32 s{sT0}, s{sQt}, 7")
    e(f"  s_add_u32 s{sT0}, s{sT0}, {G_OFF}")
    e(f"  buffer_load_dword v{vG}, v{t0}, {sr(rWS,4)}, s{sT0} offen")
    e("  s_waitcnt vmcnt(9)")
    e("  s_barrier")
    for k in range(8, 12):
        wread(k)
    for k in range(8, 16):
        if k + 4 < 16:
            wread(k + 4)
        rem = 4 * (min(k + 4, 15) - k)
        e(f"  s_waitcnt vmcnt({15-k+1}) lgkmcnt({min(rem,15)})")
        for ct in range(2):
            e(f"  v_mfma_f32_32x32x16_bf16 {vr(vAcc+16*ct,16)}, {vr(vWF+8*(k%8)+4*ct,4)}, {vr(vOF+4*k,4)}, {vr(vAcc+16*ct,16)}")
    if "o" in DBG:
        e("  s_memtime s[66:67]")
        e("  s_waitcnt lgkmcnt(0)")
    e("  s_barrier")
    e(f"  s_lshl_b32 s{sT0}, s{sWid}, 13")
    e(f"  v_add_u32 v{t0}, s{sT0}, v{vOa}")
    e("  s_nop 8")
    for q in range(4):
        for hlf in range(2):
            e(f"  ds_write_b128 v{t0}, {vr(vAcc+8*q+4*hlf,4)} offset:{q*2048+hlf*1024}")
    e(f"  s_lshl_b32 s{sT0}, s{sTT}, 14")
    e(f"  s_lshl_b32 s{sT1}, s{sQd}, 11")
    e(f"  s_add_u32 s{sT0}, s{sT0}, s{sT1}")
    e(f"  v_add_u32 v{t0}, s{sT0}, v{vOa}")
    vOm = t1
    e("  s_waitcnt vmcnt(0) lgkmcnt(0)")
    e("  s_barrier")
    for p, woff in enumerate((0, 8192, 32768, 40960)):
        for hlf in range(2):
            e(f"  ds_read_b128 {vr(vEx+8*p+4*hlf,4)}, v{t0} offset:{woff+hlf*1024}")
    e(f"  v_sub_f32 v{vOm}, 1.0, v{vG}")
    e(f"  v_cvt_pk_bf16_f32 v{vOm}, v{vOm}, v{vOm}")
    e(f"  v_lshlrev_b32 v{vOm}, 16, v{vOm}")
    e(f"  s_mov_b32 s{sT1}, 0xffff0000")
    e(f"  v_and_b32 v{t0}, 31, v{vLane}")
    e(f"  v_lshlrev_b32 v{t0}, 10, v{t0}")
    e(f"  v_lshrrev_b32 v{t2}, 5, v{vLane}")
    e(f"  v_lshl_add_u32 v{t0}, v{t2}, 5, v{t0}")
    e(f"  s_lshl_b32 s{sT0}, s{sQt}, 15")
    e(f"  s_lshl_b32 s{sWo}, s{sNB}, 7")
    e(f"  s_add_u32 s{sT0}, s{sT0}, s{sWo}")
    e(f"  s_lshl_b32 s{sWo}, s{sBr}, 6")
    e(f"  s_add_u32 s{sT0}, s{sT0}, s{sWo}")
    e(f"  s_lshl_b32 s{sWo}, s{sKH}, 4")
    e(f"  s_add_u32 s{sT0}, s{sT0}, s{sWo}")
    def round_pair(x0, x1, tmp):
        e(f"  v_cvt_pk_bf16_f32 v{tmp}, v{x0}, v{x1}")
        e(f"  v_lshlrev_b32 v{x0}, 16, v{tmp}")
        e(f"  v_and_b32 v{x1}, s{sT1}, v{tmp}")
    e("  s_waitcnt lgkmcnt(0)")
    A0, A1, B0, B1 = vEx, vEx + 8, vEx + 16, vEx + 24
    for i in range(8):
        e(f"  v_add_f32 v{A0+i}, v{A0+i}, v{A1+i}")
        e(f"  v_add_f32 v{B0+i}, v{B0+i}, v{B1+i}")
    for i in range(0, 8, 2):
        round_pair(A0 + i, A0 + i + 1, t2)
        e(f"  v_mul_f32 v{A0+i}, v{vG}, v{A0+i}")
        e(f"  v_mul_f32 v{A0+i+1}, v{vG}, v{A0+i+1}")
        round_pair(A0 + i, A0 + i + 1, t2)
        round_pair(B0 + i, B0 + i + 1, t3)
        e(f"  v_mul_f32 v{B0+i}, v{vOm}, v{B0+i}")
        e(f"  v_mul_f32 v{B0+i+1}, v{vOm}, v{B0+i+1}")
        round_pair(B0 + i, B0 + i + 1, t3)
        e(f"  v_add_f32 v{A0+i}, v{A0+i}, v{B0+i}")
        e(f"  v_add_f32 v{A0+i+1}, v{A0+i+1}, v{B0+i+1}")
        e(f"  v_cvt_pk_bf16_f32 v{vOF+i//2}, v{A0+i}, v{A0+i+1}")
    e(f"  buffer_store_dwordx4 {vr(vOF,4)}, v{t0}, {sr(rOut,4)}, s{sT0} offen")
    if "o" in DBG:
        e("  s_memtime s[68:69]")
        e("  s_waitcnt vmcnt(0)")
        e("  s_memtime s[70:71]")
        e("  s_waitcnt lgkmcnt(0)")
        for i in range(1,6):
            e(f"  s_sub_u32 s{60+2*i}, s{60+2*i}, s60")
            e(f"  v_mov_b32 v{19+i}, s{60+2*i}")
        srd(84, 80, 256)
        e(f"  s_lshl_b32 s60, s{sWid}, 5")
        e("  v_mov_b32 v28, s60")
        e("  s_cmp_lg_u32 s2, 40")
        e("  s_cbranch_scc1 outp_done")
        e("  buffer_store_dwordx4 v[20:23], v28, s[84:87], 0 offen")
        e("  buffer_store_dwordx4 v[24:27], v28, s[84:87], 0 offen offset:16")
    e("outp_done:")
    e("  s_endpgm")
    return kernel_desc("outp_kernel", NV, 48 if "o" not in DBG else 96)

descs = []
descs.append(gen_proj())
descs.append(gen_attn())
descs.append(gen_outp())
if "r" in DBG:
    import re
    L4 = []
    kidx = -1
    for ln in L:
        st = ln.strip()
        if st.endswith("_kernel:"):
            kidx += 1
            B = 250
            L4.append(ln)
            L4.append("  s_memrealtime s[90:91]")
            L4.append("  s_load_dwordx2 s[92:93], s[0:1], 88")
            L4.append(f"  v_mov_b32 v{B}, v0")
            continue
        if st == "s_endpgm":
            L4.append("  s_waitcnt vmcnt(0) lgkmcnt(0)")
            L4.append("  s_memrealtime s[94:95]")
            L4.append("  s_mov_b32 s96, s92")
            L4.append("  s_and_b32 s97, s93, 0xffff")
            L4.append("  s_mov_b32 s98, 268435456")
            L4.append("  s_mov_b32 s99, 0x00020000")
            L4.append("  s_waitcnt lgkmcnt(0)")
            L4.append(f"  v_mov_b32 v{B+2}, s90")
            L4.append(f"  v_mov_b32 v{B+3}, s94")
            L4.append(f"  v_lshrrev_b32 v{B+1}, 6, v{B}")
            L4.append(f"  v_lshlrev_b32 v{B+1}, 3, v{B+1}")
            L4.append(f"  s_lshl_b32 s90, s2, 7")
            L4.append(f"  s_add_u32 s90, s90, {(20<<20) + kidx*65536}")
            L4.append("  s_mov_b64 exec, 1")
            L4.append(f"  buffer_store_dwordx2 v[{B+2}:{B+3}], v{B+1}, s[96:99], s90 offen")
        L4.append(ln)
    L[:] = L4
    def fix(d):
        n = 256
        d = re.sub(r"next_free_vgpr \d+", f"next_free_vgpr {n}", d)
        d = re.sub(r"accum_offset \d+", f"accum_offset {n}", d)
        return re.sub(r"next_free_sgpr \d+", "next_free_sgpr 102", d)
    descs[:] = [fix(d) for d in descs]
L3 = []
for ln in L:
    if ln.strip().startswith("buffer_store_dwordx4") and ("s[28:31]" in ln or "s[8:11]" in ln) and "v[4:7], v8" not in ln:
        ln = ln + " sc0 sc1"
    L3.append(ln)
L[:] = L3
STF = os.environ.get("STF", "")
if STF:
    L2 = []
    for ln in L:
        if ln.strip().startswith("buffer_store_dwordx4"):
            if STF == "skip":
                continue
            ln = ln + " " + STF
        L2.append(ln)
    L[:] = L2
if FUSED:
    LAUNCH = """; One launch, three phases (projections -> attention -> output projection + gate mix); the phases hand
; @launch grid=(256,1,1) block=(512,1,1) lds=147456"""
else:
    LAUNCH = """; Three launches: projections -> attention (both branches) -> output projection + gate mix.
; @launch kernel=proj_kernel grid=(256,1,1) block=(512,1,1) lds=147456
; @launch kernel=attn_kernel grid=(256,1,1) block=(512,1,1) lds=135232
; @launch kernel=outp_kernel grid=(256,1,1) block=(512,1,1) lds=131072"""
text = HEADER.replace("%LAUNCH%", LAUNCH) + "\n".join(L) + "\n" + '.section .rodata,"a"\n' + "".join(descs)
open(OUT, "w").write(text)
print("wrote", OUT, len(text), "bytes")
```

```python
import sys, struct, os
DBG = os.environ.get("DBG","")

OUT = sys.argv[1] if len(sys.argv) > 1 else "gated_mix__grouped_kv_mqa__mha_block__prompt.s"

def f32bits(x):
    return struct.unpack("<I", struct.pack("<f", x))[0]

QF_OFF = 0
KV_OFF = 4 << 20
OF_OFF = 12 << 20
G_OFF  = 16 << 20
WS_BYTES = 268435456
SCALE = 0.25 * 1.4426950408889634
THR = int(os.environ.get("THR", "64"))
HEAD = int(os.environ.get("HEAD", "40"))

FUSED = os.environ.get("FUSED", "0") == "1"
KNAME = "gated_mix__grouped_kv_mqa__mha_block__prompt_kernel"
L = []
def e(s=""):
    L.append(s)
def vr(b, n=1):
    return f"v{b}" if n == 1 else f"v[{b}:{b+n-1}]"
def sr(b, n=1):
    return f"s{b}" if n == 1 else f"s[{b}:{b+n-1}]"

def srd(dst, base, nbytes):
    e(f"  s_mov_b32 s{dst}, s{base}")
    e(f"  s_and_b32 s{dst+1}, s{base+1}, 0xffff")
    e(f"  s_mov_b32 s{dst+2}, {nbytes}")
    e(f"  s_mov_b32 s{dst+3}, 0x00020000")

HEADER = """; Kernarg layout for this problem (96 bytes, ptrs only, base s[0:1]):
%LAUNCH%
.amdgcn_target "amdgcn-amd-amdhsa--gfx950"
.text
"""

def kernel_start(name):
    if FUSED:
        if name != "proj_kernel":
            e(f"{name}_phase:")
            return
        name = KNAME
    e(f".globl {name}")
    e(".p2align 8")
    e(f".type {name},@function")
    e(f"{name}:")

def kernel_desc(name, nvgpr, nsgpr):
    acc = (nvgpr + 3) // 4 * 4
    return f""".p2align 6
.amdhsa_kernel {name}
  .amdhsa_next_free_vgpr {nvgpr}
  .amdhsa_next_free_sgpr {nsgpr}
  .amdhsa_accum_offset {acc}
  .amdhsa_group_segment_fixed_size 0
  .amdhsa_kernarg_size 96
  .amdhsa_user_sgpr_count 2
  .amdhsa_user_sgpr_kernarg_segment_ptr 1
  .amdhsa_system_sgpr_workgroup_id_x 1
.end_amdhsa_kernel
"""

def stamp(i):
    if "R" in DBG:
        e("  s_memrealtime s[80:81]")
        e("  s_waitcnt lgkmcnt(0)")
        e(f"  s_mov_b32 s{82+i}, s80")
def sync_arrive(tag, base, sidx):
    stamp(1 if tag == "sy1" else 4)
    e("  s_waitcnt vmcnt(0) lgkmcnt(0)")
    stamp(2 if tag == "sy1" else 5)
    e("  s_barrier")
    e("  s_load_dwordx2 s[70:71], s[0:1], 80")
    e("  v_lshrrev_b32 v2, 6, v0")
    e("  v_and_b32 v1, 63, v0")
    e("  v_readfirstlane_b32 s76, v2")
    e("  s_waitcnt lgkmcnt(0)")
    srd(72, 70, 256)
    e("  s_cmp_lg_u32 s76, 0")
    e(f"  s_cbranch_scc1 {tag}_arrived")
    e(f"  s_lshl_b32 s77, s{sidx}, 2")
    e(f"  s_add_u32 s77, s77, {base}")
    e("  v_mov_b32 v2, 0")
    e("  v_mov_b32 v3, 1")
    e("  s_mov_b64 exec, 1")
    e("  buffer_atomic_add v3, v2, s[72:75], s77 offen sc1")
    e("  s_mov_b64 exec, -1")
    e(f"{tag}_arrived:")
def sync_wait(tag, base):
    e("  s_cmp_lg_u32 s76, 0")
    e(f"  s_cbranch_scc1 {tag}_go")
    e("  v_lshlrev_b32 v2, 2, v1")
    e("  s_mov_b32 s77, 0")
    e("  s_mov_b64 exec, 0xffff")
    e(f"{tag}_poll:")
    e(f"  buffer_load_dword v3, v2, s[72:75], 0 offen offset:{base} sc1")
    e("  s_waitcnt vmcnt(0)")
    e("  v_cmp_ne_u32 vcc, 16, v3")
    e(f"  s_cbranch_vccz {tag}_done")
    e("  s_sleep 1")
    e("  s_add_u32 s77, s77, 1")
    e("  s_cmp_lt_u32 s77, 0x400000")
    e(f"  s_cbranch_scc1 {tag}_poll")
    e(f"{tag}_done:")
    e("  s_mov_b64 exec, -1")
    e(f"{tag}_go:")
    e("  s_barrier")
    stamp(3 if tag == "sy1" else 6)

def tr_addr(vA0, vA1, vlane, t0, t1, t2, t3, perm):
    e(f"  v_lshrrev_b32 v{t0}, 4, v{vlane}          ; g")
    e(f"  v_and_b32 v{t1}, 1, v{t0}                 ; g%2")
    e(f"  v_lshrrev_b32 v{t0}, 1, v{t0}             ; h")
    e(f"  v_bfe_u32 v{t2}, v{vlane}, 2, 2           ; r")
    e(f"  v_lshl_add_u32 v{t0}, v{t0}, 3, v{t2}     ; 8h + r")
    e(f"  v_lshlrev_b32 v{t0}, 7, v{t0}             ; *128")
    e(f"  v_and_b32 v{t3}, 3, v{vlane}              ; c")
    e(f"  v_lshl_add_u32 v{t1}, v{t1}, 2, v{t3}     ; mc=(g%2)*4+c")
    if perm:
        e(f"  v_and_b32 v{t3}, 1, v{t1}")
        e(f"  v_lshrrev_b32 v{t1}, 1, v{t1}")
        e(f"  v_lshl_add_u32 v{t1}, v{t3}, 2, v{t1}     ; nc = 4*(mc%2)+mc/2")
    e(f"  v_and_b32 v{t3}, 1, v{t1}")
    e(f"  v_lshl_add_u32 v{t0}, v{t3}, 3, v{t0}     ; + (nc%2)*8")
    e(f"  v_lshrrev_b32 v{t1}, 1, v{t1}")
    e(f"  v_lshrrev_b32 v{t2}, 1, v{t2}             ; (r>>1)&1")
    e(f"  v_lshlrev_b32 v{t2}, 2, v{t2}")
    e(f"  v_xor_b32 v{t1}, v{t1}, v{t2}")
    e(f"  v_lshl_add_u32 v{vA0}, v{t1}, 4, v{t0}")
    e(f"  v_xor_b32 v{vA1}, 64, v{vA0}")

def gen_proj():
    kernel_start("proj_kernel")
    STG = 36864
    sX, sWQ, sWK, sWV, sWQKV, sWS = 4, 6, 8, 10, 12, 16
    rX, rW, rWS, rS = 20, 24, 28, 32
    sNB, sTB, sT0, sT1, sT2, sPitch, sCol, sWid = 40, 41, 42, 43, 44, 45, 46, 47
    sEx = 48
    sOff, sTT, sCG, sSpec, sXo, sWo, sM, sQt = 50, 51, 52, 53, 54, 55, 56, 57
    sC, sSo, sMS = 58, 59, 60
    sSMask = 36
    e("  s_cmp_ge_u32 s2, 256")
    e("  s_cbranch_scc1 proj_done" if not FUSED else "  s_cbranch_scc1 outp_done")
    stamp(0)
    e("  s_load_dwordx4 s[4:7], s[0:1], 0")
    e("  s_load_dwordx4 s[8:11], s[0:1], 16")
    e("  s_load_dwordx2 s[12:13], s[0:1], 48")
    e("  s_load_dwordx2 s[16:17], s[0:1], 88")
    if "p" in DBG:
        e("  s_load_dwordx2 s[80:81], s[0:1], 80")
        e("  s_memtime s[64:65]")
    e(f"  s_and_b32 s{sT0}, s2, 3")
    e(f"  s_lshl_b32 s{sT0}, s{sT0}, 2")
    e(f"  s_bfe_u32 s{sT1}, s2, 0x20003")
    e(f"  s_add_u32 s{sTB}, s{sT0}, s{sT1}")
    e(f"  s_bfe_u32 s{sT0}, s2, 0x10002")
    e(f"  s_lshl_b32 s{sT0}, s{sT0}, 3")
    e(f"  s_lshr_b32 s{sT1}, s2, 5")
    e(f"  s_add_u32 s{sNB}, s{sT0}, s{sT1}")
    vLane = 1; vXo0 = 2; vXo1 = 3; vWo = 4; vSt = 5; vSo = 6
    t0, t1, t2, t3 = 8, 9, 10, 11
    vXA = 12
    vWA = 20
    vSA = 24
    vXF = 28
    vWF = 44
    vSF = 76
    vAcc = 156
    vOut = 28
    NV = 204
    e(f"  v_and_b32 v{vLane}, 63, v0")
    e(f"  v_lshrrev_b32 v{t0}, 6, v0")
    e("  s_nop 0")
    e(f"  v_readfirstlane_b32 s{sWid}, v{t0}")
    e(f"  s_sub_u32 s{sSpec}, s{sNB}, s{sTB}")
    e(f"  s_and_b32 s{sSpec}, s{sSpec}, 15")
    e(f"  s_and_b32 s{sTT}, s{sWid}, 3")
    e(f"  s_lshr_b32 s{sCG}, s{sWid}, 2")
    e(f"  s_lshl_b32 s{sQt}, s{sTB}, 2")
    e(f"  s_add_u32 s{sQt}, s{sQt}, s{sTT}")
    e(f"  v_lshrrev_b32 v{t0}, 3, v{vLane}          ; l/8")
    e(f"  v_lshrrev_b32 v{t1}, 4, v{vLane}          ; l/16")
    e(f"  v_and_b32 v{t2}, 7, v{vLane}")
    if "z" not in DBG:
        e(f"  v_xor_b32 v{t2}, v{t2}, v{t1}")
    e(f"  v_lshlrev_b32 v{t2}, 4, v{t2}")
    e(f"  v_lshl_add_u32 v{vXo0}, v{t0}, 10, v{t2}")
    e(f"  v_xor_b32 v{vXo1}, 64, v{vXo0}")
    e(f"  v_add_u32 v{vXo1}, 8192, v{vXo1}")
    e(f"  v_lshrrev_b32 v{t0}, 2, v{vLane}")
    e(f"  v_and_b32 v{t2}, 1, v{vLane}")
    e(f"  v_lshlrev_b32 v{t2}, 4, v{t2}")
    e(f"  v_lshl_add_u32 v{vSo}, v{t0}, 5, v{t2}")
    e(f"  v_and_b32 v{t2}, 15, v{vLane}")
    e(f"  v_lshlrev_b32 v{t3}, 2, v{t1}")
    if "z" not in DBG:
        e(f"  v_xor_b32 v{t2}, v{t2}, v{t3}")
    e(f"  v_lshlrev_b32 v{t2}, 4, v{t2}")
    e("  s_waitcnt lgkmcnt(0)")
    if "p" in DBG:
        e("  s_memtime s[78:79]")
        e("  s_waitcnt lgkmcnt(0)")
    srd(rX, sX, 2097152)
    srd(rWS, sWS, WS_BYTES)
    if "S" not in DBG:
        e(f"  s_lshl_b32 s{sT0}, s2, 14")
        e(f"  s_lshl_b32 s{sT1}, s{sWid}, 11")
        e(f"  s_add_u32 s{sT0}, s{sT0}, s{sT1}")
        e(f"  s_cmp_lt_u32 s2, 128")
        e(f"  s_cselect_b32 s62, s{sX}, s{sWQ}")
        e(f"  s_cselect_b32 s63, s{sX+1}, s{sWQ+1}")
        e(f"  s_cselect_b32 s{sT1}, 0, {128*16384}")
        e(f"  s_cmp_lt_u32 s2, 160")
        e(f"  s_cselect_b32 s62, s62, s{sWQKV}")
        e(f"  s_cselect_b32 s63, s63, s{sWQKV+1}")
        e(f"  s_cselect_b32 s{sT1}, s{sT1}, {160*16384}")
        e(f"  s_sub_u32 s{sT0}, s{sT0}, s{sT1}")
        srd(rS, 62, 524288)
        e(f"  s_cmp_lt_u32 s2, 128")
        e(f"  s_cselect_b32 s{rS+2}, 2097152, s{rS+2}")
        e(f"  s_cmp_lt_u32 s2, 160")
        e(f"  s_cselect_b32 s{rS+2}, s{rS+2}, {512*3072}")
        e(f"  v_lshlrev_b32 v{t3}, 4, v{vLane}")
        e(f"  buffer_load_dwordx4 {vr(vAcc,4)}, v{t3}, {sr(rS,4)}, s{sT0} offen")
        e(f"  buffer_load_dwordx4 {vr(vAcc+4,4)}, v{t3}, {sr(rS,4)}, s{sT0} offen offset:1024")
    e(f"  s_cmp_lt_u32 s{sNB}, 4")
    e("  s_cbranch_scc1 proj_wq")
    srd(rW, sWQKV, 512 * 3072)
    e(f"  s_sub_u32 s{sCol}, s{sNB}, 4")
    e(f"  s_lshl_b32 s{sCol}, s{sCol}, 8")
    e(f"  s_mov_b32 s{sPitch}, 3072")
    e("  s_branch proj_wcommon")
    e("proj_wq:")
    srd(rW, sWQ, 512 * 1024)
    e(f"  s_lshl_b32 s{sCol}, s{sNB}, 8")
    e(f"  s_mov_b32 s{sPitch}, 1024")
    e("proj_wcommon:")
    e(f"  v_mul_lo_u32 v{vWo}, v{t1}, s{sPitch}")
    e(f"  v_add_u32 v{vWo}, v{vWo}, v{t2}")
    e(f"  s_lshl_b32 s{sXo}, s{sTB}, 17")
    e(f"  s_lshl_b32 s{sT0}, s{sWid}, 14")
    e(f"  s_add_u32 s{sXo}, s{sXo}, s{sT0}")
    e(f"  s_lshl_b32 s{sT0}, s{sWid}, 3")
    e(f"  s_mul_i32 s{sWo}, s{sT0}, s{sPitch}")
    e(f"  s_add_u32 s{sWo}, s{sWo}, s{sCol}")
    e(f"  s_lshl_b32 s{sM}, s{sWid}, 11")
    e(f"  s_lshl_b32 s{sT2}, s{sPitch}, 2            ; 4*pitch")
    e(f"  s_lshl_b32 s{sPitch}, s{sPitch}, 6")
    e(f"  s_mov_b32 s{sC}, 0")
    e(f"  s_bitcmp1_b32 s{sWid}, 0")
    e(f"  s_cselect_b32 s{sT0}, s{sWV}, s{sWK}")
    e(f"  s_cselect_b32 s{sT1}, s{sWV+1}, s{sWK+1}")
    e(f"  s_mov_b32 s{sSMask}, 0x33333333")
    e(f"  s_cselect_b32 s{sSMask}, 0xcccccccc, s{sSMask}")
    e(f"  s_mov_b32 s{sSMask+1}, s{sSMask}")
    srd(rS, sT0, 512 * 32)
    e(f"  s_lshr_b32 s{sT0}, s{sWid}, 1")
    e(f"  s_lshl_b32 s{sSo}, s{sT0}, 9               ; 16 rows * 32B")
    e(f"  s_lshl_b32 s{sMS}, s{sT0}, 10")

    def dma_piece(c, spec, i):
        st = (c % 4) * STG
        if i == 0:
            e(f"  s_lshl_b32 s{sT0}, s{sC}, 7")
            e(f"  s_add_u32 s{sT0}, s{sT0}, s{sXo}")
            e(f"  s_add_u32 m0, s{sM}, {st}")
            e(f"  s_mul_i32 s{sT1}, s{sC}, s{sPitch}")
            e(f"  buffer_load_dwordx4 v{vXo0}, {sr(rX,4)}, s{sT0} offen lds")
        elif i == 1:
            e(f"  s_add_u32 m0, s{sM}, {st+1024}")
            e(f"  s_add_u32 s{sT1}, s{sT1}, s{sWo}")
            e(f"  buffer_load_dwordx4 v{vXo1}, {sr(rX,4)}, s{sT0} offen lds")
        elif i == 2:
            e(f"  s_add_u32 m0, s{sM}, {st+16384}")
            e(f"  s_add_u32 s{sT0}, s{sT1}, s{sT2}")
            e(f"  buffer_load_dwordx4 v{vWo}, {sr(rW,4)}, s{sT1} offen lds")
        else:
            e(f"  s_add_u32 m0, s{sM}, {st+16384+1024}")
            e(f"  s_lshl_b32 s{sT1}, s{sC}, 11")
            e(f"  buffer_load_dwordx4 v{vWo}, {sr(rW,4)}, s{sT0} offen lds")
            if spec:
                e(f"  s_add_u32 m0, s{sMS}, {st+32768}")
                e(f"  s_add_u32 s{sT1}, s{sT1}, s{sSo}")
                e(f"  s_mov_b64 exec, {sr(sSMask,2)}")
                e(f"  buffer_load_dwordx4 v{vSo}, {sr(rS,4)}, s{sT1} offen lds")
                e("  s_mov_b64 exec, -1")
            e(f"  s_add_u32 s{sC}, s{sC}, 1")
            e(f"  s_and_b32 s{sC}, s{sC}, 7")
    def dma(c, spec):
        for i in range(4):
            dma_piece(c, spec, i)

    def addr_setup():
        e(f"  v_and_b32 v{t0}, 31, v{vLane}")
        e(f"  v_lshrrev_b32 v{t1}, 5, v{vLane}          ; h")
        e(f"  v_bfe_u32 v{t2}, v{vLane}, 1, 3           ; (row>>1)&7")
        e(f"  v_xor_b32 v{t1}, v{t1}, v{t2}")
        e(f"  v_lshlrev_b32 v{t1}, 4, v{t1}")
        e(f"  v_lshl_add_u32 v{t0}, v{t0}, 7, v{t1}")
        e(f"  s_lshl_b32 s{sOff}, s{sTT}, 12")
        e(f"  v_add_u32 v{t0}, s{sOff}, v{t0}")
        for sp in range(4):
            e(f"  v_xor_b32 v{vXA+sp}, {sp*32}, v{t0}")
            e(f"  v_add_u32 v{vXA+4+sp}, {2*STG}, v{vXA+sp}")
        e(f"  v_lshrrev_b32 v{t0}, 5, v{vLane}          ; h")
        e(f"  v_bfe_u32 v{t1}, v{vLane}, 2, 2           ; r")
        e(f"  v_lshl_add_u32 v{t0}, v{t0}, 3, v{t1}     ; 8h+r")
        e(f"  v_bfe_u32 v{t2}, v{vLane}, 4, 1           ; g%2")
        e(f"  v_and_b32 v{t3}, 3, v{vLane}              ; c")
        e(f"  v_lshl_add_u32 v{t2}, v{t2}, 2, v{t3}     ; nc")
        e(f"  v_lshlrev_b32 v{t2}, 3, v{t2}             ; nc*8")
        e(f"  v_lshl_add_u32 v{vSA}, v{t0}, 6, v{t2}")
        e(f"  v_add_u32 v{vSA}, 32768, v{vSA}")
        e(f"  v_add_u32 v{vSA+1}, {2*STG}, v{vSA}")
        e(f"  v_lshl_add_u32 v{t0}, v{t0}, 8, v{t2}     ; k*256 + nc*8")
        e(f"  s_lshl_b32 s{sOff}, s{sCG}, 1")
        e(f"  v_xor_b32 v{t1}, s{sOff}, v{t1}           ; (2cg) ^ r")
        e(f"  v_lshl_add_u32 v{t0}, v{t1}, 6, v{t0}")
        e(f"  v_add_u32 v{vWA}, 16384, v{t0}")
        e(f"  v_xor_b32 v{vWA+1}, 64, v{vWA}")
        e(f"  v_add_u32 v{vWA+2}, {2*STG}, v{vWA}")
        e(f"  v_add_u32 v{vWA+3}, {2*STG}, v{vWA+1}")

    def reads(c, sp, spec):
        st = c % 4
        so = (st % 2) * STG
        hi = st // 2
        rs = 64 * (c % 2)
        e(f"  ds_read_b128 {vr(vXF+rs+4*sp,4)}, v{vXA+sp+4*hi} offset:{so}")
        for ct in range(2):
            for u in range(2):
                e(f"  ds_read_b64_tr_b16 {vr(vWF+rs+sp*8+ct*4+u*2,2)}, v{vWA+2*hi+ct} offset:{so+(16*sp+4*u)*256}")
        if spec:
            for u in range(2):
                e(f"  ds_read_b64_tr_b16 {vr(vSF+rs+sp*4+u*2,2)}, v{vSA+hi} offset:{so+(16*sp+4*u)*64}")

    def mainloop(orient, spec, dspec):
        n = 5 if dspec else 4
        for c in range(2):
            dma(c, dspec)
        addr_setup()
        e(f"  s_waitcnt vmcnt({n})")
        e("  s_barrier")
        if "p" in DBG:
            e(f"  s_memtime s[66:67]")
            e("  s_waitcnt lgkmcnt(0)")
        for sp in range(4):
            reads(0, sp, spec)
        for c in range(2, 4):
            dma(c, dspec)
        for c in range(8):
            if c < 7:
                ng = min(c + 3, 7) - (c + 1)
                e(f"  s_waitcnt vmcnt({ng*n}) lgkmcnt(0)")
                e("  s_barrier")
                if "p" in DBG and c in (0,3,6):
                    e(f"  s_memtime s[{68+2*(0,3,6).index(c)}:{69+2*(0,3,6).index(c)}]")
                    e("  s_waitcnt lgkmcnt(0)")
            else:
                e("  s_waitcnt lgkmcnt(0)")
            rs = 64 * (c % 2)
            for sp in range(4):
                if c < 7:
                    reads(c + 1, sp, spec)
                xf = vXF + rs + 4 * sp
                first = (c == 0 and sp == 0)
                for ct in range(2):
                    wf = vWF + rs + sp * 8 + ct * 4
                    acc = vAcc + 16 * ct
                    cc = "0" if first else vr(acc, 16)
                    if orient == 'T':
                        e(f"  v_mfma_f32_32x32x16_bf16 {vr(acc,16)}, {vr(wf,4)}, {vr(xf,4)}, {cc}")
                    else:
                        e(f"  v_mfma_f32_32x32x16_bf16 {vr(acc,16)}, {vr(xf,4)}, {vr(wf,4)}, {cc}")
                if spec:
                    acc = vAcc + 32
                    sf = vSF + rs + 4 * sp
                    cc = "0" if first else vr(acc, 16)
                    if spec == 'T':
                        e(f"  v_mfma_f32_32x32x16_bf16 {vr(acc,16)}, {vr(sf,4)}, {vr(xf,4)}, {cc}")
                    else:
                        e(f"  v_mfma_f32_32x32x16_bf16 {vr(acc,16)}, {vr(xf,4)}, {vr(sf,4)}, {cc}")
                if c + 4 <= 7:
                    dma_piece(c + 4, dspec, sp)
        e("  s_nop 15")
        if "p" in DBG:
            e("  s_memtime s[74:75]")
            e("  s_waitcnt lgkmcnt(0)")

    def v_store_addr():
        e(f"  v_and_b32 v{t0}, 3, v{vLane}")
        e(f"  v_and_b32 v{t1}, 4, v{vLane}")
        e(f"  v_lshl_or_b32 v{t0}, v{t1}, 1, v{t0}")
        e(f"  v_and_b32 v{t1}, 8, v{vLane}")
        e(f"  v_lshrrev_b32 v{t1}, 1, v{t1}")
        e(f"  v_or_b32 v{t0}, v{t0}, v{t1}              ; m")
        e(f"  v_lshlrev_b32 v{t0}, 4, v{t0}")
        e(f"  v_lshrrev_b32 v{t1}, 5, v{vLane}          ; half")
        e(f"  v_lshl_add_u32 v{t0}, v{t1}, 9, v{t0}")
        e(f"  v_bfe_u32 v{t1}, v{vLane}, 4, 1           ; subhead")
        e(f"  v_lshl_add_u32 v{vSt}, v{t1}, 17, v{t0}")

    def spec_epilogue(kind):
        A = vAcc + 32
        e(f"  s_lshl_b32 s{sOff}, s{sQt}, 11")
        if kind == 'T':
            e(f"  s_add_u32 s{sOff}, s{sOff}, {KV_OFF + 32*131072}")
            e(f"  v_lshlrev_b32 v{t2}, 4, v{vLane}")
            for j in range(4):
                e(f"  v_cvt_pk_bf16_f32 v{vOut+16+j}, v{A+2*j}, v{A+2*j+1}")
            e(f"  buffer_store_dwordx4 {vr(vOut+16,4)}, v{t2}, {sr(rWS,4)}, s{sOff} offen")
        else:
            e(f"  s_add_u32 s{sOff}, s{sOff}, {KV_OFF + 31*131072}")
            v_store_addr()
            for j in range(8):
                e(f"  v_cvt_pk_bf16_f32 v{vOut+16+j}, v{A+2*j}, v{A+2*j+1}")
            e(f"  v_and_b32 v{t0}, 16, v{vLane}")
            e(f"  v_cmp_ne_u32 vcc, 0, v{t0}")
            e(f"  s_and_saveexec_b64 {sr(sEx,2)}, vcc")
            for j in range(2):
                e(f"  buffer_store_dwordx4 {vr(vOut+16+j*4,4)}, v{vSt}, {sr(rWS,4)}, s{sOff} offen offset:{1024+j*256}")
            e(f"  s_mov_b64 exec, {sr(sEx,2)}")

    def variants(o):
        e(f"  s_cmp_ge_u32 s{sSpec}, 8")
        e(f"  s_cbranch_scc1 proj_{o}_plain")
        e(f"  s_cmp_lg_u32 s{sSpec}, s{sWid}")
        e(f"  s_cbranch_scc1 proj_{o}_none")
        e(f"  s_cmp_eq_u32 s{sCG}, 0")
        e(f"  s_cbranch_scc1 proj_{o}_T")
        e(f"proj_{o}_N:")
        mainloop(o, 'N', True)
        spec_epilogue('N')
        e(f"  s_branch proj_{o}_epi")
        e(f"proj_{o}_T:")
        mainloop(o, 'T', True)
        spec_epilogue('T')
        e(f"  s_branch proj_{o}_epi")
        e(f"proj_{o}_none:")
        mainloop(o, None, True)
        e(f"  s_branch proj_{o}_epi")
        e(f"proj_{o}_plain:")
        mainloop(o, None, False)
    e(f"  s_cmp_ge_u32 s{sNB}, 12")
    e("  s_cbranch_scc1 proj_v_sel")
    variants('T')
    e("proj_T_epi:")
    e(f"  s_mov_b32 s{sT1}, {f32bits(SCALE)}")
    e(f"  s_cmp_lt_u32 s{sNB}, 8")
    e(f"  s_cselect_b32 s{sT1}, s{sT1}, 1.0")
    e(f"  s_lshl_b32 s{sT2}, s{sNB}, 3")
    e(f"  s_lshl_b32 s{sT0}, s{sCG}, 2")
    e(f"  s_add_u32 s{sT2}, s{sT2}, s{sT0}")
    e(f"  s_lshl_b32 s{sT2}, s{sT2}, 6")
    e(f"  s_add_u32 s{sT2}, s{sT2}, s{sQt}")
    e(f"  s_lshl_b32 s{sOff}, s{sT2}, 10             ; Q dest")
    e(f"  s_mov_b32 s{sCol}, 65536")
    e(f"  s_cmp_lt_u32 s{sNB}, 8")
    e(f"  s_cbranch_scc1 proj_qk_store")
    e(f"  s_sub_u32 s{sT2}, s{sT2}, {64*64}")
    e(f"  s_lshl_b32 s{sOff}, s{sT2}, 11")
    e(f"  s_add_u32 s{sOff}, s{sOff}, {KV_OFF}")
    e(f"  s_mov_b32 s{sCol}, 131072")
    e("proj_qk_store:")
    e(f"  v_lshlrev_b32 v{vSt}, 4, v{vLane}")
    for hh in range(4):
        for i in range(8):
            e(f"  v_mul_f32 v{vAcc+hh*8+i}, s{sT1}, v{vAcc+hh*8+i}")
        for j in range(4):
            e(f"  v_cvt_pk_bf16_f32 v{vOut+hh*4+j}, v{vAcc+hh*8+2*j}, v{vAcc+hh*8+2*j+1}")
        e(f"  buffer_store_dwordx4 {vr(vOut+hh*4,4)}, v{vSt}, {sr(rWS,4)}, s{sOff} offen")
        if hh < 3:
            e(f"  s_add_u32 s{sOff}, s{sOff}, s{sCol}")
    if "p" in DBG:
        e("  s_waitcnt vmcnt(0)")
        e("  s_memtime s[76:77]")
        e("  s_waitcnt lgkmcnt(0)")
        for i in range(7):
            e(f"  s_sub_u32 s{66+2*i}, s{66+2*i}, s64")
            e(f"  v_mov_b32 v{4+i}, s{66+2*i}")
        e("  v_mov_b32 v11, 0")
        srd(84, 80, 256)
        e(f"  s_lshl_b32 s64, s{sWid}, 5")
        e("  v_mov_b32 v12, s64")
        e("  s_cmp_lg_u32 s2, 40")
        e("  s_cbranch_scc1 proj_done")
        e("  buffer_store_dwordx4 v[4:7], v12, s[84:87], 0 offen")
        e("  buffer_store_dwordx4 v[8:11], v12, s[84:87], 0 offen offset:16")
    e("  s_endpgm" if not FUSED else "  s_branch proj_fin")
    e("proj_v_sel:")
    variants('N')
    e("proj_N_epi:")
    v_store_addr()
    e(f"  s_sub_u32 s{sT2}, s{sNB}, 12")
    e(f"  s_lshl_b32 s{sT2}, s{sT2}, 3")
    e(f"  s_lshl_b32 s{sT0}, s{sCG}, 2")
    e(f"  s_add_u32 s{sT2}, s{sT2}, s{sT0}")
    e(f"  s_lshl_b32 s{sT2}, s{sT2}, 6")
    e(f"  s_add_u32 s{sT2}, s{sT2}, s{sQt}")
    e(f"  s_lshl_b32 s{sOff}, s{sT2}, 11")
    e(f"  s_add_u32 s{sOff}, s{sOff}, {KV_OFF+1024}")
    for ct in range(2):
        for j in range(8):
            e(f"  v_cvt_pk_bf16_f32 v{vOut+ct*8+j}, v{vAcc+ct*16+2*j}, v{vAcc+ct*16+2*j+1}")
        for j in range(2):
            e(f"  buffer_store_dwordx4 {vr(vOut+ct*8+j*4,4)}, v{vSt}, {sr(rWS,4)}, s{sOff} offen offset:{j*256}")
        if ct == 0:
            e(f"  s_add_u32 s{sOff}, s{sOff}, {2*131072}")
    if FUSED:
        e("proj_fin:")
        sync_arrive("sy1", 0, sNB)
        sync_wait("sy1", 0)
        return ""
    e("proj_done:")
    e("  s_endpgm")
    return kernel_desc("proj_kernel", NV, 64 if "p" not in DBG else 96)

def gen_attn():
    kernel_start("attn_kernel")
    sWS = 4; rWS = 8
    sWid, sHB, sBr, sHead, sQt, sT0, sT1, sIt, sThr, sInf, sFlag, sOff = 12, 13, 14, 15, 16, 17, 18, 19, 20, 21, 22, 23
    sMask = 24
    vLane, vAddr, vG, t0, t1, t2, t3 = 1, 2, 3, 4, 5, 6, 7
    vK = 8
    vV = 16
    vQ = [32, 36]
    vP = [40, 56]
    vO = [72, 88]
    vC = [104, 120]
    vS = [136, 168]
    vX = 200
    vPr = 216
    sPr = 46
    NV = 220
    if not FUSED:
        e("  s_cmp_ge_u32 s2, 256")
        e("  s_cbranch_scc1 attn_done")
    e("  s_load_dwordx2 s[4:5], s[0:1], 88")
    e("  s_load_dwordx2 s[6:7], s[0:1], 0")
    e("  s_load_dwordx2 s[28:29], s[0:1], 64")
    e("  s_load_dwordx2 s[56:57], s[0:1], 32")
    e("  s_load_dwordx2 s[58:59], s[0:1], 56")
    if "t" in DBG:
        e("  s_load_dwordx2 s[40:41], s[0:1], 80")
        e("  s_memtime s[32:33]")
        e("  s_memrealtime s[34:35]")
    e(f"  v_and_b32 v{vLane}, 63, v0")
    e(f"  v_lshrrev_b32 v{t0}, 6, v0")
    e("  s_nop 0")
    e(f"  v_readfirstlane_b32 s{sWid}, v{t0}")
    e(f"  s_and_b32 s{sT0}, s2, 7")
    e(f"  s_lshr_b32 s{sT1}, s2, 3")
    e(f"  s_lshr_b32 s{sHB}, s{sT1}, 2")
    e(f"  s_lshl_b32 s{sHB}, s{sHB}, 3")
    e(f"  s_add_u32 s{sHB}, s{sHB}, s{sT0}")
    e(f"  s_and_b32 s{sT1}, s{sT1}, 3")
    e(f"  s_lshl_b32 s{sQt}, s{sT1}, 4")
    e(f"  s_lshl_b32 s{sT0}, s{sWid}, 1")
    e(f"  s_add_u32 s{sQt}, s{sQt}, s{sT0}")
    e(f"  s_lshr_b32 s{sBr}, s{sHB}, 5")
    e(f"  s_and_b32 s{sHead}, s{sHB}, 31")
    e("  s_mov_b32 s24, 0x0000ffff")
    e("  s_mov_b32 s25, 0x0000ffff")
    e(f"  s_mov_b32 s{sThr}, {hex(f32bits(2.0**THR))}")
    e(f"  s_mov_b32 s{sInf}, 0x7f800000")
    e(f"  s_mov_b32 s{sFlag}, 0")
    e(f"  v_lshlrev_b32 v{vAddr}, 4, v{vLane}        ; lane*16")
    e(f"  s_cmp_eq_u32 s{sBr}, 1")
    e(f"  s_cselect_b32 s{sT0}, s{sHead}, 32")
    e(f"  s_lshl_b32 s{sT0}, s{sT0}, 17")
    e(f"  s_add_u32 s{sT0}, s{sT0}, {KV_OFF}")
    e(f"  s_lshl_b32 s{sT1}, s{sWid}, 11")
    e(f"  s_add_u32 s{sT0}, s{sT0}, s{sT1}")
    e(f"  s_lshl_b32 s{sOff}, s{sHB}, 6")
    e(f"  s_add_u32 s{sOff}, s{sOff}, s{sQt}")
    e(f"  s_lshl_b32 s{sOff}, s{sOff}, 10")
    e(f"  s_mov_b32 m0, s{sT1}")
    e("  s_waitcnt lgkmcnt(0)")
    srd(rWS, sWS, WS_BYTES)
    e(f"  buffer_load_dwordx4 v{vAddr}, {sr(rWS,4)}, s{sT0} offen lds")
    e(f"  buffer_load_dwordx4 v{vAddr}, {sr(rWS,4)}, s{sT0} offen offset:1024 lds")
    e(f"  buffer_load_dwordx4 {vr(vQ[0],4)}, v{vAddr}, {sr(rWS,4)}, s{sOff} offen")
    e(f"  buffer_load_dwordx4 {vr(vQ[1],4)}, v{vAddr}, {sr(rWS,4)}, s{sOff} offen offset:1024")
    rXg, rGw = 48, 52
    srd(rXg, 6, 2097152)
    srd(rGw, 28, 1024)
    e("  s_barrier")
    def kvdma(c):
        e(f"  s_add_u32 s{sT0}, s{sT0}, 16384")
        e(f"  s_add_u32 m0, s{sT1}, {c*16384}")
        e("  s_nop 0")
        e(f"  buffer_load_dwordx4 v{vAddr}, {sr(rWS,4)}, s{sT0} offen lds")
        e(f"  buffer_load_dwordx4 v{vAddr}, {sr(rWS,4)}, s{sT0} offen offset:1024 lds")
    kvdma(1)
    e(f"  v_and_b32 v{t0}, 31, v{vLane}")
    e(f"  v_and_b32 v{t1}, 27, v{t0}")
    e(f"  v_mov_b32 v{t2}, 0x3f803f80")
    e(f"  v_cmp_eq_u32 vcc, 16, v{t1}")
    e("  s_nop 1")
    e(f"  v_cndmask_b32 v{t2}, 0, v{t2}, vcc")
    for i in range(16):
        e(f"  v_mov_b32 v{vV+i}, v{t2}")
    for z in range(2):
        for i in range(16):
            e(f"  v_mov_b32 v{vO[z]+i}, 0")
        for i in range(8):
            e(f"  v_mov_b32 v{vP[z]+8+i}, 0")
    e(f"  s_lshl_b32 s{sPr}, s{sWid}, 2")
    e(f"  s_add_u32 s{sPr}, s{sPr}, 135168")
    e(f"  v_mov_b32 v{vPr}, s{sPr}")
    e(f"  v_xor_b32 v{vPr+1}, 16, v{vPr}")
    e(f"  v_mov_b32 v{vPr+2}, 0")
    e(f"  ds_write_b32 v{vPr}, v{vPr+2}")
    e("  s_waitcnt vmcnt(2) lgkmcnt(0)")
    e("  s_barrier")

    def kread(buf, off):
        e(f"  ds_read_b128 {vr(vK+4*buf,4)}, v{vAddr} offset:{off}")
    def vread(buf, off):
        e(f"  s_mov_b64 exec, {sr(sMask,2)}")
        e(f"  ds_read_b128 {vr(vV+8*buf,4)}, v{vAddr} offset:{off+1024}")
        e(f"  ds_read_b128 {vr(vV+8*buf+4,4)}, v{vAddr} offset:{off+1024+256}")
        e("  s_mov_b64 exec, -1")
    def rowmax(src, dst, tmp):
        e(f"  v_max3_f32 v{dst}, v{src}, v{src+1}, v{src+2}")
        for i in range(3, 15, 2):
            e(f"  v_max3_f32 v{dst}, v{dst}, v{src+i}, v{src+i+1}")
        e(f"  v_max_f32 v{dst}, v{dst}, v{src+15}")
        e(f"  v_mov_b32 v{tmp}, v{dst}")
        e("  s_nop 1")
        e(f"  v_permlane32_swap_b32 v{dst}, v{tmp}")
        e(f"  v_max_f32 v{dst}, v{dst}, v{tmp}")

    kread(0, 0)
    kread(1, 2048)
    e("  s_waitcnt lgkmcnt(0)")
    for z in range(2):
        e(f"  v_mfma_f32_32x32x16_bf16 {vr(vS[z],16)}, {vr(vK,4)}, {vr(vQ[z],4)}, 0")
    kvdma(2)
    for z in range(2):
        rowmax(vS[z], t0, t1)
        e(f"  v_sub_f32 v{t0}, {hex(f32bits(-float(HEAD)))}, v{t0}")
        for i in range(16):
            e(f"  v_mov_b32 v{vC[z]+i}, v{t0}")
        e("  s_nop 1")
        e(f"  v_mfma_f32_32x32x16_bf16 {vr(vS[z],16)}, {vr(vK,4)}, {vr(vQ[z],4)}, {vr(vC[z],16)}")
    e(f"  s_mov_b32 s{sIt}, 0")
    if "t" in DBG:
        e("  s_memtime s[44:45]")
        e("  s_waitcnt lgkmcnt(0)")
    e(f"  s_cmp_ge_u32 s{sWid}, 4")
    e(f"  s_cbranch_scc1 attn_loop1")
    for j in range(2):
        e(".p2align 6")
        e(f"attn_loop{j}:")
        for u in range(8):
            b = u % 2
            Vp = vV + 8 * (1 - b)
            if u in (0, 1, 2, 3, 4):
                e(f"  s_cmp_lg_u32 s{sIt}, 0")
                e(f"  s_cbranch_scc1 attn_nodma{j}_{u}")
                kvdma(3 + u)
                e(f"attn_nodma{j}_{u}:")
            if u == 5:
                e(f"  s_cmp_lg_u32 s{sIt}, 0")
                e(f"  s_cbranch_scc1 attn_nobarA{j}")
                e("  s_waitcnt vmcnt(10)")
                e("  s_barrier")
                e(f"attn_nobarA{j}:")
            if u == 6:
                e(f"  s_cmp_lg_u32 s{sIt}, 1")
                e(f"  s_cbranch_scc1 attn_nobar{j}")
                e("  s_waitcnt vmcnt(0)")
                e("  s_barrier")
                e(f"  v_lshlrev_b32 v{t0}, 4, v{vLane}")
                e(f"  s_and_b32 s{sT0}, s2, 0xf8")
                e(f"  s_add_u32 s{sT0}, s{sT0}, s{sWid}          ; slice 0..255")
                e(f"  s_cmp_lt_u32 s{sT0}, 128")
                e("  s_cselect_b32 s30, s56, s58")
                e("  s_cselect_b32 s31, s57, s59")
                srd(60, 30, 512 * 1024)
                e(f"  s_and_b32 s{sT0}, s{sT0}, 127")
                e(f"  s_lshl_b32 s{sT0}, s{sT0}, 12")
                for i in range(4):
                    e(f"  buffer_load_dwordx4 {vr(vX,4)}, v{t0}, s[60:63], s{sT0} offen offset:{i*1024}")
                if j == 0:
                    e(f"  s_lshl_b32 s{sOff}, s2, 3")
                    e(f"  s_lshl_b32 s{sT0}, s{sWid}, 1")
                    e(f"  s_add_u32 s{sOff}, s{sOff}, s{sT0}")
                    e(f"  s_lshl_b32 s{sT0}, s{sOff}, 10")
                    e(f"  buffer_load_dwordx4 {vr(vX+4,4)}, v{t0}, {sr(rXg,4)}, s{sT0} offen")
                    e(f"  buffer_load_dwordx4 {vr(vX+8,4)}, v{t0}, {sr(rXg,4)}, s{sT0} offen offset:1024")
                    e(f"  buffer_load_dwordx4 {vr(vX+12,4)}, v{t0}, {sr(rGw,4)}, 0 offen")
                e(f"attn_nobar{j}:")
            e("  s_waitcnt lgkmcnt(2)")
            if u == 0:
                e(f"  v_readfirstlane_b32 s{sPr}, v{vPr+2}")
                e(f"  s_cmp_eq_u32 s{sIt}, s{sPr}")
                e(f"  s_cbranch_scc1 attn_ptie{j}")
                e(f"  s_cmp_gt_u32 s{sIt}, s{sPr}")
                e(f"  s_cbranch_scc1 attn_plow{j}")
                e("  s_setprio 2")
                e(f"  s_branch attn_pdone{j}")
                e(f"attn_plow{j}:")
                e("  s_setprio 0")
                e(f"  s_branch attn_pdone{j}")
                e(f"attn_ptie{j}:")
                e(f"  s_setprio {j}")
                e(f"attn_pdone{j}:")
            mf = []
            for z in range(2):
                mf.append(f"  v_mfma_f32_32x32x16_bf16 {vr(vS[z]+16*(1-b),16)}, {vr(vK+4*(1-b),4)}, {vr(vQ[z],4)}, {vr(vC[z],16)}")
            for z in range(2):
                Pp = vP[z] + 8 * (1 - b)
                mf.append(f"  v_mfma_f32_32x32x16_bf16 {vr(vO[z],16)}, {vr(Vp,4)}, {vr(Pp,4)}, {vr(vO[z],16)}")
                mf.append(f"  v_mfma_f32_32x32x16_bf16 {vr(vO[z],16)}, {vr(Vp+4,4)}, {vr(Pp+4,4)}, {vr(vO[z],16)}")
            va = []
            for z in range(2):
                S = vS[z] + 16 * b
                for i in range(16):
                    va.append(f"  v_exp_f32 v{S+i}, v{S+i}")
                for i in range(8):
                    va.append(f"  v_cvt_pk_bf16_f32 v{vP[z]+8*b+i}, v{S+2*i}, v{S+2*i+1}")
            pos = [0, 5, 11, 17, 27, 33]
            for i, v in enumerate(va):
                while pos and pos[0] == i:
                    k = 6 - len(pos)
                    if k == 2:
                        e("  s_waitcnt lgkmcnt(3)")
                    e(mf[k])
                    if k == 1:
                        if u == 7:
                            e(f"  s_add_u32 s{sPr}, s{sIt}, 1")
                            e(f"  v_mov_b32 v{vPr+3}, s{sPr}")
                            e(f"  ds_write_b32 v{vPr}, v{vPr+3}")
                            e(f"  ds_read_b32 v{vPr+2}, v{vPr+1}")
                        if "L" not in DBG:
                            kread(b, (u + 2) * 2048)
                            vread(b, u * 2048)
                    pos.pop(0)
                e(v)
            if u == 7:
                e(f"  v_cmp_ngt_f32 vcc, s{sThr}, v{vO[0]+8}")
                e(f"  v_cmp_ngt_f32 s[26:27], s{sThr}, v{vO[1]+8}")
                e(f"  v_add_u32 v{vAddr}, 16384, v{vAddr}")
                e(f"  s_add_u32 s{sIt}, s{sIt}, 1")
                e("  s_or_b64 vcc, vcc, s[26:27]")
                e(f"  s_cbranch_vccnz attn_rare{j}")
                e(f"attn_rare_ret{j}:")
        e(f"  s_cmp_lt_u32 s{sIt}, 8")
        e(f"  s_cbranch_scc1 attn_loop{j}")
        if j < 1:
            e("  s_branch attn_tail")
    e("attn_tail:")
    e("  s_setprio 0")
    e("  s_waitcnt lgkmcnt(0)")
    for z in range(2):
        e(f"  v_mfma_f32_32x32x16_bf16 {vr(vO[z],16)}, {vr(vV+8,4)}, {vr(vP[z]+8,4)}, {vr(vO[z],16)}")
        e(f"  v_mfma_f32_32x32x16_bf16 {vr(vO[z],16)}, {vr(vV+12,4)}, {vr(vP[z]+12,4)}, {vr(vO[z],16)}")
    e("  s_nop 15")
    e(f"  v_mov_b32 v{t1}, 0x207")
    e(f"  s_mov_b64 {sr(26,2)}, 0")
    for z in range(2):
        for i in range(9):
            e(f"  v_cmp_class_f32 vcc, v{vO[z]+i}, v{t1}")
            e(f"  s_or_b64 {sr(26,2)}, {sr(26,2)}, vcc")
    e(f"  s_cmp_lg_u64 {sr(26,2)}, 0")
    e(f"  s_cselect_b32 s{sT0}, 1, 0")
    e(f"  s_or_b32 s{sFlag}, s{sFlag}, s{sT0}")
    e(f"  s_cmp_lg_u32 s{sFlag}, 0")
    e("  s_cbranch_scc1 attn_fallback")
    e("attn_epilogue:")
    e(f"  s_lshl_b32 s{sT0}, s{sBr}, 6")
    e(f"  s_add_u32 s{sT0}, s{sT0}, s{sQt}")
    e(f"  s_lshl_b32 s{sT0}, s{sT0}, 5")
    e(f"  s_add_u32 s{sT0}, s{sT0}, s{sHead}")
    e(f"  s_lshl_b32 s{sT0}, s{sT0}, 10")
    e(f"  s_add_u32 s{sT0}, s{sT0}, {OF_OFF}")
    e(f"  v_lshlrev_b32 v{t1}, 4, v{vLane}")
    for z in range(2):
        e(f"  v_rcp_f32 v{t0}, v{vO[z]+8}")
        e("  s_nop 0")
        for i in range(8):
            e(f"  v_mul_f32 v{vO[z]+i}, v{vO[z]+i}, v{t0}")
        for i in range(4):
            e(f"  v_cvt_pk_bf16_f32 v{vP[z]+i}, v{vO[z]+2*i}, v{vO[z]+2*i+1}")
        e(f"  buffer_store_dwordx4 {vr(vP[z],4)}, v{t1}, {sr(rWS,4)}, s{sT0} offen")
        if z == 0:
            e(f"  s_add_u32 s{sT0}, s{sT0}, 32768")
    e(f"  s_cmp_ge_u32 s{sWid}, 4")
    e("  s_cbranch_scc1 attn_nogate")
    e("  s_waitcnt vmcnt(2)")
    e(f"  v_mov_b32 v{t0}, 0")
    e(f"  v_mov_b32 v{t2}, 0")
    for i in range(4):
        e(f"  v_dot2_f32_bf16 v{t0}, v{vX+4+i}, v{vX+12+i}, v{t0}")
        e(f"  v_dot2_f32_bf16 v{t2}, v{vX+8+i}, v{vX+12+i}, v{t2}")
    e("  s_nop 2")
    for m in (0x041F, 0x081F, 0x101F, 0x201F, 0x401F):
        e(f"  ds_swizzle_b32 v{t1}, v{t0} offset:{hex(m)}")
        e(f"  ds_swizzle_b32 v{t3}, v{t2} offset:{hex(m)}")
        e("  s_waitcnt lgkmcnt(0)")
        e(f"  v_add_f32 v{t0}, v{t0}, v{t1}")
        e(f"  v_add_f32 v{t2}, v{t2}, v{t3}")
    e("  s_nop 1")
    e(f"  v_permlane32_swap_b32 v{t0}, v{t2}")
    e(f"  v_add_f32 v{t0}, v{t0}, v{t2}")
    e(f"  v_cvt_pk_bf16_f32 v{t0}, v{t0}, v{t0}")
    e(f"  v_lshlrev_b32 v{t0}, 16, v{t0}")
    e(f"  v_mul_f32 v{t0}, {hex(f32bits(-1.4426950408889634))}, v{t0}")
    e(f"  v_exp_f32 v{t0}, v{t0}")
    e("  s_nop 0")
    e(f"  v_add_f32 v{t0}, 1.0, v{t0}")
    e(f"  v_rcp_f32 v{t0}, v{t0}")
    e("  s_nop 0")
    e(f"  v_cvt_pk_bf16_f32 v{t0}, v{t0}, v{t0}")
    e(f"  v_lshlrev_b32 v{t0}, 16, v{t0}")
    e(f"  s_lshl_b32 s{sOff}, s{sOff}, 2")
    e(f"  s_add_u32 s{sOff}, s{sOff}, {G_OFF}")
    e(f"  v_lshrrev_b32 v{t1}, 5, v{vLane}")
    e(f"  v_lshlrev_b32 v{t1}, 2, v{t1}")
    e("  s_mov_b32 exec_lo, 1")
    e("  s_mov_b32 exec_hi, 1")
    e(f"  buffer_store_dword v{t0}, v{t1}, {sr(rWS,4)}, s{sOff} offen sc0 sc1")
    e("  s_mov_b64 exec, -1")
    e("attn_nogate:")
    if "t" in DBG:
        e("  s_memtime s[36:37]")
        e("  s_memrealtime s[38:39]")
        e("  s_waitcnt lgkmcnt(0)")
        e("  s_sub_u32 s36, s36, s32")
        e("  s_sub_u32 s38, s38, s34")
        e("  s_sub_u32 s37, s44, s32")
        srd(28, 40, 256)
        e("  v_mov_b32 v4, s36")
        e("  v_mov_b32 v5, s38")
        e("  v_mov_b32 v6, s37")
        e("  v_mov_b32 v7, 0")
        e(f"  s_lshl_b32 s36, s{sWid}, 4")
        e("  v_mov_b32 v8, s36")
        e("  s_cmp_lg_u32 s2, 100")
        e("  s_cbranch_scc1 attn_done")
        e("  buffer_store_dwordx4 v[4:7], v8, s[28:31], 0 offen")
    e("attn_done:")
    e("  s_endpgm" if not FUSED else "  s_branch outp_kernel_phase")

    e("attn_rare0:")
    e(f"  s_mov_b32 s{sT1}, 0")
    e("  s_branch attn_rare")
    e("attn_rare1:")
    e(f"  s_mov_b32 s{sT1}, 1")
    e("attn_rare:")
    e(f"  v_cmp_ngt_f32 vcc, s{sInf}, v{vO[0]+8}")
    e(f"  v_cmp_ngt_f32 s[26:27], s{sInf}, v{vO[1]+8}")
    e("  s_or_b64 vcc, vcc, s[26:27]")
    e("  s_cbranch_vccz attn_rare_ok")
    e(f"  s_mov_b32 s{sFlag}, 1")
    e("  s_branch attn_rare_back")
    e("attn_rare_ok:")
    for z in range(2):
        e(f"  v_frexp_exp_i32_f32 v{t0}, v{vO[z]+8}")
        e(f"  v_add_u32 v{t0}, {HEAD}, v{t0}")
        e(f"  v_sub_u32 v{t1}, 0, v{t0}")
        e(f"  v_cvt_f32_i32 v{t0}, v{t0}")
        for i in range(9):
            e(f"  v_ldexp_f32 v{vO[z]+i}, v{vO[z]+i}, v{t1}")
        for i in range(8):
            e(f"  v_lshlrev_b32 v{t2}, 16, v{vP[z]+8+i}")
            e(f"  v_and_b32 v{t3}, 0xffff0000, v{vP[z]+8+i}")
            e(f"  v_ldexp_f32 v{t2}, v{t2}, v{t1}")
            e(f"  v_ldexp_f32 v{t3}, v{t3}, v{t1}")
            e(f"  v_cvt_pk_bf16_f32 v{vP[z]+8+i}, v{t2}, v{t3}")
        for i in range(16):
            e(f"  v_sub_f32 v{vS[z]+i}, v{vS[z]+i}, v{t0}")
        for i in range(16):
            e(f"  v_sub_f32 v{vC[z]+i}, v{vC[z]+i}, v{t0}")
    e("attn_rare_back:")
    e(f"  s_cmp_eq_u32 s{sT1}, 0")
    e(f"  s_cbranch_scc1 attn_rare_ret0")
    e("  s_branch attn_rare_ret1")

    e("attn_fallback:")
    for z in range(2):
        e(f"  v_lshlrev_b32 v{vAddr}, 4, v{vLane}")
        for i in range(16):
            e(f"  v_mov_b32 v{vO[z]+i}, 0")
        e(f"  v_mov_b32 v{vG}, 0xff7fffff")
        e(f"  s_mov_b32 s{sIt}, 0")
        e(f"attn_fb_loop{z}:")
        kread(0, 0)
        vread(0, 0)
        e("  s_waitcnt lgkmcnt(0)")
        S = vS[z]
        e(f"  v_mfma_f32_32x32x16_bf16 {vr(S,16)}, {vr(vK,4)}, {vr(vQ[z],4)}, 0")
        e("  s_nop 15")
        e("  s_nop 3")
        rowmax(S, t0, t1)
        e(f"  v_max_f32 v{t0}, v{t0}, v{vG}             ; m_new")
        e(f"  v_sub_f32 v{t1}, v{vG}, v{t0}")
        e(f"  v_exp_f32 v{t1}, v{t1}                    ; alpha")
        e(f"  v_mov_b32 v{vG}, v{t0}")
        for i in range(16):
            e(f"  v_sub_f32 v{S+i}, v{S+i}, v{t0}")
        for i in range(16):
            e(f"  v_exp_f32 v{S+i}, v{S+i}")
        for i in range(9):
            e(f"  v_mul_f32 v{vO[z]+i}, v{vO[z]+i}, v{t1}")
        for i in range(8):
            e(f"  v_cvt_pk_bf16_f32 v{vP[z]+i}, v{S+2*i}, v{S+2*i+1}")
        e("  s_nop 1")
        e(f"  v_mfma_f32_32x32x16_bf16 {vr(vO[z],16)}, {vr(vV,4)}, {vr(vP[z],4)}, {vr(vO[z],16)}")
        e(f"  v_mfma_f32_32x32x16_bf16 {vr(vO[z],16)}, {vr(vV+4,4)}, {vr(vP[z]+4,4)}, {vr(vO[z],16)}")
        e(f"  v_add_u32 v{vAddr}, 2048, v{vAddr}")
        e("  s_nop 15")
        e("  s_nop 3")
        e(f"  s_add_u32 s{sIt}, s{sIt}, 1")
        e(f"  s_cmp_lt_u32 s{sIt}, 64")
        e(f"  s_cbranch_scc1 attn_fb_loop{z}")
    e("  s_branch attn_epilogue")
    return kernel_desc("attn_kernel", NV, 64) if not FUSED else ""

def gen_outp():
    kernel_start("outp_kernel")
    sWA, sWB, sOut, sWS = 4, 6, 8, 10
    rW, rOut, rWS = 12, 20, 24
    sWid, sNB, sTBk, sBr, sTT, sKH, sT0, sT1, sQt, sWo, sM, sOo, sQd = 28, 29, 30, 31, 32, 33, 34, 35, 36, 37, 38, 39, 40
    vLane, vWo, vA0, vA1, vG, vOa, t0, t1, t2, t3 = 1, 2, 3, 4, 5, 6, 7, 8, 9, 10
    vWF = 12
    vAcc = 76
    vOF = 108
    vEx = 12
    NV = 172
    e("  s_cmp_ge_u32 s2, 256")
    e("  s_cbranch_scc1 outp_done")
    e("  s_load_dwordx2 s[4:5], s[0:1], 32")
    e("  s_load_dwordx2 s[6:7], s[0:1], 56")
    e("  s_load_dwordx2 s[8:9], s[0:1], 72")
    e("  s_load_dwordx2 s[10:11], s[0:1], 88")
    if "o" in DBG:
        e("  s_load_dwordx2 s[80:81], s[0:1], 80")
        e("  s_memtime s[60:61]")
    e(f"  v_and_b32 v{vLane}, 63, v0")
    e(f"  v_lshrrev_b32 v{t0}, 6, v0")
    e("  s_nop 0")
    e(f"  v_readfirstlane_b32 s{sWid}, v{t0}")
    e(f"  s_and_b32 s{sT0}, s2, 7")
    e(f"  s_lshl_b32 s{sT0}, s{sT0}, 2")
    e(f"  s_bfe_u32 s{sT1}, s2, 0x20003")
    e(f"  s_add_u32 s{sTBk}, s{sT0}, s{sT1}")
    e(f"  s_lshr_b32 s{sNB}, s2, 5")
    e(f"  s_lshr_b32 s{sBr}, s{sWid}, 2")
    e(f"  s_bfe_u32 s{sTT}, s{sWid}, 0x10001")
    e(f"  s_and_b32 s{sKH}, s{sWid}, 1")
    e(f"  s_lshl_b32 s{sQt}, s{sTBk}, 1")
    e(f"  s_add_u32 s{sQt}, s{sQt}, s{sTT}")
    e(f"  s_lshl_b32 s{sQd}, s{sBr}, 1")
    e(f"  s_add_u32 s{sQd}, s{sQd}, s{sKH}")
    e(f"  v_lshrrev_b32 v{t0}, 3, v{vLane}          ; l/8")
    e(f"  v_and_b32 v{t1}, 7, v{vLane}")
    e(f"  v_bfe_u32 v{t2}, v{vLane}, 4, 1           ; (row>>1)&1")
    e(f"  v_lshlrev_b32 v{t2}, 2, v{t2}")
    e(f"  v_xor_b32 v{t1}, v{t1}, v{t2}")
    e(f"  v_lshlrev_b32 v{t1}, 4, v{t1}")
    e(f"  v_lshl_add_u32 v{vWo}, v{t0}, 10, v{t1}")
    e(f"  v_lshlrev_b32 v{vOa}, 4, v{vLane}")
    e("  s_waitcnt lgkmcnt(0)")
    e(f"  s_cmp_eq_u32 s{sBr}, 0")
    e(f"  s_cselect_b32 s{sT0}, s{sWA}, s{sWB}")
    e(f"  s_cselect_b32 s{sT1}, s{sWA+1}, s{sWB+1}")
    srd(rW, sT0, 512 * 1024)
    srd(rOut, sOut, 2097152)
    srd(rWS, sWS, WS_BYTES)
    e(f"  s_and_b32 s{sT0}, s{sWid}, 3")
    e(f"  s_lshl_b32 s{sWo}, s{sT0}, 15              ; q*32 rows * 1024")
    e(f"  s_lshl_b32 s{sT1}, s{sNB}, 7")
    e(f"  s_add_u32 s{sWo}, s{sWo}, s{sT1}")
    e(f"  s_lshl_b32 s{sM}, s{sT0}, 12               ; q*32 rows * 128")
    e(f"  s_lshl_b32 s{sT1}, s{sBr}, 16")
    e(f"  s_add_u32 s{sM}, s{sM}, s{sT1}")
    e(f"  s_lshl_b32 s{sOo}, s{sBr}, 6")
    e(f"  s_add_u32 s{sOo}, s{sOo}, s{sQt}")
    e(f"  s_lshl_b32 s{sOo}, s{sOo}, 15")
    e(f"  s_lshl_b32 s{sT1}, s{sKH}, 14")
    e(f"  s_add_u32 s{sOo}, s{sOo}, s{sT1}")
    e(f"  s_add_u32 s{sOo}, s{sOo}, {OF_OFF}")
    def wdma(c, i):
        e(f"  s_add_u32 m0, s{sM}, {c*16384 + i*1024}")
        e(f"  s_add_u32 s{sT0}, s{sWo}, {c*131072 + i*8192}")
        e(f"  buffer_load_dwordx4 v{vWo}, {sr(rW,4)}, s{sT0} offen lds")
    def oload(k):
        e(f"  buffer_load_dwordx4 {vr(vOF+4*k,4)}, v{vOa}, {sr(rWS,4)}, s{sOo} offen offset:{(k%4)*1024}")
        if k % 4 == 3:
            e(f"  s_add_u32 s{sOo}, s{sOo}, 4096")
    for c in (0, 2):
        for i in range(4):
            wdma(c, i)
    for k in range(8):
        oload(k)
    tr_addr(vA0, vA1, vLane, t0, t1, t2, t3, True)
    e(f"  s_lshl_b32 s{sT0}, s{sBr}, 16")
    e(f"  s_lshl_b32 s{sT1}, s{sKH}, 15")
    e(f"  s_add_u32 s{sT0}, s{sT0}, s{sT1}")
    e(f"  v_add_u32 v{vA0}, s{sT0}, v{vA0}")
    e(f"  v_add_u32 v{vA1}, s{sT0}, v{vA1}")
    def wread(k):
        for ct in range(2):
            for u in range(2):
                e(f"  ds_read_b64_tr_b16 {vr(vWF+8*(k%8)+4*ct+u*2,2)}, v{vA0 if ct == 0 else vA1} offset:{k*2048+u*512}")
    if "o" in DBG:
        e("  s_memtime s[62:63]")
    e("  s_waitcnt vmcnt(8)")
    e("  s_barrier")
    if "o" in DBG:
        e("  s_memtime s[64:65]")
        e("  s_waitcnt lgkmcnt(0)")
    later = [("w", 1, i) for i in range(4)] + [("w", 3, i) for i in range(4)] + [("o", k) for k in range(8, 16)]
    for k in range(4):
        wread(k)
    nlater = 0
    for k in range(8):
        if k + 4 < 8:
            wread(k + 4)
        for _ in range(2):
            it = later[nlater]; nlater += 1
            if it[0] == "w": wdma(it[1], it[2])
            else: oload(it[1])
        rem = 4 * (min(k + 4, 7) - k)
        e(f"  s_waitcnt vmcnt({7-k+nlater}) lgkmcnt({min(rem,15)})")
        for ct in range(2):
            cc = "0" if k == 0 else vr(vAcc + 16 * ct, 16)
            e(f"  v_mfma_f32_32x32x16_bf16 {vr(vAcc+16*ct,16)}, {vr(vWF+8*k+4*ct,4)}, {vr(vOF+4*k,4)}, {cc}")
    e(f"  v_and_b32 v{t0}, 31, v{vLane}")
    e(f"  v_lshlrev_b32 v{t0}, 2, v{t0}")
    e(f"  s_lshl_b32 s{sT0}, s{sQt}, 7")
    e(f"  s_add_u32 s{sT0}, s{sT0}, {G_OFF}")
    e(f"  buffer_load_dword v{vG}, v{t0}, {sr(rWS,4)}, s{sT0} offen")
    e("  s_waitcnt vmcnt(9)")
    e("  s_barrier")
    for k in range(8, 12):
        wread(k)
    for k in range(8, 16):
        if k + 4 < 16:
            wread(k + 4)
        rem = 4 * (min(k + 4, 15) - k)
        e(f"  s_waitcnt vmcnt({15-k+1}) lgkmcnt({min(rem,15)})")
        for ct in range(2):
            e(f"  v_mfma_f32_32x32x16_bf16 {vr(vAcc+16*ct,16)}, {vr(vWF+8*(k%8)+4*ct,4)}, {vr(vOF+4*k,4)}, {vr(vAcc+16*ct,16)}")
    if "o" in DBG:
        e("  s_memtime s[66:67]")
        e("  s_waitcnt lgkmcnt(0)")
    e("  s_barrier")
    e(f"  s_lshl_b32 s{sT0}, s{sWid}, 13")
    e(f"  v_add_u32 v{t0}, s{sT0}, v{vOa}")
    e("  s_nop 8")
    for q in range(4):
        for hlf in range(2):
            e(f"  ds_write_b128 v{t0}, {vr(vAcc+8*q+4*hlf,4)} offset:{q*2048+hlf*1024}")
    e(f"  s_lshl_b32 s{sT0}, s{sTT}, 14")
    e(f"  s_lshl_b32 s{sT1}, s{sQd}, 11")
    e(f"  s_add_u32 s{sT0}, s{sT0}, s{sT1}")
    e(f"  v_add_u32 v{t0}, s{sT0}, v{vOa}")
    vOm = t1
    e("  s_waitcnt vmcnt(0) lgkmcnt(0)")
    e("  s_barrier")
    for p, woff in enumerate((0, 8192, 32768, 40960)):
        for hlf in range(2):
            e(f"  ds_read_b128 {vr(vEx+8*p+4*hlf,4)}, v{t0} offset:{woff+hlf*1024}")
    e(f"  v_sub_f32 v{vOm}, 1.0, v{vG}")
    e(f"  v_cvt_pk_bf16_f32 v{vOm}, v{vOm}, v{vOm}")
    e(f"  v_lshlrev_b32 v{vOm}, 16, v{vOm}")
    e(f"  s_mov_b32 s{sT1}, 0xffff0000")
    e(f"  v_and_b32 v{t0}, 31, v{vLane}")
    e(f"  v_lshlrev_b32 v{t0}, 10, v{t0}")
    e(f"  v_lshrrev_b32 v{t2}, 5, v{vLane}")
    e(f"  v_lshl_add_u32 v{t0}, v{t2}, 5, v{t0}")
    e(f"  s_lshl_b32 s{sT0}, s{sQt}, 15")
    e(f"  s_lshl_b32 s{sWo}, s{sNB}, 7")
    e(f"  s_add_u32 s{sT0}, s{sT0}, s{sWo}")
    e(f"  s_lshl_b32 s{sWo}, s{sBr}, 6")
    e(f"  s_add_u32 s{sT0}, s{sT0}, s{sWo}")
    e(f"  s_lshl_b32 s{sWo}, s{sKH}, 4")
    e(f"  s_add_u32 s{sT0}, s{sT0}, s{sWo}")
    def round_pair(x0, x1, tmp):
        e(f"  v_cvt_pk_bf16_f32 v{tmp}, v{x0}, v{x1}")
        e(f"  v_lshlrev_b32 v{x0}, 16, v{tmp}")
        e(f"  v_and_b32 v{x1}, s{sT1}, v{tmp}")
    e("  s_waitcnt lgkmcnt(0)")
    A0, A1, B0, B1 = vEx, vEx + 8, vEx + 16, vEx + 24
    for i in range(8):
        e(f"  v_add_f32 v{A0+i}, v{A0+i}, v{A1+i}")
        e(f"  v_add_f32 v{B0+i}, v{B0+i}, v{B1+i}")
    for i in range(0, 8, 2):
        round_pair(A0 + i, A0 + i + 1, t2)
        e(f"  v_mul_f32 v{A0+i}, v{vG}, v{A0+i}")
        e(f"  v_mul_f32 v{A0+i+1}, v{vG}, v{A0+i+1}")
        round_pair(A0 + i, A0 + i + 1, t2)
        round_pair(B0 + i, B0 + i + 1, t3)
        e(f"  v_mul_f32 v{B0+i}, v{vOm}, v{B0+i}")
        e(f"  v_mul_f32 v{B0+i+1}, v{vOm}, v{B0+i+1}")
        round_pair(B0 + i, B0 + i + 1, t3)
        e(f"  v_add_f32 v{A0+i}, v{A0+i}, v{B0+i}")
        e(f"  v_add_f32 v{A0+i+1}, v{A0+i+1}, v{B0+i+1}")
        e(f"  v_cvt_pk_bf16_f32 v{vOF+i//2}, v{A0+i}, v{A0+i+1}")
    e(f"  buffer_store_dwordx4 {vr(vOF,4)}, v{t0}, {sr(rOut,4)}, s{sT0} offen")
    if "o" in DBG:
        e("  s_memtime s[68:69]")
        e("  s_waitcnt vmcnt(0)")
        e("  s_memtime s[70:71]")
        e("  s_waitcnt lgkmcnt(0)")
        for i in range(1,6):
            e(f"  s_sub_u32 s{60+2*i}, s{60+2*i}, s60")
            e(f"  v_mov_b32 v{19+i}, s{60+2*i}")
        srd(84, 80, 256)
        e(f"  s_lshl_b32 s60, s{sWid}, 5")
        e("  v_mov_b32 v28, s60")
        e("  s_cmp_lg_u32 s2, 40")
        e("  s_cbranch_scc1 outp_done")
        e("  buffer_store_dwordx4 v[20:23], v28, s[84:87], 0 offen")
        e("  buffer_store_dwordx4 v[24:27], v28, s[84:87], 0 offen offset:16")
    e("outp_done:")
    e("  s_endpgm")
    return kernel_desc("outp_kernel", NV, 48 if "o" not in DBG else 96)

descs = []
descs.append(gen_proj())
descs.append(gen_attn())
descs.append(gen_outp())
if "r" in DBG:
    import re
    L4 = []
    kidx = -1
    for ln in L:
        st = ln.strip()
        if st.endswith("_kernel:"):
            kidx += 1
            B = 250
            L4.append(ln)
            L4.append("  s_memrealtime s[90:91]")
            L4.append("  s_load_dwordx2 s[92:93], s[0:1], 88")
            L4.append(f"  v_mov_b32 v{B}, v0")
            continue
        if st == "s_endpgm":
            L4.append("  s_waitcnt vmcnt(0) lgkmcnt(0)")
            L4.append("  s_memrealtime s[94:95]")
            L4.append("  s_mov_b32 s96, s92")
            L4.append("  s_and_b32 s97, s93, 0xffff")
            L4.append("  s_mov_b32 s98, 268435456")
            L4.append("  s_mov_b32 s99, 0x00020000")
            L4.append("  s_waitcnt lgkmcnt(0)")
            L4.append(f"  v_mov_b32 v{B+2}, s90")
            L4.append(f"  v_mov_b32 v{B+3}, s94")
            L4.append(f"  v_lshrrev_b32 v{B+1}, 6, v{B}")
            L4.append(f"  v_lshlrev_b32 v{B+1}, 3, v{B+1}")
            L4.append(f"  s_lshl_b32 s90, s2, 7")
            L4.append(f"  s_add_u32 s90, s90, {(20<<20) + kidx*65536}")
            L4.append("  s_mov_b64 exec, 1")
            L4.append(f"  buffer_store_dwordx2 v[{B+2}:{B+3}], v{B+1}, s[96:99], s90 offen")
        L4.append(ln)
    L[:] = L4
    def fix(d):
        n = 256
        d = re.sub(r"next_free_vgpr \d+", f"next_free_vgpr {n}", d)
        d = re.sub(r"accum_offset \d+", f"accum_offset {n}", d)
        return re.sub(r"next_free_sgpr \d+", "next_free_sgpr 102", d)
    descs[:] = [fix(d) for d in descs]
L3 = []
for ln in L:
    if ln.strip().startswith("buffer_store_dwordx4") and ("s[28:31]" in ln or "s[8:11]" in ln) and "v[4:7], v8" not in ln:
        ln = ln + " sc0 sc1"
    L3.append(ln)
L[:] = L3
STF = os.environ.get("STF", "")
if STF:
    L2 = []
    for ln in L:
        if ln.strip().startswith("buffer_store_dwordx4"):
            if STF == "skip":
                continue
            ln = ln + " " + STF
        L2.append(ln)
    L[:] = L2
if FUSED:
    LAUNCH = """; One launch, three phases (projections -> attention -> output projection + gate mix); the phases hand
; @launch grid=(256,1,1) block=(512,1,1) lds=147456"""
else:
    LAUNCH = """; Three launches: projections -> attention (both branches) -> output projection + gate mix.
; @launch kernel=proj_kernel grid=(256,1,1) block=(512,1,1) lds=147456
; @launch kernel=attn_kernel grid=(256,1,1) block=(512,1,1) lds=135232
; @launch kernel=outp_kernel grid=(256,1,1) block=(512,1,1) lds=131072"""
text = HEADER.replace("%LAUNCH%", LAUNCH) + "\n".join(L) + "\n" + '.section .rodata,"a"\n' + "".join(descs)
open(OUT, "w").write(text)
print("wrote", OUT, len(text), "bytes")
```

```python
import sys, struct, os
DBG = os.environ.get("DBG","")

OUT = sys.argv[1] if len(sys.argv) > 1 else "gated_mix__grouped_kv_mqa__mha_block__prompt.s"

def f32bits(x):
    return struct.unpack("<I", struct.pack("<f", x))[0]

QF_OFF = 0
KV_OFF = 4 << 20
OF_OFF = 12 << 20
G_OFF  = 16 << 20
WS_BYTES = 268435456
SCALE = 0.25 * 1.4426950408889634
THR = int(os.environ.get("THR", "64"))
HEAD = int(os.environ.get("HEAD", "40"))

FUSED = os.environ.get("FUSED", "0") == "1"
KNAME = "gated_mix__grouped_kv_mqa__mha_block__prompt_kernel"
L = []
def e(s=""):
    L.append(s)
def vr(b, n=1):
    return f"v{b}" if n == 1 else f"v[{b}:{b+n-1}]"
def sr(b, n=1):
    return f"s{b}" if n == 1 else f"s[{b}:{b+n-1}]"

def srd(dst, base, nbytes):
    e(f"  s_mov_b32 s{dst}, s{base}")
    e(f"  s_and_b32 s{dst+1}, s{base+1}, 0xffff")
    e(f"  s_mov_b32 s{dst+2}, {nbytes}")
    e(f"  s_mov_b32 s{dst+3}, 0x00020000")

HEADER = """; Kernarg layout for this problem (96 bytes, ptrs only, base s[0:1]):
%LAUNCH%
.amdgcn_target "amdgcn-amd-amdhsa--gfx950"
.text
"""

def kernel_start(name):
    if FUSED:
        if name != "proj_kernel":
            e(f"{name}_phase:")
            return
        name = KNAME
    e(f".globl {name}")
    e(".p2align 8")
    e(f".type {name},@function")
    e(f"{name}:")

def kernel_desc(name, nvgpr, nsgpr):
    acc = (nvgpr + 3) // 4 * 4
    return f""".p2align 6
.amdhsa_kernel {name}
  .amdhsa_next_free_vgpr {nvgpr}
  .amdhsa_next_free_sgpr {nsgpr}
  .amdhsa_accum_offset {acc}
  .amdhsa_group_segment_fixed_size 0
  .amdhsa_kernarg_size 96
  .amdhsa_user_sgpr_count 2
  .amdhsa_user_sgpr_kernarg_segment_ptr 1
  .amdhsa_system_sgpr_workgroup_id_x 1
.end_amdhsa_kernel
"""

def stamp(i):
    if "R" in DBG:
        e("  s_memrealtime s[80:81]")
        e("  s_waitcnt lgkmcnt(0)")
        e(f"  s_mov_b32 s{82+i}, s80")
def sync_arrive(tag, base, sidx):
    stamp(1 if tag == "sy1" else 4)
    e("  s_waitcnt vmcnt(0) lgkmcnt(0)")
    stamp(2 if tag == "sy1" else 5)
    e("  s_barrier")
    e("  s_load_dwordx2 s[70:71], s[0:1], 80")
    e("  v_lshrrev_b32 v2, 6, v0")
    e("  v_and_b32 v1, 63, v0")
    e("  v_readfirstlane_b32 s76, v2")
    e("  s_waitcnt lgkmcnt(0)")
    srd(72, 70, 256)
    e("  s_cmp_lg_u32 s76, 0")
    e(f"  s_cbranch_scc1 {tag}_arrived")
    e(f"  s_lshl_b32 s77, s{sidx}, 2")
    e(f"  s_add_u32 s77, s77, {base}")
    e("  v_mov_b32 v2, 0")
    e("  v_mov_b32 v3, 1")
    e("  s_mov_b64 exec, 1")
    e("  buffer_atomic_add v3, v2, s[72:75], s77 offen sc1")
    e("  s_mov_b64 exec, -1")
    e(f"{tag}_arrived:")
def sync_wait(tag, base):
    e("  s_cmp_lg_u32 s76, 0")
    e(f"  s_cbranch_scc1 {tag}_go")
    e("  v_lshlrev_b32 v2, 2, v1")
    e("  s_mov_b32 s77, 0")
    e("  s_mov_b64 exec, 0xffff")
    e(f"{tag}_poll:")
    e(f"  buffer_load_dword v3, v2, s[72:75], 0 offen offset:{base} sc1")
    e("  s_waitcnt vmcnt(0)")
    e("  v_cmp_ne_u32 vcc, 16, v3")
    e(f"  s_cbranch_vccz {tag}_done")
    e("  s_sleep 1")
    e("  s_add_u32 s77, s77, 1")
    e("  s_cmp_lt_u32 s77, 0x400000")
    e(f"  s_cbranch_scc1 {tag}_poll")
    e(f"{tag}_done:")
    e("  s_mov_b64 exec, -1")
    e(f"{tag}_go:")
    e("  s_barrier")
    stamp(3 if tag == "sy1" else 6)

def tr_addr(vA0, vA1, vlane, t0, t1, t2, t3, perm):
    e(f"  v_lshrrev_b32 v{t0}, 4, v{vlane}          ; g")
    e(f"  v_and_b32 v{t1}, 1, v{t0}                 ; g%2")
    e(f"  v_lshrrev_b32 v{t0}, 1, v{t0}             ; h")
    e(f"  v_bfe_u32 v{t2}, v{vlane}, 2, 2           ; r")
    e(f"  v_lshl_add_u32 v{t0}, v{t0}, 3, v{t2}     ; 8h + r")
    e(f"  v_lshlrev_b32 v{t0}, 7, v{t0}             ; *128")
    e(f"  v_and_b32 v{t3}, 3, v{vlane}              ; c")
    e(f"  v_lshl_add_u32 v{t1}, v{t1}, 2, v{t3}     ; mc=(g%2)*4+c")
    if perm:
        e(f"  v_and_b32 v{t3}, 1, v{t1}")
        e(f"  v_lshrrev_b32 v{t1}, 1, v{t1}")
        e(f"  v_lshl_add_u32 v{t1}, v{t3}, 2, v{t1}     ; nc = 4*(mc%2)+mc/2")
    e(f"  v_and_b32 v{t3}, 1, v{t1}")
    e(f"  v_lshl_add_u32 v{t0}, v{t3}, 3, v{t0}     ; + (nc%2)*8")
    e(f"  v_lshrrev_b32 v{t1}, 1, v{t1}")
    e(f"  v_lshrrev_b32 v{t2}, 1, v{t2}             ; (r>>1)&1")
    e(f"  v_lshlrev_b32 v{t2}, 2, v{t2}")
    e(f"  v_xor_b32 v{t1}, v{t1}, v{t2}")
    e(f"  v_lshl_add_u32 v{vA0}, v{t1}, 4, v{t0}")
    e(f"  v_xor_b32 v{vA1}, 64, v{vA0}")

def gen_proj():
    kernel_start("proj_kernel")
    STG = 36864
    sX, sWQ, sWK, sWV, sWQKV, sWS = 4, 6, 8, 10, 12, 16
    rX, rW, rWS, rS = 20, 24, 28, 32
    sNB, sTB, sT0, sT1, sT2, sPitch, sCol, sWid = 40, 41, 42, 43, 44, 45, 46, 47
    sEx = 48
    sOff, sTT, sCG, sSpec, sXo, sWo, sM, sQt = 50, 51, 52, 53, 54, 55, 56, 57
    sC, sSo, sMS = 58, 59, 60
    sSMask = 36
    e("  s_cmp_ge_u32 s2, 256")
    e("  s_cbranch_scc1 proj_done" if not FUSED else "  s_cbranch_scc1 outp_done")
    stamp(0)
    e("  s_load_dwordx4 s[4:7], s[0:1], 0")
    e("  s_load_dwordx4 s[8:11], s[0:1], 16")
    e("  s_load_dwordx2 s[12:13], s[0:1], 48")
    e("  s_load_dwordx2 s[16:17], s[0:1], 88")
    if "p" in DBG:
        e("  s_load_dwordx2 s[80:81], s[0:1], 80")
        e("  s_memtime s[64:65]")
    e(f"  s_and_b32 s{sT0}, s2, 3")
    e(f"  s_lshl_b32 s{sT0}, s{sT0}, 2")
    e(f"  s_bfe_u32 s{sT1}, s2, 0x20003")
    e(f"  s_add_u32 s{sTB}, s{sT0}, s{sT1}")
    e(f"  s_bfe_u32 s{sT0}, s2, 0x10002")
    e(f"  s_lshl_b32 s{sT0}, s{sT0}, 3")
    e(f"  s_lshr_b32 s{sT1}, s2, 5")
    e(f"  s_add_u32 s{sNB}, s{sT0}, s{sT1}")
    vLane = 1; vXo0 = 2; vXo1 = 3; vWo = 4; vSt = 5; vSo = 6
    t0, t1, t2, t3 = 8, 9, 10, 11
    vXA = 12
    vWA = 20
    vSA = 24
    vXF = 28
    vWF = 44
    vSF = 76
    vAcc = 156
    vOut = 28
    NV = 204
    e(f"  v_and_b32 v{vLane}, 63, v0")
    e(f"  v_lshrrev_b32 v{t0}, 6, v0")
    e("  s_nop 0")
    e(f"  v_readfirstlane_b32 s{sWid}, v{t0}")
    e(f"  s_sub_u32 s{sSpec}, s{sNB}, s{sTB}")
    e(f"  s_and_b32 s{sSpec}, s{sSpec}, 15")
    e(f"  s_and_b32 s{sTT}, s{sWid}, 3")
    e(f"  s_lshr_b32 s{sCG}, s{sWid}, 2")
    e(f"  s_lshl_b32 s{sQt}, s{sTB}, 2")
    e(f"  s_add_u32 s{sQt}, s{sQt}, s{sTT}")
    e(f"  v_lshrrev_b32 v{t0}, 3, v{vLane}          ; l/8")
    e(f"  v_lshrrev_b32 v{t1}, 4, v{vLane}          ; l/16")
    e(f"  v_and_b32 v{t2}, 7, v{vLane}")
    if "z" not in DBG:
        e(f"  v_xor_b32 v{t2}, v{t2}, v{t1}")
    e(f"  v_lshlrev_b32 v{t2}, 4, v{t2}")
    e(f"  v_lshl_add_u32 v{vXo0}, v{t0}, 10, v{t2}")
    e(f"  v_xor_b32 v{vXo1}, 64, v{vXo0}")
    e(f"  v_add_u32 v{vXo1}, 8192, v{vXo1}")
    e(f"  v_lshrrev_b32 v{t0}, 2, v{vLane}")
    e(f"  v_and_b32 v{t2}, 1, v{vLane}")
    e(f"  v_lshlrev_b32 v{t2}, 4, v{t2}")
    e(f"  v_lshl_add_u32 v{vSo}, v{t0}, 5, v{t2}")
    e(f"  v_and_b32 v{t2}, 15, v{vLane}")
    e(f"  v_lshlrev_b32 v{t3}, 2, v{t1}")
    if "z" not in DBG:
        e(f"  v_xor_b32 v{t2}, v{t2}, v{t3}")
    e(f"  v_lshlrev_b32 v{t2}, 4, v{t2}")
    e("  s_waitcnt lgkmcnt(0)")
    if "p" in DBG:
        e("  s_memtime s[78:79]")
        e("  s_waitcnt lgkmcnt(0)")
    srd(rX, sX, 2097152)
    srd(rWS, sWS, WS_BYTES)
    if "S" not in DBG:
        e(f"  s_lshl_b32 s{sT0}, s2, 14")
        e(f"  s_lshl_b32 s{sT1}, s{sWid}, 11")
        e(f"  s_add_u32 s{sT0}, s{sT0}, s{sT1}")
        e(f"  s_cmp_lt_u32 s2, 128")
        e(f"  s_cselect_b32 s62, s{sX}, s{sWQ}")
        e(f"  s_cselect_b32 s63, s{sX+1}, s{sWQ+1}")
        e(f"  s_cselect_b32 s{sT1}, 0, {128*16384}")
        e(f"  s_cmp_lt_u32 s2, 160")
        e(f"  s_cselect_b32 s62, s62, s{sWQKV}")
        e(f"  s_cselect_b32 s63, s63, s{sWQKV+1}")
        e(f"  s_cselect_b32 s{sT1}, s{sT1}, {160*16384}")
        e(f"  s_sub_u32 s{sT0}, s{sT0}, s{sT1}")
        srd(rS, 62, 524288)
        e(f"  s_cmp_lt_u32 s2, 128")
        e(f"  s_cselect_b32 s{rS+2}, 2097152, s{rS+2}")
        e(f"  s_cmp_lt_u32 s2, 160")
        e(f"  s_cselect_b32 s{rS+2}, s{rS+2}, {512*3072}")
        e(f"  v_lshlrev_b32 v{t3}, 4, v{vLane}")
        e(f"  buffer_load_dwordx4 {vr(vAcc,4)}, v{t3}, {sr(rS,4)}, s{sT0} offen")
        e(f"  buffer_load_dwordx4 {vr(vAcc+4,4)}, v{t3}, {sr(rS,4)}, s{sT0} offen offset:1024")
    e(f"  s_cmp_lt_u32 s{sNB}, 4")
    e("  s_cbranch_scc1 proj_wq")
    srd(rW, sWQKV, 512 * 3072)
    e(f"  s_sub_u32 s{sCol}, s{sNB}, 4")
    e(f"  s_lshl_b32 s{sCol}, s{sCol}, 8")
    e(f"  s_mov_b32 s{sPitch}, 3072")
    e("  s_branch proj_wcommon")
    e("proj_wq:")
    srd(rW, sWQ, 512 * 1024)
    e(f"  s_lshl_b32 s{sCol}, s{sNB}, 8")
    e(f"  s_mov_b32 s{sPitch}, 1024")
    e("proj_wcommon:")
    e(f"  v_mul_lo_u32 v{vWo}, v{t1}, s{sPitch}")
    e(f"  v_add_u32 v{vWo}, v{vWo}, v{t2}")
    e(f"  s_lshl_b32 s{sXo}, s{sTB}, 17")
    e(f"  s_lshl_b32 s{sT0}, s{sWid}, 14")
    e(f"  s_add_u32 s{sXo}, s{sXo}, s{sT0}")
    e(f"  s_lshl_b32 s{sT0}, s{sWid}, 3")
    e(f"  s_mul_i32 s{sWo}, s{sT0}, s{sPitch}")
    e(f"  s_add_u32 s{sWo}, s{sWo}, s{sCol}")
    e(f"  s_lshl_b32 s{sM}, s{sWid}, 11")
    e(f"  s_lshl_b32 s{sT2}, s{sPitch}, 2            ; 4*pitch")
    e(f"  s_lshl_b32 s{sPitch}, s{sPitch}, 6")
    e(f"  s_mov_b32 s{sC}, 0")
    e(f"  s_bitcmp1_b32 s{sWid}, 0")
    e(f"  s_cselect_b32 s{sT0}, s{sWV}, s{sWK}")
    e(f"  s_cselect_b32 s{sT1}, s{sWV+1}, s{sWK+1}")
    e(f"  s_mov_b32 s{sSMask}, 0x33333333")
    e(f"  s_cselect_b32 s{sSMask}, 0xcccccccc, s{sSMask}")
    e(f"  s_mov_b32 s{sSMask+1}, s{sSMask}")
    srd(rS, sT0, 512 * 32)
    e(f"  s_lshr_b32 s{sT0}, s{sWid}, 1")
    e(f"  s_lshl_b32 s{sSo}, s{sT0}, 9               ; 16 rows * 32B")
    e(f"  s_lshl_b32 s{sMS}, s{sT0}, 10")

    def dma_piece(c, spec, i):
        st = (c % 4) * STG
        if i == 0:
            e(f"  s_lshl_b32 s{sT0}, s{sC}, 7")
            e(f"  s_add_u32 s{sT0}, s{sT0}, s{sXo}")
            e(f"  s_add_u32 m0, s{sM}, {st}")
            e(f"  s_mul_i32 s{sT1}, s{sC}, s{sPitch}")
            e(f"  buffer_load_dwordx4 v{vXo0}, {sr(rX,4)}, s{sT0} offen lds")
        elif i == 1:
            e(f"  s_add_u32 m0, s{sM}, {st+1024}")
            e(f"  s_add_u32 s{sT1}, s{sT1}, s{sWo}")
            e(f"  buffer_load_dwordx4 v{vXo1}, {sr(rX,4)}, s{sT0} offen lds")
        elif i == 2:
            e(f"  s_add_u32 m0, s{sM}, {st+16384}")
            e(f"  s_add_u32 s{sT0}, s{sT1}, s{sT2}")
            e(f"  buffer_load_dwordx4 v{vWo}, {sr(rW,4)}, s{sT1} offen lds")
        else:
            e(f"  s_add_u32 m0, s{sM}, {st+16384+1024}")
            e(f"  s_lshl_b32 s{sT1}, s{sC}, 11")
            e(f"  buffer_load_dwordx4 v{vWo}, {sr(rW,4)}, s{sT0} offen lds")
            if spec:
                e(f"  s_add_u32 m0, s{sMS}, {st+32768}")
                e(f"  s_add_u32 s{sT1}, s{sT1}, s{sSo}")
                e(f"  s_mov_b64 exec, {sr(sSMask,2)}")
                e(f"  buffer_load_dwordx4 v{vSo}, {sr(rS,4)}, s{sT1} offen lds")
                e("  s_mov_b64 exec, -1")
            e(f"  s_add_u32 s{sC}, s{sC}, 1")
            e(f"  s_and_b32 s{sC}, s{sC}, 7")
    def dma(c, spec):
        for i in range(4):
            dma_piece(c, spec, i)

    def addr_setup():
        e(f"  v_and_b32 v{t0}, 31, v{vLane}")
        e(f"  v_lshrrev_b32 v{t1}, 5, v{vLane}          ; h")
        e(f"  v_bfe_u32 v{t2}, v{vLane}, 1, 3           ; (row>>1)&7")
        e(f"  v_xor_b32 v{t1}, v{t1}, v{t2}")
        e(f"  v_lshlrev_b32 v{t1}, 4, v{t1}")
        e(f"  v_lshl_add_u32 v{t0}, v{t0}, 7, v{t1}")
        e(f"  s_lshl_b32 s{sOff}, s{sTT}, 12")
        e(f"  v_add_u32 v{t0}, s{sOff}, v{t0}")
        for sp in range(4):
            e(f"  v_xor_b32 v{vXA+sp}, {sp*32}, v{t0}")
            e(f"  v_add_u32 v{vXA+4+sp}, {2*STG}, v{vXA+sp}")
        e(f"  v_lshrrev_b32 v{t0}, 5, v{vLane}          ; h")
        e(f"  v_bfe_u32 v{t1}, v{vLane}, 2, 2           ; r")
        e(f"  v_lshl_add_u32 v{t0}, v{t0}, 3, v{t1}     ; 8h+r")
        e(f"  v_bfe_u32 v{t2}, v{vLane}, 4, 1           ; g%2")
        e(f"  v_and_b32 v{t3}, 3, v{vLane}              ; c")
        e(f"  v_lshl_add_u32 v{t2}, v{t2}, 2, v{t3}     ; nc")
        e(f"  v_lshlrev_b32 v{t2}, 3, v{t2}             ; nc*8")
        e(f"  v_lshl_add_u32 v{vSA}, v{t0}, 6, v{t2}")
        e(f"  v_add_u32 v{vSA}, 32768, v{vSA}")
        e(f"  v_add_u32 v{vSA+1}, {2*STG}, v{vSA}")
        e(f"  v_lshl_add_u32 v{t0}, v{t0}, 8, v{t2}     ; k*256 + nc*8")
        e(f"  s_lshl_b32 s{sOff}, s{sCG}, 1")
        e(f"  v_xor_b32 v{t1}, s{sOff}, v{t1}           ; (2cg) ^ r")
        e(f"  v_lshl_add_u32 v{t0}, v{t1}, 6, v{t0}")
        e(f"  v_add_u32 v{vWA}, 16384, v{t0}")
        e(f"  v_xor_b32 v{vWA+1}, 64, v{vWA}")
        e(f"  v_add_u32 v{vWA+2}, {2*STG}, v{vWA}")
        e(f"  v_add_u32 v{vWA+3}, {2*STG}, v{vWA+1}")

    def reads(c, sp, spec):
        st = c % 4
        so = (st % 2) * STG
        hi = st // 2
        rs = 64 * (c % 2)
        e(f"  ds_read_b128 {vr(vXF+rs+4*sp,4)}, v{vXA+sp+4*hi} offset:{so}")
        for ct in range(2):
            for u in range(2):
                e(f"  ds_read_b64_tr_b16 {vr(vWF+rs+sp*8+ct*4+u*2,2)}, v{vWA+2*hi+ct} offset:{so+(16*sp+4*u)*256}")
        if spec:
            for u in range(2):
                e(f"  ds_read_b64_tr_b16 {vr(vSF+rs+sp*4+u*2,2)}, v{vSA+hi} offset:{so+(16*sp+4*u)*64}")

    def mainloop(orient, spec, dspec):
        n = 5 if dspec else 4
        for c in range(2):
            dma(c, dspec)
        addr_setup()
        e(f"  s_waitcnt vmcnt({n})")
        e("  s_barrier")
        if "p" in DBG:
            e(f"  s_memtime s[66:67]")
            e("  s_waitcnt lgkmcnt(0)")
        for sp in range(4):
            reads(0, sp, spec)
        for c in range(2, 4):
            dma(c, dspec)
        for c in range(8):
            if c < 7:
                ng = min(c + 3, 7) - (c + 1)
                e(f"  s_waitcnt vmcnt({ng*n}) lgkmcnt(0)")
                e("  s_barrier")
                if "p" in DBG and c in (0,3,6):
                    e(f"  s_memtime s[{68+2*(0,3,6).index(c)}:{69+2*(0,3,6).index(c)}]")
                    e("  s_waitcnt lgkmcnt(0)")
            else:
                e("  s_waitcnt lgkmcnt(0)")
            rs = 64 * (c % 2)
            for sp in range(4):
                if c < 7:
                    reads(c + 1, sp, spec)
                xf = vXF + rs + 4 * sp
                first = (c == 0 and sp == 0)
                for ct in range(2):
                    wf = vWF + rs + sp * 8 + ct * 4
                    acc = vAcc + 16 * ct
                    cc = "0" if first else vr(acc, 16)
                    if orient == 'T':
                        e(f"  v_mfma_f32_32x32x16_bf16 {vr(acc,16)}, {vr(wf,4)}, {vr(xf,4)}, {cc}")
                    else:
                        e(f"  v_mfma_f32_32x32x16_bf16 {vr(acc,16)}, {vr(xf,4)}, {vr(wf,4)}, {cc}")
                if spec:
                    acc = vAcc + 32
                    sf = vSF + rs + 4 * sp
                    cc = "0" if first else vr(acc, 16)
                    if spec == 'T':
                        e(f"  v_mfma_f32_32x32x16_bf16 {vr(acc,16)}, {vr(sf,4)}, {vr(xf,4)}, {cc}")
                    else:
                        e(f"  v_mfma_f32_32x32x16_bf16 {vr(acc,16)}, {vr(xf,4)}, {vr(sf,4)}, {cc}")
                if c + 4 <= 7:
                    dma_piece(c + 4, dspec, sp)
        e("  s_nop 15")
        if "p" in DBG:
            e("  s_memtime s[74:75]")
            e("  s_waitcnt lgkmcnt(0)")

    def v_store_addr():
        e(f"  v_and_b32 v{t0}, 3, v{vLane}")
        e(f"  v_and_b32 v{t1}, 4, v{vLane}")
        e(f"  v_lshl_or_b32 v{t0}, v{t1}, 1, v{t0}")
        e(f"  v_and_b32 v{t1}, 8, v{vLane}")
        e(f"  v_lshrrev_b32 v{t1}, 1, v{t1}")
        e(f"  v_or_b32 v{t0}, v{t0}, v{t1}              ; m")
        e(f"  v_lshlrev_b32 v{t0}, 4, v{t0}")
        e(f"  v_lshrrev_b32 v{t1}, 5, v{vLane}          ; half")
        e(f"  v_lshl_add_u32 v{t0}, v{t1}, 9, v{t0}")
        e(f"  v_bfe_u32 v{t1}, v{vLane}, 4, 1           ; subhead")
        e(f"  v_lshl_add_u32 v{vSt}, v{t1}, 17, v{t0}")

    def spec_epilogue(kind):
        A = vAcc + 32
        e(f"  s_lshl_b32 s{sOff}, s{sQt}, 11")
        if kind == 'T':
            e(f"  s_add_u32 s{sOff}, s{sOff}, {KV_OFF + 32*131072}")
            e(f"  v_lshlrev_b32 v{t2}, 4, v{vLane}")
            for j in range(4):
                e(f"  v_cvt_pk_bf16_f32 v{vOut+16+j}, v{A+2*j}, v{A+2*j+1}")
            e(f"  buffer_store_dwordx4 {vr(vOut+16,4)}, v{t2}, {sr(rWS,4)}, s{sOff} offen")
        else:
            e(f"  s_add_u32 s{sOff}, s{sOff}, {KV_OFF + 31*131072}")
            v_store_addr()
            for j in range(8):
                e(f"  v_cvt_pk_bf16_f32 v{vOut+16+j}, v{A+2*j}, v{A+2*j+1}")
            e(f"  v_and_b32 v{t0}, 16, v{vLane}")
            e(f"  v_cmp_ne_u32 vcc, 0, v{t0}")
            e(f"  s_and_saveexec_b64 {sr(sEx,2)}, vcc")
            for j in range(2):
                e(f"  buffer_store_dwordx4 {vr(vOut+16+j*4,4)}, v{vSt}, {sr(rWS,4)}, s{sOff} offen offset:{1024+j*256}")
            e(f"  s_mov_b64 exec, {sr(sEx,2)}")

    def variants(o):
        e(f"  s_cmp_ge_u32 s{sSpec}, 8")
        e(f"  s_cbranch_scc1 proj_{o}_plain")
        e(f"  s_cmp_lg_u32 s{sSpec}, s{sWid}")
        e(f"  s_cbranch_scc1 proj_{o}_none")
        e(f"  s_cmp_eq_u32 s{sCG}, 0")
        e(f"  s_cbranch_scc1 proj_{o}_T")
        e(f"proj_{o}_N:")
        mainloop(o, 'N', True)
        spec_epilogue('N')
        e(f"  s_branch proj_{o}_epi")
        e(f"proj_{o}_T:")
        mainloop(o, 'T', True)
        spec_epilogue('T')
        e(f"  s_branch proj_{o}_epi")
        e(f"proj_{o}_none:")
        mainloop(o, None, True)
        e(f"  s_branch proj_{o}_epi")
        e(f"proj_{o}_plain:")
        mainloop(o, None, False)
    e(f"  s_cmp_ge_u32 s{sNB}, 12")
    e("  s_cbranch_scc1 proj_v_sel")
    variants('T')
    e("proj_T_epi:")
    e(f"  s_mov_b32 s{sT1}, {f32bits(SCALE)}")
    e(f"  s_cmp_lt_u32 s{sNB}, 8")
    e(f"  s_cselect_b32 s{sT1}, s{sT1}, 1.0")
    e(f"  s_lshl_b32 s{sT2}, s{sNB}, 3")
    e(f"  s_lshl_b32 s{sT0}, s{sCG}, 2")
    e(f"  s_add_u32 s{sT2}, s{sT2}, s{sT0}")
    e(f"  s_lshl_b32 s{sT2}, s{sT2}, 6")
    e(f"  s_add_u32 s{sT2}, s{sT2}, s{sQt}")
    e(f"  s_lshl_b32 s{sOff}, s{sT2}, 10             ; Q dest")
    e(f"  s_mov_b32 s{sCol}, 65536")
    e(f"  s_cmp_lt_u32 s{sNB}, 8")
    e(f"  s_cbranch_scc1 proj_qk_store")
    e(f"  s_sub_u32 s{sT2}, s{sT2}, {64*64}")
    e(f"  s_lshl_b32 s{sOff}, s{sT2}, 11")
    e(f"  s_add_u32 s{sOff}, s{sOff}, {KV_OFF}")
    e(f"  s_mov_b32 s{sCol}, 131072")
    e("proj_qk_store:")
    e(f"  v_lshlrev_b32 v{vSt}, 4, v{vLane}")
    for hh in range(4):
        for i in range(8):
            e(f"  v_mul_f32 v{vAcc+hh*8+i}, s{sT1}, v{vAcc+hh*8+i}")
        for j in range(4):
            e(f"  v_cvt_pk_bf16_f32 v{vOut+hh*4+j}, v{vAcc+hh*8+2*j}, v{vAcc+hh*8+2*j+1}")
        e(f"  buffer_store_dwordx4 {vr(vOut+hh*4,4)}, v{vSt}, {sr(rWS,4)}, s{sOff} offen")
        if hh < 3:
            e(f"  s_add_u32 s{sOff}, s{sOff}, s{sCol}")
    if "p" in DBG:
        e("  s_waitcnt vmcnt(0)")
        e("  s_memtime s[76:77]")
        e("  s_waitcnt lgkmcnt(0)")
        for i in range(7):
            e(f"  s_sub_u32 s{66+2*i}, s{66+2*i}, s64")
            e(f"  v_mov_b32 v{4+i}, s{66+2*i}")
        e("  v_mov_b32 v11, 0")
        srd(84, 80, 256)
        e(f"  s_lshl_b32 s64, s{sWid}, 5")
        e("  v_mov_b32 v12, s64")
        e("  s_cmp_lg_u32 s2, 40")
        e("  s_cbranch_scc1 proj_done")
        e("  buffer_store_dwordx4 v[4:7], v12, s[84:87], 0 offen")
        e("  buffer_store_dwordx4 v[8:11], v12, s[84:87], 0 offen offset:16")
    e("  s_endpgm" if not FUSED else "  s_branch proj_fin")
    e("proj_v_sel:")
    variants('N')
    e("proj_N_epi:")
    v_store_addr()
    e(f"  s_sub_u32 s{sT2}, s{sNB}, 12")
    e(f"  s_lshl_b32 s{sT2}, s{sT2}, 3")
    e(f"  s_lshl_b32 s{sT0}, s{sCG}, 2")
    e(f"  s_add_u32 s{sT2}, s{sT2}, s{sT0}")
    e(f"  s_lshl_b32 s{sT2}, s{sT2}, 6")
    e(f"  s_add_u32 s{sT2}, s{sT2}, s{sQt}")
    e(f"  s_lshl_b32 s{sOff}, s{sT2}, 11")
    e(f"  s_add_u32 s{sOff}, s{sOff}, {KV_OFF+1024}")
    for ct in range(2):
        for j in range(8):
            e(f"  v_cvt_pk_bf16_f32 v{vOut+ct*8+j}, v{vAcc+ct*16+2*j}, v{vAcc+ct*16+2*j+1}")
        for j in range(2):
            e(f"  buffer_store_dwordx4 {vr(vOut+ct*8+j*4,4)}, v{vSt}, {sr(rWS,4)}, s{sOff} offen offset:{j*256}")
        if ct == 0:
            e(f"  s_add_u32 s{sOff}, s{sOff}, {2*131072}")
    if FUSED:
        e("proj_fin:")
        sync_arrive("sy1", 0, sNB)
        sync_wait("sy1", 0)
        return ""
    e("proj_done:")
    e("  s_endpgm")
    return kernel_desc("proj_kernel", NV, 64 if "p" not in DBG else 96)

def gen_attn():
    kernel_start("attn_kernel")
    sWS = 4; rWS = 8
    sWid, sHB, sBr, sHead, sQt, sT0, sT1, sIt, sThr, sInf, sFlag, sOff = 12, 13, 14, 15, 16, 17, 18, 19, 20, 21, 22, 23
    sMask = 24
    vLane, vAddr, vG, t0, t1, t2, t3 = 1, 2, 3, 4, 5, 6, 7
    vK = 8
    vV = 16
    vQ = [32, 36]
    vP = [40, 56]
    vO = [72, 88]
    vC = [104, 120]
    vS = [136, 168]
    vX = 200
    vPr = 216
    sPr = 46
    NV = 220
    if not FUSED:
        e("  s_cmp_ge_u32 s2, 256")
        e("  s_cbranch_scc1 attn_done")
    e("  s_load_dwordx2 s[4:5], s[0:1], 88")
    e("  s_load_dwordx2 s[6:7], s[0:1], 0")
    e("  s_load_dwordx2 s[28:29], s[0:1], 64")
    e("  s_load_dwordx2 s[56:57], s[0:1], 32")
    e("  s_load_dwordx2 s[58:59], s[0:1], 56")
    if "t" in DBG:
        e("  s_load_dwordx2 s[40:41], s[0:1], 80")
        e("  s_memtime s[32:33]")
        e("  s_memrealtime s[34:35]")
    e(f"  v_and_b32 v{vLane}, 63, v0")
    e(f"  v_lshrrev_b32 v{t0}, 6, v0")
    e("  s_nop 0")
    e(f"  v_readfirstlane_b32 s{sWid}, v{t0}")
    e(f"  s_and_b32 s{sT0}, s2, 7")
    e(f"  s_lshr_b32 s{sT1}, s2, 3")
    e(f"  s_lshr_b32 s{sHB}, s{sT1}, 2")
    e(f"  s_lshl_b32 s{sHB}, s{sHB}, 3")
    e(f"  s_add_u32 s{sHB}, s{sHB}, s{sT0}")
    e(f"  s_and_b32 s{sT1}, s{sT1}, 3")
    e(f"  s_lshl_b32 s{sQt}, s{sT1}, 4")
    e(f"  s_lshl_b32 s{sT0}, s{sWid}, 1")
    e(f"  s_add_u32 s{sQt}, s{sQt}, s{sT0}")
    e(f"  s_lshr_b32 s{sBr}, s{sHB}, 5")
    e(f"  s_and_b32 s{sHead}, s{sHB}, 31")
    e("  s_mov_b32 s24, 0x0000ffff")
    e("  s_mov_b32 s25, 0x0000ffff")
    e(f"  s_mov_b32 s{sThr}, {hex(f32bits(2.0**THR))}")
    e(f"  s_mov_b32 s{sInf}, 0x7f800000")
    e(f"  s_mov_b32 s{sFlag}, 0")
    e(f"  v_lshlrev_b32 v{vAddr}, 4, v{vLane}        ; lane*16")
    e(f"  s_cmp_eq_u32 s{sBr}, 1")
    e(f"  s_cselect_b32 s{sT0}, s{sHead}, 32")
    e(f"  s_lshl_b32 s{sT0}, s{sT0}, 17")
    e(f"  s_add_u32 s{sT0}, s{sT0}, {KV_OFF}")
    e(f"  s_lshl_b32 s{sT1}, s{sWid}, 11")
    e(f"  s_add_u32 s{sT0}, s{sT0}, s{sT1}")
    e(f"  s_lshl_b32 s{sOff}, s{sHB}, 6")
    e(f"  s_add_u32 s{sOff}, s{sOff}, s{sQt}")
    e(f"  s_lshl_b32 s{sOff}, s{sOff}, 10")
    e(f"  s_mov_b32 m0, s{sT1}")
    e("  s_waitcnt lgkmcnt(0)")
    srd(rWS, sWS, WS_BYTES)
    e(f"  buffer_load_dwordx4 v{vAddr}, {sr(rWS,4)}, s{sT0} offen lds")
    e(f"  buffer_load_dwordx4 v{vAddr}, {sr(rWS,4)}, s{sT0} offen offset:1024 lds")
    e(f"  buffer_load_dwordx4 {vr(vQ[0],4)}, v{vAddr}, {sr(rWS,4)}, s{sOff} offen")
    e(f"  buffer_load_dwordx4 {vr(vQ[1],4)}, v{vAddr}, {sr(rWS,4)}, s{sOff} offen offset:1024")
    rXg, rGw = 48, 52
    srd(rXg, 6, 2097152)
    srd(rGw, 28, 1024)
    e("  s_barrier")
    def kvdma(c):
        e(f"  s_add_u32 s{sT0}, s{sT0}, 16384")
        e(f"  s_add_u32 m0, s{sT1}, {c*16384}")
        e("  s_nop 0")
        e(f"  buffer_load_dwordx4 v{vAddr}, {sr(rWS,4)}, s{sT0} offen lds")
        e(f"  buffer_load_dwordx4 v{vAddr}, {sr(rWS,4)}, s{sT0} offen offset:1024 lds")
    kvdma(1)
    e(f"  v_and_b32 v{t0}, 31, v{vLane}")
    e(f"  v_and_b32 v{t1}, 27, v{t0}")
    e(f"  v_mov_b32 v{t2}, 0x3f803f80")
    e(f"  v_cmp_eq_u32 vcc, 16, v{t1}")
    e("  s_nop 1")
    e(f"  v_cndmask_b32 v{t2}, 0, v{t2}, vcc")
    for i in range(16):
        e(f"  v_mov_b32 v{vV+i}, v{t2}")
    for z in range(2):
        for i in range(16):
            e(f"  v_mov_b32 v{vO[z]+i}, 0")
        for i in range(8):
            e(f"  v_mov_b32 v{vP[z]+8+i}, 0")
    e(f"  s_lshl_b32 s{sPr}, s{sWid}, 2")
    e(f"  s_add_u32 s{sPr}, s{sPr}, 135168")
    e(f"  v_mov_b32 v{vPr}, s{sPr}")
    e(f"  v_xor_b32 v{vPr+1}, 16, v{vPr}")
    e(f"  v_mov_b32 v{vPr+2}, 0")
    e(f"  ds_write_b32 v{vPr}, v{vPr+2}")
    e("  s_waitcnt vmcnt(2) lgkmcnt(0)")
    e("  s_barrier")

    def kread(buf, off):
        e(f"  ds_read_b128 {vr(vK+4*buf,4)}, v{vAddr} offset:{off}")
    def vread(buf, off):
        e(f"  s_mov_b64 exec, {sr(sMask,2)}")
        e(f"  ds_read_b128 {vr(vV+8*buf,4)}, v{vAddr} offset:{off+1024}")
        e(f"  ds_read_b128 {vr(vV+8*buf+4,4)}, v{vAddr} offset:{off+1024+256}")
        e("  s_mov_b64 exec, -1")
    def rowmax(src, dst, tmp):
        e(f"  v_max3_f32 v{dst}, v{src}, v{src+1}, v{src+2}")
        for i in range(3, 15, 2):
            e(f"  v_max3_f32 v{dst}, v{dst}, v{src+i}, v{src+i+1}")
        e(f"  v_max_f32 v{dst}, v{dst}, v{src+15}")
        e(f"  v_mov_b32 v{tmp}, v{dst}")
        e("  s_nop 1")
        e(f"  v_permlane32_swap_b32 v{dst}, v{tmp}")
        e(f"  v_max_f32 v{dst}, v{dst}, v{tmp}")

    kread(0, 0)
    kread(1, 2048)
    e("  s_waitcnt lgkmcnt(0)")
    for z in range(2):
        e(f"  v_mfma_f32_32x32x16_bf16 {vr(vS[z],16)}, {vr(vK,4)}, {vr(vQ[z],4)}, 0")
    kvdma(2)
    for z in range(2):
        rowmax(vS[z], t0, t1)
        e(f"  v_sub_f32 v{t0}, {hex(f32bits(-float(HEAD)))}, v{t0}")
        for i in range(16):
            e(f"  v_mov_b32 v{vC[z]+i}, v{t0}")
        e("  s_nop 1")
        e(f"  v_mfma_f32_32x32x16_bf16 {vr(vS[z],16)}, {vr(vK,4)}, {vr(vQ[z],4)}, {vr(vC[z],16)}")
    e(f"  s_mov_b32 s{sIt}, 0")
    if "t" in DBG:
        e("  s_memtime s[44:45]")
        e("  s_waitcnt lgkmcnt(0)")
    e(f"  s_cmp_ge_u32 s{sWid}, 4")
    e(f"  s_cbranch_scc1 attn_loop1")
    for j in range(2):
        e(".p2align 6")
        e(f"attn_loop{j}:")
        for u in range(8):
            b = u % 2
            Vp = vV + 8 * (1 - b)
            if u in (0, 1, 2, 3, 4):
                e(f"  s_cmp_lg_u32 s{sIt}, 0")
                e(f"  s_cbranch_scc1 attn_nodma{j}_{u}")
                kvdma(3 + u)
                e(f"attn_nodma{j}_{u}:")
            if u == 5:
                e(f"  s_cmp_lg_u32 s{sIt}, 0")
                e(f"  s_cbranch_scc1 attn_nobarA{j}")
                e("  s_waitcnt vmcnt(10)")
                e("  s_barrier")
                e(f"attn_nobarA{j}:")
            if u == 6:
                e(f"  s_cmp_lg_u32 s{sIt}, 1")
                e(f"  s_cbranch_scc1 attn_nobar{j}")
                e("  s_waitcnt vmcnt(0)")
                e("  s_barrier")
                e(f"  v_lshlrev_b32 v{t0}, 4, v{vLane}")
                e(f"  s_and_b32 s{sT0}, s2, 0xf8")
                e(f"  s_add_u32 s{sT0}, s{sT0}, s{sWid}          ; slice 0..255")
                e(f"  s_cmp_lt_u32 s{sT0}, 128")
                e("  s_cselect_b32 s30, s56, s58")
                e("  s_cselect_b32 s31, s57, s59")
                srd(60, 30, 512 * 1024)
                e(f"  s_and_b32 s{sT0}, s{sT0}, 127")
                e(f"  s_lshl_b32 s{sT0}, s{sT0}, 12")
                for i in range(4):
                    e(f"  buffer_load_dwordx4 {vr(vX,4)}, v{t0}, s[60:63], s{sT0} offen offset:{i*1024}")
                if j == 0:
                    e(f"  s_lshl_b32 s{sOff}, s2, 3")
                    e(f"  s_lshl_b32 s{sT0}, s{sWid}, 1")
                    e(f"  s_add_u32 s{sOff}, s{sOff}, s{sT0}")
                    e(f"  s_lshl_b32 s{sT0}, s{sOff}, 10")
                    e(f"  buffer_load_dwordx4 {vr(vX+4,4)}, v{t0}, {sr(rXg,4)}, s{sT0} offen")
                    e(f"  buffer_load_dwordx4 {vr(vX+8,4)}, v{t0}, {sr(rXg,4)}, s{sT0} offen offset:1024")
                    e(f"  buffer_load_dwordx4 {vr(vX+12,4)}, v{t0}, {sr(rGw,4)}, 0 offen")
                e(f"attn_nobar{j}:")
            e("  s_waitcnt lgkmcnt(2)")
            if u == 0:
                e(f"  v_readfirstlane_b32 s{sPr}, v{vPr+2}")
                e(f"  s_cmp_eq_u32 s{sIt}, s{sPr}")
                e(f"  s_cbranch_scc1 attn_ptie{j}")
                e(f"  s_cmp_gt_u32 s{sIt}, s{sPr}")
                e(f"  s_cbranch_scc1 attn_plow{j}")
                e("  s_setprio 2")
                e(f"  s_branch attn_pdone{j}")
                e(f"attn_plow{j}:")
                e("  s_setprio 0")
                e(f"  s_branch attn_pdone{j}")
                e(f"attn_ptie{j}:")
                e(f"  s_setprio {j}")
                e(f"attn_pdone{j}:")
            mf = []
            for z in range(2):
                mf.append(f"  v_mfma_f32_32x32x16_bf16 {vr(vS[z]+16*(1-b),16)}, {vr(vK+4*(1-b),4)}, {vr(vQ[z],4)}, {vr(vC[z],16)}")
            for z in range(2):
                Pp = vP[z] + 8 * (1 - b)
                mf.append(f"  v_mfma_f32_32x32x16_bf16 {vr(vO[z],16)}, {vr(Vp,4)}, {vr(Pp,4)}, {vr(vO[z],16)}")
                mf.append(f"  v_mfma_f32_32x32x16_bf16 {vr(vO[z],16)}, {vr(Vp+4,4)}, {vr(Pp+4,4)}, {vr(vO[z],16)}")
            va = []
            ORD = os.environ.get("ORD", "0")
            if ORD == "0":
                for z in range(2):
                    S = vS[z] + 16 * b
                    for i in range(16):
                        va.append(f"  v_exp_f32 v{S+i}, v{S+i}")
                    for i in range(8):
                        va.append(f"  v_cvt_pk_bf16_f32 v{vP[z]+8*b+i}, v{S+2*i}, v{S+2*i+1}")
                pos = [0, 5, 11, 17, 27, 33]
            else:
                ex = []; cv = []
                for z in range(2):
                    S = vS[z] + 16 * b
                    for i in range(16):
                        ex.append(f"  v_exp_f32 v{S+i}, v{S+i}")
                    for i in range(8):
                        cv.append(f"  v_cvt_pk_bf16_f32 v{vP[z]+8*b+i}, v{S+2*i}, v{S+2*i+1}")
                for i in range(32):
                    va.append(ex[i])
                    if i >= 3 and i % 2 == 1:
                        va.append(cv[(i - 3) // 2])
                va.append(cv[15])
                pos = [0, 6, 13, 20, 27, 34] if ORD == "1" else [0, 7, 15, 22, 29, 35]
            for i, v in enumerate(va):
                while pos and pos[0] == i:
                    k = 6 - len(pos)
                    if k == 2:
                        e("  s_waitcnt lgkmcnt(3)")
                    e(mf[k])
                    if k == 1:
                        if u == 7:
                            e(f"  s_add_u32 s{sPr}, s{sIt}, 1")
                            e(f"  v_mov_b32 v{vPr+3}, s{sPr}")
                            e(f"  ds_write_b32 v{vPr}, v{vPr+3}")
                            e(f"  ds_read_b32 v{vPr+2}, v{vPr+1}")
                        if "L" not in DBG:
                            kread(b, (u + 2) * 2048)
                            vread(b, u * 2048)
                    pos.pop(0)
                e(v)
            if u == 7:
                e(f"  v_cmp_ngt_f32 vcc, s{sThr}, v{vO[0]+8}")
                e(f"  v_cmp_ngt_f32 s[26:27], s{sThr}, v{vO[1]+8}")
                e(f"  v_add_u32 v{vAddr}, 16384, v{vAddr}")
                e(f"  s_add_u32 s{sIt}, s{sIt}, 1")
                e("  s_or_b64 vcc, vcc, s[26:27]")
                e(f"  s_cbranch_vccnz attn_rare{j}")
                e(f"attn_rare_ret{j}:")
        e(f"  s_cmp_lt_u32 s{sIt}, 8")
        e(f"  s_cbranch_scc1 attn_loop{j}")
        if j < 1:
            e("  s_branch attn_tail")
    e("attn_tail:")
    e("  s_setprio 0")
    e("  s_waitcnt lgkmcnt(0)")
    for z in range(2):
        e(f"  v_mfma_f32_32x32x16_bf16 {vr(vO[z],16)}, {vr(vV+8,4)}, {vr(vP[z]+8,4)}, {vr(vO[z],16)}")
        e(f"  v_mfma_f32_32x32x16_bf16 {vr(vO[z],16)}, {vr(vV+12,4)}, {vr(vP[z]+12,4)}, {vr(vO[z],16)}")
    e("  s_nop 15")
    e(f"  v_mov_b32 v{t1}, 0x207")
    e(f"  s_mov_b64 {sr(26,2)}, 0")
    for z in range(2):
        for i in range(9):
            e(f"  v_cmp_class_f32 vcc, v{vO[z]+i}, v{t1}")
            e(f"  s_or_b64 {sr(26,2)}, {sr(26,2)}, vcc")
    e(f"  s_cmp_lg_u64 {sr(26,2)}, 0")
    e(f"  s_cselect_b32 s{sT0}, 1, 0")
    e(f"  s_or_b32 s{sFlag}, s{sFlag}, s{sT0}")
    e(f"  s_cmp_lg_u32 s{sFlag}, 0")
    e("  s_cbranch_scc1 attn_fallback")
    e("attn_epilogue:")
    e(f"  s_lshl_b32 s{sT0}, s{sBr}, 6")
    e(f"  s_add_u32 s{sT0}, s{sT0}, s{sQt}")
    e(f"  s_lshl_b32 s{sT0}, s{sT0}, 5")
    e(f"  s_add_u32 s{sT0}, s{sT0}, s{sHead}")
    e(f"  s_lshl_b32 s{sT0}, s{sT0}, 10")
    e(f"  s_add_u32 s{sT0}, s{sT0}, {OF_OFF}")
    e(f"  v_lshlrev_b32 v{t1}, 4, v{vLane}")
    for z in range(2):
        e(f"  v_rcp_f32 v{t0}, v{vO[z]+8}")
        e("  s_nop 0")
        for i in range(8):
            e(f"  v_mul_f32 v{vO[z]+i}, v{vO[z]+i}, v{t0}")
        for i in range(4):
            e(f"  v_cvt_pk_bf16_f32 v{vP[z]+i}, v{vO[z]+2*i}, v{vO[z]+2*i+1}")
        e(f"  buffer_store_dwordx4 {vr(vP[z],4)}, v{t1}, {sr(rWS,4)}, s{sT0} offen")
        if z == 0:
            e(f"  s_add_u32 s{sT0}, s{sT0}, 32768")
    e(f"  s_cmp_ge_u32 s{sWid}, 4")
    e("  s_cbranch_scc1 attn_nogate")
    e("  s_waitcnt vmcnt(2)")
    e(f"  v_mov_b32 v{t0}, 0")
    e(f"  v_mov_b32 v{t2}, 0")
    for i in range(4):
        e(f"  v_dot2_f32_bf16 v{t0}, v{vX+4+i}, v{vX+12+i}, v{t0}")
        e(f"  v_dot2_f32_bf16 v{t2}, v{vX+8+i}, v{vX+12+i}, v{t2}")
    e("  s_nop 2")
    for m in (0x041F, 0x081F, 0x101F, 0x201F, 0x401F):
        e(f"  ds_swizzle_b32 v{t1}, v{t0} offset:{hex(m)}")
        e(f"  ds_swizzle_b32 v{t3}, v{t2} offset:{hex(m)}")
        e("  s_waitcnt lgkmcnt(0)")
        e(f"  v_add_f32 v{t0}, v{t0}, v{t1}")
        e(f"  v_add_f32 v{t2}, v{t2}, v{t3}")
    e("  s_nop 1")
    e(f"  v_permlane32_swap_b32 v{t0}, v{t2}")
    e(f"  v_add_f32 v{t0}, v{t0}, v{t2}")
    e(f"  v_cvt_pk_bf16_f32 v{t0}, v{t0}, v{t0}")
    e(f"  v_lshlrev_b32 v{t0}, 16, v{t0}")
    e(f"  v_mul_f32 v{t0}, {hex(f32bits(-1.4426950408889634))}, v{t0}")
    e(f"  v_exp_f32 v{t0}, v{t0}")
    e("  s_nop 0")
    e(f"  v_add_f32 v{t0}, 1.0, v{t0}")
    e(f"  v_rcp_f32 v{t0}, v{t0}")
    e("  s_nop 0")
    e(f"  v_cvt_pk_bf16_f32 v{t0}, v{t0}, v{t0}")
    e(f"  v_lshlrev_b32 v{t0}, 16, v{t0}")
    e(f"  s_lshl_b32 s{sOff}, s{sOff}, 2")
    e(f"  s_add_u32 s{sOff}, s{sOff}, {G_OFF}")
    e(f"  v_lshrrev_b32 v{t1}, 5, v{vLane}")
    e(f"  v_lshlrev_b32 v{t1}, 2, v{t1}")
    e("  s_mov_b32 exec_lo, 1")
    e("  s_mov_b32 exec_hi, 1")
    e(f"  buffer_store_dword v{t0}, v{t1}, {sr(rWS,4)}, s{sOff} offen sc0 sc1")
    e("  s_mov_b64 exec, -1")
    e("attn_nogate:")
    if "t" in DBG:
        e("  s_memtime s[36:37]")
        e("  s_memrealtime s[38:39]")
        e("  s_waitcnt lgkmcnt(0)")
        e("  s_sub_u32 s36, s36, s32")
        e("  s_sub_u32 s38, s38, s34")
        e("  s_sub_u32 s37, s44, s32")
        srd(28, 40, 256)
        e("  v_mov_b32 v4, s36")
        e("  v_mov_b32 v5, s38")
        e("  v_mov_b32 v6, s37")
        e("  v_mov_b32 v7, 0")
        e(f"  s_lshl_b32 s36, s{sWid}, 4")
        e("  v_mov_b32 v8, s36")
        e("  s_cmp_lg_u32 s2, 100")
        e("  s_cbranch_scc1 attn_done")
        e("  buffer_store_dwordx4 v[4:7], v8, s[28:31], 0 offen")
    e("attn_done:")
    e("  s_endpgm" if not FUSED else "  s_branch outp_kernel_phase")

    e("attn_rare0:")
    e(f"  s_mov_b32 s{sT1}, 0")
    e("  s_branch attn_rare")
    e("attn_rare1:")
    e(f"  s_mov_b32 s{sT1}, 1")
    e("attn_rare:")
    e(f"  v_cmp_ngt_f32 vcc, s{sInf}, v{vO[0]+8}")
    e(f"  v_cmp_ngt_f32 s[26:27], s{sInf}, v{vO[1]+8}")
    e("  s_or_b64 vcc, vcc, s[26:27]")
    e("  s_cbranch_vccz attn_rare_ok")
    e(f"  s_mov_b32 s{sFlag}, 1")
    e("  s_branch attn_rare_back")
    e("attn_rare_ok:")
    for z in range(2):
        e(f"  v_frexp_exp_i32_f32 v{t0}, v{vO[z]+8}")
        e(f"  v_add_u32 v{t0}, {HEAD}, v{t0}")
        e(f"  v_sub_u32 v{t1}, 0, v{t0}")
        e(f"  v_cvt_f32_i32 v{t0}, v{t0}")
        for i in range(9):
            e(f"  v_ldexp_f32 v{vO[z]+i}, v{vO[z]+i}, v{t1}")
        for i in range(8):
            e(f"  v_lshlrev_b32 v{t2}, 16, v{vP[z]+8+i}")
            e(f"  v_and_b32 v{t3}, 0xffff0000, v{vP[z]+8+i}")
            e(f"  v_ldexp_f32 v{t2}, v{t2}, v{t1}")
            e(f"  v_ldexp_f32 v{t3}, v{t3}, v{t1}")
            e(f"  v_cvt_pk_bf16_f32 v{vP[z]+8+i}, v{t2}, v{t3}")
        for i in range(16):
            e(f"  v_sub_f32 v{vS[z]+i}, v{vS[z]+i}, v{t0}")
        for i in range(16):
            e(f"  v_sub_f32 v{vC[z]+i}, v{vC[z]+i}, v{t0}")
    e("attn_rare_back:")
    e(f"  s_cmp_eq_u32 s{sT1}, 0")
    e(f"  s_cbranch_scc1 attn_rare_ret0")
    e("  s_branch attn_rare_ret1")

    e("attn_fallback:")
    for z in range(2):
        e(f"  v_lshlrev_b32 v{vAddr}, 4, v{vLane}")
        for i in range(16):
            e(f"  v_mov_b32 v{vO[z]+i}, 0")
        e(f"  v_mov_b32 v{vG}, 0xff7fffff")
        e(f"  s_mov_b32 s{sIt}, 0")
        e(f"attn_fb_loop{z}:")
        kread(0, 0)
        vread(0, 0)
        e("  s_waitcnt lgkmcnt(0)")
        S = vS[z]
        e(f"  v_mfma_f32_32x32x16_bf16 {vr(S,16)}, {vr(vK,4)}, {vr(vQ[z],4)}, 0")
        e("  s_nop 15")
        e("  s_nop 3")
        rowmax(S, t0, t1)
        e(f"  v_max_f32 v{t0}, v{t0}, v{vG}             ; m_new")
        e(f"  v_sub_f32 v{t1}, v{vG}, v{t0}")
        e(f"  v_exp_f32 v{t1}, v{t1}                    ; alpha")
        e(f"  v_mov_b32 v{vG}, v{t0}")
        for i in range(16):
            e(f"  v_sub_f32 v{S+i}, v{S+i}, v{t0}")
        for i in range(16):
            e(f"  v_exp_f32 v{S+i}, v{S+i}")
        for i in range(9):
            e(f"  v_mul_f32 v{vO[z]+i}, v{vO[z]+i}, v{t1}")
        for i in range(8):
            e(f"  v_cvt_pk_bf16_f32 v{vP[z]+i}, v{S+2*i}, v{S+2*i+1}")
        e("  s_nop 1")
        e(f"  v_mfma_f32_32x32x16_bf16 {vr(vO[z],16)}, {vr(vV,4)}, {vr(vP[z],4)}, {vr(vO[z],16)}")
        e(f"  v_mfma_f32_32x32x16_bf16 {vr(vO[z],16)}, {vr(vV+4,4)}, {vr(vP[z]+4,4)}, {vr(vO[z],16)}")
        e(f"  v_add_u32 v{vAddr}, 2048, v{vAddr}")
        e("  s_nop 15")
        e("  s_nop 3")
        e(f"  s_add_u32 s{sIt}, s{sIt}, 1")
        e(f"  s_cmp_lt_u32 s{sIt}, 64")
        e(f"  s_cbranch_scc1 attn_fb_loop{z}")
    e("  s_branch attn_epilogue")
    return kernel_desc("attn_kernel", NV, 64) if not FUSED else ""

def gen_outp():
    kernel_start("outp_kernel")
    sWA, sWB, sOut, sWS = 4, 6, 8, 10
    rW, rOut, rWS = 12, 20, 24
    sWid, sNB, sTBk, sBr, sTT, sKH, sT0, sT1, sQt, sWo, sM, sOo, sQd = 28, 29, 30, 31, 32, 33, 34, 35, 36, 37, 38, 39, 40
    vLane, vWo, vA0, vA1, vG, vOa, t0, t1, t2, t3 = 1, 2, 3, 4, 5, 6, 7, 8, 9, 10
    vWF = 12
    vAcc = 76
    vOF = 108
    vEx = 12
    NV = 172
    e("  s_cmp_ge_u32 s2, 256")
    e("  s_cbranch_scc1 outp_done")
    e("  s_load_dwordx2 s[4:5], s[0:1], 32")
    e("  s_load_dwordx2 s[6:7], s[0:1], 56")
    e("  s_load_dwordx2 s[8:9], s[0:1], 72")
    e("  s_load_dwordx2 s[10:11], s[0:1], 88")
    if "o" in DBG:
        e("  s_load_dwordx2 s[80:81], s[0:1], 80")
        e("  s_memtime s[60:61]")
    e(f"  v_and_b32 v{vLane}, 63, v0")
    e(f"  v_lshrrev_b32 v{t0}, 6, v0")
    e("  s_nop 0")
    e(f"  v_readfirstlane_b32 s{sWid}, v{t0}")
    e(f"  s_and_b32 s{sT0}, s2, 7")
    e(f"  s_lshl_b32 s{sT0}, s{sT0}, 2")
    e(f"  s_bfe_u32 s{sT1}, s2, 0x20003")
    e(f"  s_add_u32 s{sTBk}, s{sT0}, s{sT1}")
    e(f"  s_lshr_b32 s{sNB}, s2, 5")
    e(f"  s_lshr_b32 s{sBr}, s{sWid}, 2")
    e(f"  s_bfe_u32 s{sTT}, s{sWid}, 0x10001")
    e(f"  s_and_b32 s{sKH}, s{sWid}, 1")
    e(f"  s_lshl_b32 s{sQt}, s{sTBk}, 1")
    e(f"  s_add_u32 s{sQt}, s{sQt}, s{sTT}")
    e(f"  s_lshl_b32 s{sQd}, s{sBr}, 1")
    e(f"  s_add_u32 s{sQd}, s{sQd}, s{sKH}")
    e(f"  v_lshrrev_b32 v{t0}, 3, v{vLane}          ; l/8")
    e(f"  v_and_b32 v{t1}, 7, v{vLane}")
    e(f"  v_bfe_u32 v{t2}, v{vLane}, 4, 1           ; (row>>1)&1")
    e(f"  v_lshlrev_b32 v{t2}, 2, v{t2}")
    e(f"  v_xor_b32 v{t1}, v{t1}, v{t2}")
    e(f"  v_lshlrev_b32 v{t1}, 4, v{t1}")
    e(f"  v_lshl_add_u32 v{vWo}, v{t0}, 10, v{t1}")
    e(f"  v_lshlrev_b32 v{vOa}, 4, v{vLane}")
    e("  s_waitcnt lgkmcnt(0)")
    e(f"  s_cmp_eq_u32 s{sBr}, 0")
    e(f"  s_cselect_b32 s{sT0}, s{sWA}, s{sWB}")
    e(f"  s_cselect_b32 s{sT1}, s{sWA+1}, s{sWB+1}")
    srd(rW, sT0, 512 * 1024)
    srd(rOut, sOut, 2097152)
    srd(rWS, sWS, WS_BYTES)
    e(f"  s_and_b32 s{sT0}, s{sWid}, 3")
    e(f"  s_lshl_b32 s{sWo}, s{sT0}, 15              ; q*32 rows * 1024")
    e(f"  s_lshl_b32 s{sT1}, s{sNB}, 7")
    e(f"  s_add_u32 s{sWo}, s{sWo}, s{sT1}")
    e(f"  s_lshl_b32 s{sM}, s{sT0}, 12               ; q*32 rows * 128")
    e(f"  s_lshl_b32 s{sT1}, s{sBr}, 16")
    e(f"  s_add_u32 s{sM}, s{sM}, s{sT1}")
    e(f"  s_lshl_b32 s{sOo}, s{sBr}, 6")
    e(f"  s_add_u32 s{sOo}, s{sOo}, s{sQt}")
    e(f"  s_lshl_b32 s{sOo}, s{sOo}, 15")
    e(f"  s_lshl_b32 s{sT1}, s{sKH}, 14")
    e(f"  s_add_u32 s{sOo}, s{sOo}, s{sT1}")
    e(f"  s_add_u32 s{sOo}, s{sOo}, {OF_OFF}")
    def wdma(c, i):
        e(f"  s_add_u32 m0, s{sM}, {c*16384 + i*1024}")
        e(f"  s_add_u32 s{sT0}, s{sWo}, {c*131072 + i*8192}")
        e(f"  buffer_load_dwordx4 v{vWo}, {sr(rW,4)}, s{sT0} offen lds")
    def oload(k):
        e(f"  buffer_load_dwordx4 {vr(vOF+4*k,4)}, v{vOa}, {sr(rWS,4)}, s{sOo} offen offset:{(k%4)*1024}")
        if k % 4 == 3:
            e(f"  s_add_u32 s{sOo}, s{sOo}, 4096")
    for c in (0, 2):
        for i in range(4):
            wdma(c, i)
    for k in range(8):
        oload(k)
    tr_addr(vA0, vA1, vLane, t0, t1, t2, t3, True)
    e(f"  s_lshl_b32 s{sT0}, s{sBr}, 16")
    e(f"  s_lshl_b32 s{sT1}, s{sKH}, 15")
    e(f"  s_add_u32 s{sT0}, s{sT0}, s{sT1}")
    e(f"  v_add_u32 v{vA0}, s{sT0}, v{vA0}")
    e(f"  v_add_u32 v{vA1}, s{sT0}, v{vA1}")
    def wread(k):
        for ct in range(2):
            for u in range(2):
                e(f"  ds_read_b64_tr_b16 {vr(vWF+8*(k%8)+4*ct+u*2,2)}, v{vA0 if ct == 0 else vA1} offset:{k*2048+u*512}")
    if "o" in DBG:
        e("  s_memtime s[62:63]")
    e("  s_waitcnt vmcnt(8)")
    e("  s_barrier")
    if "o" in DBG:
        e("  s_memtime s[64:65]")
        e("  s_waitcnt lgkmcnt(0)")
    later = [("w", 1, i) for i in range(4)] + [("w", 3, i) for i in range(4)] + [("o", k) for k in range(8, 16)]
    for k in range(4):
        wread(k)
    nlater = 0
    for k in range(8):
        if k + 4 < 8:
            wread(k + 4)
        for _ in range(2):
            it = later[nlater]; nlater += 1
            if it[0] == "w": wdma(it[1], it[2])
            else: oload(it[1])
        rem = 4 * (min(k + 4, 7) - k)
        e(f"  s_waitcnt vmcnt({7-k+nlater}) lgkmcnt({min(rem,15)})")
        for ct in range(2):
            cc = "0" if k == 0 else vr(vAcc + 16 * ct, 16)
            e(f"  v_mfma_f32_32x32x16_bf16 {vr(vAcc+16*ct,16)}, {vr(vWF+8*k+4*ct,4)}, {vr(vOF+4*k,4)}, {cc}")
    e(f"  v_and_b32 v{t0}, 31, v{vLane}")
    e(f"  v_lshlrev_b32 v{t0}, 2, v{t0}")
    e(f"  s_lshl_b32 s{sT0}, s{sQt}, 7")
    e(f"  s_add_u32 s{sT0}, s{sT0}, {G_OFF}")
    e(f"  buffer_load_dword v{vG}, v{t0}, {sr(rWS,4)}, s{sT0} offen")
    e("  s_waitcnt vmcnt(9)")
    e("  s_barrier")
    for k in range(8, 12):
        wread(k)
    for k in range(8, 16):
        if k + 4 < 16:
            wread(k + 4)
        rem = 4 * (min(k + 4, 15) - k)
        e(f"  s_waitcnt vmcnt({15-k+1}) lgkmcnt({min(rem,15)})")
        for ct in range(2):
            e(f"  v_mfma_f32_32x32x16_bf16 {vr(vAcc+16*ct,16)}, {vr(vWF+8*(k%8)+4*ct,4)}, {vr(vOF+4*k,4)}, {vr(vAcc+16*ct,16)}")
    if "o" in DBG:
        e("  s_memtime s[66:67]")
        e("  s_waitcnt lgkmcnt(0)")
    e("  s_barrier")
    e(f"  s_lshl_b32 s{sT0}, s{sWid}, 13")
    e(f"  v_add_u32 v{t0}, s{sT0}, v{vOa}")
    e("  s_nop 8")
    for q in range(4):
        for hlf in range(2):
            e(f"  ds_write_b128 v{t0}, {vr(vAcc+8*q+4*hlf,4)} offset:{q*2048+hlf*1024}")
    e(f"  s_lshl_b32 s{sT0}, s{sTT}, 14")
    e(f"  s_lshl_b32 s{sT1}, s{sQd}, 11")
    e(f"  s_add_u32 s{sT0}, s{sT0}, s{sT1}")
    e(f"  v_add_u32 v{t0}, s{sT0}, v{vOa}")
    vOm = t1
    e("  s_waitcnt vmcnt(0) lgkmcnt(0)")
    e("  s_barrier")
    for p, woff in enumerate((0, 8192, 32768, 40960)):
        for hlf in range(2):
            e(f"  ds_read_b128 {vr(vEx+8*p+4*hlf,4)}, v{t0} offset:{woff+hlf*1024}")
    e(f"  v_sub_f32 v{vOm}, 1.0, v{vG}")
    e(f"  v_cvt_pk_bf16_f32 v{vOm}, v{vOm}, v{vOm}")
    e(f"  v_lshlrev_b32 v{vOm}, 16, v{vOm}")
    e(f"  s_mov_b32 s{sT1}, 0xffff0000")
    e(f"  v_and_b32 v{t0}, 31, v{vLane}")
    e(f"  v_lshlrev_b32 v{t0}, 10, v{t0}")
    e(f"  v_lshrrev_b32 v{t2}, 5, v{vLane}")
    e(f"  v_lshl_add_u32 v{t0}, v{t2}, 5, v{t0}")
    e(f"  s_lshl_b32 s{sT0}, s{sQt}, 15")
    e(f"  s_lshl_b32 s{sWo}, s{sNB}, 7")
    e(f"  s_add_u32 s{sT0}, s{sT0}, s{sWo}")
    e(f"  s_lshl_b32 s{sWo}, s{sBr}, 6")
    e(f"  s_add_u32 s{sT0}, s{sT0}, s{sWo}")
    e(f"  s_lshl_b32 s{sWo}, s{sKH}, 4")
    e(f"  s_add_u32 s{sT0}, s{sT0}, s{sWo}")
    def round_pair(x0, x1, tmp):
        e(f"  v_cvt_pk_bf16_f32 v{tmp}, v{x0}, v{x1}")
        e(f"  v_lshlrev_b32 v{x0}, 16, v{tmp}")
        e(f"  v_and_b32 v{x1}, s{sT1}, v{tmp}")
    e("  s_waitcnt lgkmcnt(0)")
    A0, A1, B0, B1 = vEx, vEx + 8, vEx + 16, vEx + 24
    for i in range(8):
        e(f"  v_add_f32 v{A0+i}, v{A0+i}, v{A1+i}")
        e(f"  v_add_f32 v{B0+i}, v{B0+i}, v{B1+i}")
    for i in range(0, 8, 2):
        round_pair(A0 + i, A0 + i + 1, t2)
        e(f"  v_mul_f32 v{A0+i}, v{vG}, v{A0+i}")
        e(f"  v_mul_f32 v{A0+i+1}, v{vG}, v{A0+i+1}")
        round_pair(A0 + i, A0 + i + 1, t2)
        round_pair(B0 + i, B0 + i + 1, t3)
        e(f"  v_mul_f32 v{B0+i}, v{vOm}, v{B0+i}")
        e(f"  v_mul_f32 v{B0+i+1}, v{vOm}, v{B0+i+1}")
        round_pair(B0 + i, B0 + i + 1, t3)
        e(f"  v_add_f32 v{A0+i}, v{A0+i}, v{B0+i}")
        e(f"  v_add_f32 v{A0+i+1}, v{A0+i+1}, v{B0+i+1}")
        e(f"  v_cvt_pk_bf16_f32 v{vOF+i//2}, v{A0+i}, v{A0+i+1}")
    e(f"  buffer_store_dwordx4 {vr(vOF,4)}, v{t0}, {sr(rOut,4)}, s{sT0} offen")
    if "o" in DBG:
        e("  s_memtime s[68:69]")
        e("  s_waitcnt vmcnt(0)")
        e("  s_memtime s[70:71]")
        e("  s_waitcnt lgkmcnt(0)")
        for i in range(1,6):
            e(f"  s_sub_u32 s{60+2*i}, s{60+2*i}, s60")
            e(f"  v_mov_b32 v{19+i}, s{60+2*i}")
        srd(84, 80, 256)
        e(f"  s_lshl_b32 s60, s{sWid}, 5")
        e("  v_mov_b32 v28, s60")
        e("  s_cmp_lg_u32 s2, 40")
        e("  s_cbranch_scc1 outp_done")
        e("  buffer_store_dwordx4 v[20:23], v28, s[84:87], 0 offen")
        e("  buffer_store_dwordx4 v[24:27], v28, s[84:87], 0 offen offset:16")
    e("outp_done:")
    e("  s_endpgm")
    return kernel_desc("outp_kernel", NV, 48 if "o" not in DBG else 96)

descs = []
descs.append(gen_proj())
descs.append(gen_attn())
descs.append(gen_outp())
if "r" in DBG:
    import re
    L4 = []
    kidx = -1
    for ln in L:
        st = ln.strip()
        if st.endswith("_kernel:"):
            kidx += 1
            B = 250
            L4.append(ln)
            L4.append("  s_memrealtime s[90:91]")
            L4.append("  s_load_dwordx2 s[92:93], s[0:1], 88")
            L4.append(f"  v_mov_b32 v{B}, v0")
            continue
        if st == "s_endpgm":
            L4.append("  s_waitcnt vmcnt(0) lgkmcnt(0)")
            L4.append("  s_memrealtime s[94:95]")
            L4.append("  s_mov_b32 s96, s92")
            L4.append("  s_and_b32 s97, s93, 0xffff")
            L4.append("  s_mov_b32 s98, 268435456")
            L4.append("  s_mov_b32 s99, 0x00020000")
            L4.append("  s_waitcnt lgkmcnt(0)")
            L4.append(f"  v_mov_b32 v{B+2}, s90")
            L4.append(f"  v_mov_b32 v{B+3}, s94")
            L4.append(f"  v_lshrrev_b32 v{B+1}, 6, v{B}")
            L4.append(f"  v_lshlrev_b32 v{B+1}, 3, v{B+1}")
            L4.append(f"  s_lshl_b32 s90, s2, 7")
            L4.append(f"  s_add_u32 s90, s90, {(20<<20) + kidx*65536}")
            L4.append("  s_mov_b64 exec, 1")
            L4.append(f"  buffer_store_dwordx2 v[{B+2}:{B+3}], v{B+1}, s[96:99], s90 offen")
        L4.append(ln)
    L[:] = L4
    def fix(d):
        n = 256
        d = re.sub(r"next_free_vgpr \d+", f"next_free_vgpr {n}", d)
        d = re.sub(r"accum_offset \d+", f"accum_offset {n}", d)
        return re.sub(r"next_free_sgpr \d+", "next_free_sgpr 102", d)
    descs[:] = [fix(d) for d in descs]
L3 = []
for ln in L:
    if ln.strip().startswith("buffer_store_dwordx4") and ("s[28:31]" in ln or "s[8:11]" in ln) and "v[4:7], v8" not in ln:
        ln = ln + " sc0 sc1"
    L3.append(ln)
L[:] = L3
STF = os.environ.get("STF", "")
if STF:
    L2 = []
    for ln in L:
        if ln.strip().startswith("buffer_store_dwordx4"):
            if STF == "skip":
                continue
            ln = ln + " " + STF
        L2.append(ln)
    L[:] = L2
if FUSED:
    LAUNCH = """; One launch, three phases (projections -> attention -> output projection + gate mix); the phases hand
; @launch grid=(256,1,1) block=(512,1,1) lds=147456"""
else:
    LAUNCH = """; Three launches: projections -> attention (both branches) -> output projection + gate mix.
; proj_kernel: x @ [wq | wqkv | wk,wv] with MFMA; Q (pre-multiplied by Dh^-0.5*log2e), K, V are written to d_ws in
;   MFMA-fragment order.  attn_kernel: per (branch, head, 512 queries); K/V of the head live in LDS; S^T = K Q^T,
; outp_kernel: O_A @ wo_A and O_B @ wo_B, bf16 roundings as in the reference, gate mix.
; @launch kernel=proj_kernel grid=(256,1,1) block=(512,1,1) lds=147456
; @launch kernel=attn_kernel grid=(256,1,1) block=(512,1,1) lds=135232
; @launch kernel=outp_kernel grid=(256,1,1) block=(512,1,1) lds=131072"""
text = HEADER.replace("%LAUNCH%", LAUNCH) + "\n".join(L) + "\n" + '.section .rodata,"a"\n' + "".join(descs)
open(OUT, "w").write(text)
print("wrote", OUT, len(text), "bytes")
```
